```python
import torch

def _softmax(x, axis=-1):
    return torch.softmax(x, dim=axis)

def _gelu(x):
    return torch.nn.functional.gelu(x, approximate='tanh')

def _silu(x):
    return torch.nn.functional.silu(x)

def _sigmoid(x):
    return torch.sigmoid(x)

def _layernorm(x, axis=-1, eps=1e-05):
    m = x.mean(dim=axis, keepdim=True)
    v = x.var(dim=axis, keepdim=True, unbiased=False)
    return (x - m) / torch.sqrt(v + eps)

def _scatter_add(tgt, idx, src, axis=0):
    return tgt.clone().index_add_(axis, idx, src)

def _segment_sum(src, seg, n):
    out = torch.zeros((n,) + src.shape[1:], dtype=src.dtype)
    return out.index_add_(0, seg, src)

def _pad(x, pw):
    flat = tuple((v for pair in reversed(pw) for v in pair))
    return torch.nn.functional.pad(x, flat)
kernel_name = 'adaLN_cond__mha_block_cached__glu_gated_bilinear__decode'

def setup_inputs():

    _w = lambda a: (lambda t: t.to(torch.bfloat16) if t.is_floating_point() else t)(torch.as_tensor(a))

    def _A_setup():
        B, Sq, D = (2, 1, 512)
        H, Sk, Dh = (32, 32768, 128)
        return {'x': _w((lambda *s: torch.randn(*s, dtype=torch.bfloat16) * 0.05)(B, Sq, D)), 'k_cache': _w((lambda *s: torch.randn(*s, dtype=torch.bfloat16) * 0.8)(B, H, Sk, Dh)), 'v_cache': _w((lambda *s: torch.randn(*s, dtype=torch.bfloat16) * 3.2)(B, H, Sk, Dh)), 'wq': _w((lambda *s: torch.randn(*s, dtype=torch.bfloat16) * 0.8)(D, H * Dh) * D ** (-0.5)), 'wo': _w((lambda *s: torch.randn(*s, dtype=torch.bfloat16) * 3.2)(H * Dh, D) * (H * Dh) ** (-0.5))}
    _A_in = _A_setup()

    def _B_setup():
        B, S, D, F = (2, 1, 512, 1792)
        return {'x': _w((lambda *s: torch.randn(*s, dtype=torch.bfloat16) * 0.05)(B, S, D)), 'w_gate': _w((lambda *s: torch.randn(*s, dtype=torch.bfloat16) * 3.2)(D, F) * D ** (-0.5)), 'w_up': _w((lambda *s: torch.randn(*s, dtype=torch.bfloat16) * 3.2)(D, F) * D ** (-0.5)), 'w_down': _w((lambda *s: torch.randn(*s, dtype=torch.bfloat16) * 3.2)(F, D) * F ** (-0.5))}
    _B_in = _B_setup()
    return {'A_x': _A_in['x'], 'A_k_cache': _A_in['k_cache'], 'A_v_cache': _A_in['v_cache'], 'A_wq': _A_in['wq'], 'A_wo': _A_in['wo'], 'B_x': _B_in['x'], 'B_w_gate': _B_in['w_gate'], 'B_w_up': _B_in['w_up'], 'B_w_down': _B_in['w_down'], 'c': _w((lambda *s: torch.randn(*s, dtype=torch.bfloat16) * 0.2)(2, 512) * 8.0), 'w_mod': _w((lambda *s: torch.randn(*s, dtype=torch.bfloat16) * 0.2)(512, 6 * 512) * 512 ** (-0.5) * 8.0)}

def reference(A_x, A_k_cache, A_v_cache, A_wq, A_wo, B_x, B_w_gate, B_w_up, B_w_down, c, w_mod):

    def _A_ref(x, k_cache, v_cache, wq, wo):
        B, Sq, D = x.shape
        H, Dh = (32, 128)
        q = (lambda x, *d: x.permute(*d))((x @ wq).reshape(B, Sq, H, Dh), 0, 2, 1, 3)
        scores = torch.einsum('bhqd,bhkd->bhqk', q, k_cache) * Dh ** (-0.5)
        p = _softmax(scores, axis=-1)
        o = torch.einsum('bhqk,bhkd->bhqd', p, v_cache)
        return (lambda x, *d: x.permute(*d))(o, 0, 2, 1, 3).reshape(B, Sq, H * Dh) @ wo

    def _B_ref(x, w_gate, w_up, w_down):
        g = torch.einsum('bsd,df->bsf', x, w_gate)
        u = torch.einsum('bsd,df->bsf', x, w_up)
        h = g * u
        return torch.einsum('bsf,fd->bsd', h, w_down)
    x = A_x
    mod = (_silu(c) @ w_mod).reshape(c.shape[0], 6, 1, -1)
    sa, ca, ga, sb, cb, gb = (mod[:, 0].clone(), mod[:, 1].clone(), mod[:, 2].clone(), mod[:, 3].clone(), mod[:, 4].clone(), mod[:, 5].clone())
    h = _layernorm(x, axis=-1) * (1 + ca) + sa
    x = x + ga * _A_ref(h, A_k_cache, A_v_cache, A_wq, A_wo)
    h = _layernorm(x, axis=-1) * (1 + cb) + sb
    x = x + gb * _B_ref(h, B_w_gate, B_w_up, B_w_down)
    return x
```

```python
import re

TRANS = ('v_exp_f32','v_log_f32','v_rcp_f32','v_rsq_f32','v_sqrt_f32','v_sin_f32','v_cos_f32')

def regs_of(op):
    op = op.strip()
    op = op.lstrip('-')
    m = re.fullmatch(r'abs\((.*)\)', op)
    if m: op = m.group(1)
    m = re.fullmatch(r'\|(.*)\|', op)
    if m: op = m.group(1)
    m = re.fullmatch(r'([vs])(\d+)', op)
    if m: return {(m.group(1), int(m.group(2)))}
    m = re.fullmatch(r'([vs])\[(\d+):(\d+)\]', op)
    if m: return {(m.group(1), i) for i in range(int(m.group(2)), int(m.group(3))+1)}
    if op == 'vcc': return {('s','vcc')}
    if op == 'exec': return {('s','exec')}
    return set()

class Ins:
    def __init__(self, text):
        self.text = text
        t = text.split(';')[0].strip()
        self.label = t.endswith(':')
        self.directive = t.startswith('.')
        self.empty = (t == '')
        self.mn = ''
        self.w = set(); self.r = set(); self.srcc = set()
        if self.label or self.directive or self.empty: return
        parts = t.split(None, 1)
        self.mn = mn = parts[0]
        rest = parts[1] if len(parts) > 1 else ''
        ops = []; depth = 0; cur = ''
        for ch in rest:
            if ch == '[': depth += 1
            if ch == ']': depth -= 1
            if ch == ',' and depth == 0: ops.append(cur); cur = ''
            else: cur += ch
        ops.append(cur)
        ops = [o.strip() for o in ops]
        if ops:
            last = ops[-1].split()
            self.mods = ' '.join(last[1:]) if last else ''
            ops[-1] = last[0] if last else ''
        self.ops = ops
        self.valu = mn.startswith('v_')
        self.vmem = mn.startswith(('buffer_','global_'))
        self.ds = mn.startswith('ds_')
        self.salu = mn.startswith('s_')
        self.dpp = ('row_' in rest or 'quad_perm' in rest) and self.valu
        base = mn.replace('_dpp','').replace('_e32','').replace('_e64','')
        self.base = base
        self.trans = base in TRANS
        self.dot = base.startswith('v_dot')
        self.perml = base.startswith('v_permlane')
        self.rdl = base in ('v_readlane_b32','v_readfirstlane_b32')
        self.cmpx = base.startswith('v_cmpx')
        self.mfma = base.startswith('v_mfma')
        if self.valu:
            self.w |= regs_of(ops[0])
            for o in ops[1:]: self.r |= regs_of(o)
            if self.perml:
                self.w |= regs_of(ops[1]); self.r |= regs_of(ops[0])
            if base in ('v_dot2c_f32_bf16','v_fmac_f32','v_pk_fmac_f16'):
                self.srcc = regs_of(ops[0]); self.r |= self.srcc
            if base == 'v_dot2_f32_bf16':
                self.srcc = regs_of(ops[3]) - regs_of(ops[1]) - regs_of(ops[2])
            if self.cmpx: self.w |= {('s','exec')}
            if base in ('v_add_co_u32','v_addc_co_u32','v_sub_co_u32','v_subb_co_u32'):
                self.w |= regs_of(ops[1]); self.r -= regs_of(ops[1])
                if base in ('v_addc_co_u32','v_subb_co_u32'): self.r |= regs_of(ops[-1])
            if self.dpp and base == 'v_mov_b32': pass
        elif self.vmem:
            if 'store' in mn or ('atomic' in mn):
                for o in ops: self.r |= regs_of(o)
                if mn.startswith('buffer_'): self.data = regs_of(ops[0])
                else: self.data = regs_of(ops[1])
                self.wide = ('x3' in mn or 'x4' in mn)
            else:
                for o in ops[1:]: self.r |= regs_of(o)
                self.wide = False
        elif self.ds:
            if 'read' in mn or 'bpermute' in mn or 'swizzle' in mn:
                for o in ops[1:]: self.r |= regs_of(o)
            else:
                for o in ops: self.r |= regs_of(o)
    def states(self):
        if self.label or self.directive or self.empty: return 0
        if self.mn == 's_nop': return int(self.ops[0]) + 1
        return 1

def need(p, c):
    n = 0
    if p.mn == '' or c.mn == '': return 0
    if p.valu:
        vw = {x for x in p.w if x[0] == 'v'}
        sw = {x for x in p.w if x[0] == 's'}
        if c.valu:
            if c.dpp and (vw & c.r): n = max(n, 2)
            if c.perml and (vw & c.r): n = max(n, 2)
            if c.rdl and (vw & c.r): n = max(n, 1)
            if c.mfma and (vw & c.r): n = max(n, 2)
            if p.trans and (vw & c.r): n = max(n, 1)
            if p.dot:
                if c.base == p.base:
                    if vw & (c.r - c.srcc): n = max(n, 3)
                elif vw & (c.r | c.w): n = max(n, 3)
            if sw & c.r: n = max(n, 4 if c.rdl else 2)
            if base_reads_vcc(c) and ('s','vcc') in sw: n = max(n, 2)
            if ('s','exec') in sw:
                if c.dpp: n = max(n, 5)
                if c.rdl or c.perml: n = max(n, 4)
        if c.vmem or c.ds:
            if p.dot and (vw & c.r): n = max(n, 3)
            if c.vmem and (sw & c.r): n = max(n, 5)
    if p.vmem and getattr(p, 'wide', False) and ('store' in p.mn):
        if c.valu and (p.data & c.w): n = max(n, 2)
    return n

def base_reads_vcc(c):
    return c.base == 'v_cndmask_b32' and len(c.ops) == 4 and c.ops[3] == 'vcc'

def pad_hazards(lines):
    out = []
    for t in lines:
        c = Ins(t)
        if c.mn:
            dist = 0; req = 0
            for p in reversed(out):
                if dist >= 6: break
                if p.mn:
                    k = need(p, c) - dist
                    req = max(req, k)
                dist += p.states()
            if req > 0:
                out.append(Ins(f'\ts_nop {req-1}'))
        out.append(c)
    return [i.text for i in out]

class Asm:
    def __init__(self):
        self.l = []
        self.uid = 0
    def __call__(self, s):
        for x in s.split('\n'):
            x = x.strip()
            if not x: continue
            self.l.append(x if (x.endswith(':') or x.startswith('.') or x.startswith(';')) else '\t' + x)
    def label(self, base):
        self.uid += 1
        return f'L_{base}_{self.uid}'
    def text(self):
        return '\n'.join(pad_hazards(self.l)) + '\n'
```

```python
import sys, struct
from asmlib import Asm

NAME = 'adaLN_cond__mha_block_cached__glu_gated_bilinear__decode'

def f32(x): return '0x%08x' % struct.unpack('<I', struct.pack('<f', x))[0]
LOG2E = 1.4426950408889634
SCALE = 128 ** -0.5

MODA = 0x0000
CLR  = 0x2000
QBUF = 0x4000
SMALL= 0x8000
MODB = 0x8000
ML   = 0xC000
X2   = 0xD000
HH   = 0xE000
YBUF = 0x10000
STMP = 0x100000
WS_BYTES = 0x200000
L_Q = 0; L_O = 256; L_M = 2304; L_L = 2320
LDS_BYTES = 2560

class P:
    N = 5
    E = 24
    stamps = False
    wflag = 'nt'
    wowin = 2
    limit = 1 << 17

def srd(A, d, ptr, nbytes, add=None):
    if add is None:
        A(f's_mov_b32 s{d}, s{ptr}'); A(f's_mov_b32 s{d+1}, s{ptr+1}')
    else:
        A(f's_add_u32 s{d}, s{ptr}, {add}'); A(f's_addc_u32 s{d+1}, s{ptr+1}, 0')
    A(f's_mov_b32 s{d+2}, {nbytes}'); A(f's_mov_b32 s{d+3}, 0x20000')

def S(d): return f's[{d}:{d+3}]'
def V(a, n): return f'v[{a}:{a+n-1}]'

SK, SV = 44, 48
SWS, SDBG, SW, SW2 = 44, 48, 52, 56
PLO, PHI = 69, 70

def gen(p):
    A = Asm()
    nst = [0]
    def stamp(k):
        if p.stamps: A(f's_memrealtime s[{72+2*k}:{73+2*k}]')
    def flush_stamps(n):
        if not p.stamps: return
        A('s_mov_b64 exec, 1')
        A('s_waitcnt lgkmcnt(0)')
        srd(A, SW2, 30, WS_BYTES)
        A('s_lshl_b32 s60, s2, 10'); A('s_lshl_b32 s61, s3, 7'); A('s_add_u32 s60, s60, s61'); A(f's_add_u32 s60, s60, {STMP}')
        A('v_mov_b32 v1, s60')
        for k in range(n):
            A(f'v_mov_b32 v2, s{72+2*k}')
            A(f'buffer_store_dword v2, v1, {S(SW2)}, 0 offen offset:{4*k}')
        A('s_waitcnt vmcnt(0)')

    hdr = open('cdna_kernels/' + NAME + '.s.ref').read().split('\n')
    head = []
    for l in hdr:
        if l.startswith('; @launch'):
            head.append(f'; @launch grid=(256,1,1) block=(512,1,1) lds={LDS_BYTES}')
            break
        head.append(l)
    A('.amdgcn_target "amdgcn-amd-amdhsa--gfx950"')
    A('.text'); A(f'.globl {NAME}_kernel'); A('.p2align 8'); A(f'.type {NAME}_kernel,@function')
    A(f'{NAME}_kernel:')
    A('s_cmp_ge_u32 s2, 256'); A('s_cbranch_scc1 L_exit')
    A('s_load_dwordx16 s[4:19], s[0:1], 0')
    A('s_load_dwordx8 s[20:27], s[0:1], 64')
    A('s_load_dwordx4 s[28:31], s[0:1], 96')
    stamp(0)
    A('v_lshrrev_b32 v1, 6, v0'); A('v_and_b32 v0, 63, v0'); A('v_readfirstlane_b32 s3, v1')
    A('s_and_b32 s32, s2, 7'); A('s_lshr_b32 s33, s2, 3')
    A('s_lshr_b32 s34, s33, 3'); A('s_lshl_b32 s60, s32, 2'); A('s_add_u32 s34, s34, s60')
    A('s_and_b32 s36, s33, 7'); A('s_lshr_b32 s35, s36, 2')
    A('s_and_b32 s60, s36, 3'); A('s_lshl_b32 s37, s34, 2'); A('s_add_u32 s37, s37, s60')
    A('s_cmp_ge_u32 s3, 4'); A('s_cbranch_scc1 L_helper')

    vOff, vS, vP, vLo, vHi, vM, vNM, vL, vT, vU, vA = 1, 2, 3, 4, 5, 6, 7, 8, 9, 10, 11
    vQ, vAcc, vRing, vExt = 12, 16, 24, 56
    N, E = p.N, p.E
    assert vExt + 8*E <= 256 and (512 - E) % 4 == 0
    A('s_lshl_b32 s60, s35, 7'); A('s_add_u32 s60, s60, s37'); A('s_lshl_b32 s60, s60, 21')
    A('s_lshl_b32 s61, s3, 10'); A('v_lshlrev_b32 v1, 4, v0'); A('v_add_u32 v1, s61, v1')
    A('s_waitcnt lgkmcnt(0)')
    srd(A, SK, 6, 1 << 21, 's60'); srd(A, SV, 8, 1 << 21, 's60')
    def issue(n, reg):
        A(f'buffer_load_dwordx4 {V(reg,4)}, v{vOff}, {S(SV if n & 1 else SK)}, 0 offen nt')
        if n & 1: A(f'v_add_u32 v{vOff}, 0x1000, v{vOff}')
    for n in range(2*E + N):
        if n >= N: A(f's_waitcnt vmcnt({N-1})')
        issue(n, vExt + 4*n if n < 2*E else vRing + 4*(n - 2*E))
        if n == N - 1:
            A(f'v_mov_b32 v{vM}, {f32(-1e38)}'); A(f'v_mov_b32 v{vNM}, {f32(1e38*LOG2E)}'); A(f'v_mov_b32 v{vL}, 0')
            for e in range(8): A(f'v_mov_b32 v{vAcc+e}, 0')
            A(f'v_and_b32 v{vT}, 15, v0'); A(f'v_lshlrev_b32 v{vT}, 4, v{vT}')
    stamp(1)
    A('s_barrier')
    A(f'ds_read_b128 {V(vQ,4)}, v{vT} offset:{L_Q}')
    stamp(2)
    A('s_waitcnt lgkmcnt(0)')
    stubs = []
    def kwork(r):
        A(f'v_dot2_f32_bf16 v{vS}, v{r}, v{vQ}, 0')
        for i in (1, 2, 3): A(f'v_dot2_f32_bf16 v{vS}, v{r+i}, v{vQ+i}, v{vS}')
        for k in (8, 4, 2, 1): A(f'v_add_f32_dpp v{vS}, v{vS}, v{vS} row_ror:{k} row_mask:0xf bank_mask:0xf')
        A(f'v_cvt_pk_bf16_f32 v{vS}, 0, v{vS}')
        A(f'v_mul_f32 v{vS}, {f32(SCALE)}, v{vS}')
        A(f'v_cvt_pk_bf16_f32 v{vS}, 0, v{vS}')
        A(f'v_cmp_gt_f32 vcc, v{vS}, v{vM}')
        st = A.label('rs'); stubs.append(st)
        A(f's_cbranch_vccnz {st}'); A(f'{st}_b:')
        A(f'v_fmamk_f32 v{vP}, v{vS}, {f32(LOG2E)}, v{vNM}')
        A(f'v_exp_f32 v{vP}, v{vP}')
        A(f'v_cvt_pk_bf16_f32 v{vLo}, v{vP}, 0')
        A(f'v_cvt_pk_bf16_f32 v{vHi}, 0, v{vP}')
        A(f'v_add_f32 v{vL}, v{vL}, v{vP}')
    def vwork(r):
        for i in range(4):
            A(f'v_dot2c_f32_bf16 v{vAcc+2*i}, v{r+i}, v{vLo}')
            A(f'v_dot2c_f32_bf16 v{vAcc+2*i+1}, v{r+i}, v{vHi}')
    def step(j):
        A(f's_waitcnt vmcnt({N-1})')
        issue(j + N, vRing + 4*((j + N) % 8))
        (vwork if j & 1 else kwork)(vRing + 4*(j % 8))
    for j in range(2*E):
        step(j)
        if j & 1:
            kwork(vExt + 4*(j-1)); vwork(vExt + 4*j)
    assert (2*E) % 8 == 0
    stamp(3)
    A(f's_movk_i32 s60, {(512 - 2*E)//4}')
    A('.p2align 4')
    A('L_stream:')
    for j in range(8): step(j)
    A('s_sub_u32 s60, s60, 1'); A('s_cmp_lg_u32 s60, 0'); A('s_cbranch_scc1 L_stream')
    stamp(4)
    A(f'v_mov_b32 v{vT}, v{vL}')
    A(f'v_and_b32 v{vU}, 15, v0'); A(f'v_lshlrev_b32 v{vU}, 5, v{vU}')
    A(f'v_permlane32_swap_b32 v{vT}, v{vL}')
    A(f'v_lshrrev_b32 v{vA}, 4, v0')
    for e in range(4): A(f'v_permlane32_swap_b32 v{vAcc+e}, v{vAcc+e+4}')
    A(f'v_add_f32 v{vL}, v{vL}, v{vT}')
    for e in range(4): A(f'v_add_f32 v{vAcc+e}, v{vAcc+e}, v{vAcc+e+4}')
    A(f'v_mov_b32 v{vT}, v{vL}')
    A(f'v_lshl_add_u32 v{vU}, v{vA}, 3, v{vU}')
    for e in range(2): A(f'v_permlane16_swap_b32 v{vAcc+e}, v{vAcc+e+2}')
    A(f'v_permlane16_swap_b32 v{vT}, v{vL}')
    A(f's_lshl_b32 s61, s3, 9'); A(f'v_add_u32 v{vU}, s61, v{vU}')
    for e in range(2): A(f'v_add_f32 v{vAcc+e}, v{vAcc+e}, v{vAcc+e+2}')
    A(f'v_add_f32 v{vL}, v{vL}, v{vT}')
    A(f'ds_write_b64 v{vU}, {V(vAcc,2)} offset:{L_O}')
    A('s_lshl_b32 s61, s3, 2'); A(f'v_mov_b32 v{vA}, s61')
    A('s_mov_b64 exec, 1')
    A(f'ds_write_b32 v{vA}, v{vNM} offset:{L_M}'); A(f'ds_write_b32 v{vA}, v{vL} offset:{L_L}')
    A('s_waitcnt lgkmcnt(0)')
    A('s_barrier')
    stamp(5)
    flush_stamps(6)
    A('L_exit:')
    A('s_endpgm')
    for st in stubs:
        A(f'{st}:'); A('s_call_b64 s[40:41], L_rescale'); A(f's_branch {st}_b')
    A('L_rescale:')
    A(f'v_mov_b32 v{vT}, v{vS}'); A(f'v_mov_b32 v{vU}, v{vS}')
    A(f'v_permlane32_swap_b32 v{vT}, v{vU}')
    A(f'v_max_f32 v{vT}, v{vT}, v{vU}'); A(f'v_mov_b32 v{vU}, v{vT}')
    A(f'v_permlane16_swap_b32 v{vT}, v{vU}')
    A(f'v_max3_f32 v{vM}, v{vT}, v{vU}, v{vM}')
    A(f'v_mul_f32 v{vT}, {f32(-LOG2E)}, v{vM}')
    A(f'v_sub_f32 v{vA}, v{vT}, v{vNM}')
    A(f'v_exp_f32 v{vA}, v{vA}')
    A(f'v_mov_b32 v{vNM}, v{vT}')
    A(f'v_mul_f32 v{vL}, v{vL}, v{vA}')
    for e in range(8): A(f'v_mul_f32 v{vAcc+e}, v{vAcc+e}, v{vA}')
    A('s_setpc_b64 s[40:41]')

    vOwn, vA0, vA1, vW, vSp, vAc, vX = 16, 24, 32, 40, 104, 106, 128
    wf = p.wflag
    def dpp(op, d, a, b, ctl): A(f'{op}_dpp v{d}, v{a}, v{b} {ctl} row_mask:0xf bank_mask:0xf')
    def movdpp(d, a, ctl): A(f'v_mov_b32_dpp v{d}, v{a} {ctl} row_mask:0xf bank_mask:0xf')
    def rbf(d, s): A(f'v_cvt_pk_bf16_f32 v{d}, 0, v{s}')
    def bail(lbl, back):
        A('s_add_u32 s68, s68, 1'); A(f's_cmp_lt_u32 s68, {p.limit}'); A(f's_cbranch_scc1 {back}')
    def maxall(d, regs):
        regs = list(regs)
        if len(regs) == 1: A(f'v_mov_b32 v{d}, v{regs[0]}'); return
        if len(regs) == 2: A(f'v_max_u32 v{d}, v{regs[0]}, v{regs[1]}'); return
        A(f'v_max3_u32 v{d}, v{regs[0]}, v{regs[1]}, v{regs[2]}'); regs = regs[3:]
        while len(regs) >= 2:
            A(f'v_max3_u32 v{d}, v{d}, v{regs[0]}, v{regs[1]}'); regs = regs[2:]
        if regs: A(f'v_max_u32 v{d}, v{d}, v{regs[0]}')
    def poll(loads, regs, tmp, mask='-1', sleep=0):
        L = A.label('poll'); D = L + '_d'
        A(f's_mov_b64 exec, {mask}') if mask != '-1' else None
        A('s_mov_b32 s68, 0')
        A(f'{L}:')
        for l in loads: A(l)
        A('s_waitcnt vmcnt(0)')
        maxall(tmp, regs)
        A(f'v_cmpx_eq_u32 vcc, -1, v{tmp}')
        A(f's_cbranch_execz {D}')
        if sleep: A(f's_sleep {sleep}')
        bail(D, L)
        A(f'{D}:')
        A('s_mov_b64 exec, -1')
    def mv_loads(srdreg, stride, voff, ex=None):
        for i in range(16):
            A(f's_mov_b32 s60, {i*stride}')
            A(f'buffer_load_dwordx4 {V(vW+4*i,4)}, v{voff}, {S(srdreg)}, s60 offen {wf}')
    def pair_perm(base, npairs, spare):
        m = {}; free = spare
        for t in range(npairs):
            for j in range(4):
                a, b = base + 8*t + j, base + 8*t + 4 + j
                A(f'v_perm_b32 v{free}, v{b}, v{a}, s{PLO}'); m[(t, 2*j)] = free
                A(f'v_perm_b32 v{b}, v{b}, v{a}, s{PHI}'); m[(t, 2*j+1)] = b
                free = a
        return m
    def mv_zero():
        for e in range(16): A(f'v_mov_b32 v{vAc+e}, 0')
    def mv_dot(m):
        for t in range(8):
            movdpp(vA0+t, vOwn+t, 'quad_perm:[0,0,2,2]'); movdpp(vA1+t, vOwn+t, 'quad_perm:[1,1,3,3]')
        for t in range(8):
            for e in range(8):
                A(f'v_dot2c_f32_bf16 v{vAc+e}, v{vA0+t}, v{m[(t,e)]}')
                A(f'v_dot2c_f32_bf16 v{vAc+8+e}, v{vA1+t}, v{m[(t,e)]}')
        for e in range(8): A(f'v_permlane32_swap_b32 v{vAc+e}, v{vAc+8+e}')
        for e in range(8): A(f'v_add_f32 v{vAc+e}, v{vAc+e}, v{vAc+8+e}')
        for e in range(4): A(f'v_permlane16_swap_b32 v{vAc+e}, v{vAc+4+e}')
        for e in range(4): A(f'v_add_f32 v{vAc+e}, v{vAc+e}, v{vAc+4+e}')
        for k in (8, 4, 2):
            for e in range(4): dpp('v_add_f32', vAc+e, vAc+e, vAc+e, f'row_ror:{k}')
    def allsum_parity(r, t):
        for k in (2, 4, 8): dpp('v_add_f32', r, r, r, f'row_ror:{k}')
        A(f'v_mov_b32 v{t}, v{r}'); A(f'v_permlane16_swap_b32 v{t}, v{r}'); A(f'v_add_f32 v{r}, v{r}, v{t}')
        A(f'v_mov_b32 v{t}, v{r}'); A(f'v_permlane32_swap_b32 v{t}, v{r}'); A(f'v_add_f32 v{r}, v{r}, v{t}')
    def layernorm(x, w):
        A(f'v_pk_add_f32 {V(w,2)}, {V(x,2)}, {V(x+2,2)}')
        for i in range(4, 16, 2): A(f'v_pk_add_f32 {V(w,2)}, {V(w,2)}, {V(x+i,2)}')
        A(f'v_add_f32 v2, v{w}, v{w+1}')
        allsum_parity(2, 3)
        A(f'v_mul_f32 v2, {f32(-1.0/512)}, v2')
        A('v_mov_b32 v3, v2')
        for i in range(0, 16, 2): A(f'v_pk_add_f32 {V(w+i,2)}, {V(x+i,2)}, v[2:3]')
        A(f'v_pk_mul_f32 v[4:5], {V(w,2)}, {V(w,2)}')
        for i in range(2, 16, 2): A(f'v_pk_fma_f32 v[4:5], {V(w+i,2)}, {V(w+i,2)}, v[4:5]')
        A('v_add_f32 v4, v4, v5')
        allsum_parity(4, 5)
        rbf(2, 2); A('v_mov_b32 v3, v2')
        A(f'v_mul_f32 v4, {f32(1.0/512)}, v4'); rbf(4, 4)
        A(f'v_add_f32 v4, {f32(1e-5)}, v4'); rbf(4, 4)
        A('v_sqrt_f32 v4, v4'); rbf(4, 4); A('v_rcp_f32 v4, v4')
        for i in range(0, 16, 2): A(f'v_pk_add_f32 {V(x+i,2)}, {V(x+i,2)}, v[2:3]')
        A('v_mov_b32 v5, v4')
        for i in range(16): rbf(x+i, x+i)
        for i in range(0, 16, 2): A(f'v_pk_mul_f32 {V(x+i,2)}, {V(x+i,2)}, v[4:5]')
        for i in range(16): rbf(x+i, x+i)
    def modulate(x, c1, sh):
        for i in range(0, 16, 2): A(f'v_pk_mul_f32 {V(x+i,2)}, {V(x+i,2)}, {V(c1+i,2)}')
        for i in range(16): rbf(x+i, x+i)
        for i in range(0, 16, 2): A(f'v_pk_add_f32 {V(x+i,2)}, {V(x+i,2)}, {V(sh+i,2)}')
        for i in range(8): A(f'v_cvt_pk_bf16_f32 v{vOwn+i}, v{x+2*i}, v{x+2*i+1}')
    def unpack16(dst, src):
        for i in range(8):
            A(f'v_lshlrev_b32 v{dst+2*i}, 16, v{src+i}'); A(f'v_and_b32 v{dst+2*i+1}, 0xffff0000, v{src+i}')
    def sum4_all(r):
        for e in range(2): A(f'v_permlane32_swap_b32 v{r+e}, v{r+2+e}')
        for e in range(2): A(f'v_add_f32 v{r+e}, v{r+e}, v{r+2+e}')
        A(f'v_permlane16_swap_b32 v{r}, v{r+1}'); A(f'v_add_f32 v{r}, v{r}, v{r+1}')
        for k in (8, 4, 2, 1): dpp('v_add_f32', r, r, r, f'row_ror:{k}')
    OUTM = '0x0003000300030003'
    def setexec(mask):
        lo, hi = mask & 0xffffffff, mask >> 32
        A(f's_mov_b32 exec_lo, 0x{lo:x}'); A(f's_mov_b32 exec_hi, 0x{hi:x}')

    A('L_helper:')
    A(f's_mov_b32 s{PLO}, 0x05040100'); A(f's_mov_b32 s{PHI}, 0x07060302')
    A('v_lshrrev_b32 v10, 1, v0'); A('v_and_b32 v11, 1, v0')
    A('v_bfe_u32 v12, v0, 4, 1'); A('v_lshlrev_b32 v12, 2, v12'); A('v_lshl_add_u32 v12, v11, 3, v12')
    A('v_lshrrev_b32 v13, 5, v0')
    A('s_waitcnt lgkmcnt(0)')
    srd(A, SWS, 30, WS_BYTES); srd(A, SDBG, 28, 256)
    A('s_cmp_eq_u32 s3, 5'); A('s_cbranch_scc1 L_taskB')
    A('s_cmp_lg_u32 s3, 4'); A('s_cbranch_scc1 L_bar2')
    A('s_cmp_ge_u32 s33, 24'); A('s_cbranch_scc1 L_bar2')
    A('s_lshr_b32 s62, s33, 2'); A('s_lshl_b32 s62, s62, 3'); A('s_add_u32 s62, s62, s32')
    A('s_lshl_b32 s62, s62, 2'); A('s_and_b32 s61, s33, 3'); A('s_add_u32 s62, s62, s61')
    srd(A, SW2, 22, 2048); srd(A, SW, 24, 512*3072*2)
    A('v_lshlrev_b32 v1, 5, v10'); A('v_lshl_add_u32 v1, v11, 10, v1')
    A(f'buffer_load_dwordx4 {V(vOwn,4)}, v1, {S(SW2)}, 0 offen')
    A(f'buffer_load_dwordx4 {V(vOwn+4,4)}, v1, {S(SW2)}, 0 offen offset:16')
    A(f's_mov_b32 s60, {16*6144}'); A('v_mul_lo_u32 v1, s60, v10'); A('v_lshl_add_u32 v1, v11, 4, v1')
    A('s_lshl_b32 s61, s62, 5'); A('v_add_u32 v1, s61, v1')
    mv_loads(SW, 6144, 1)
    A('s_cmp_ge_u32 s62, 64'); A('s_cbranch_scc1 L_A_noclr')
    A('v_mov_b32 v2, -1'); A('s_lshl_b32 s61, s62, 8'); A('v_lshl_add_u32 v3, v0, 2, s61')
    A(f's_mov_b32 s60, {QBUF}')
    A(f'buffer_store_dword v2, v3, {S(SWS)}, s60 offen sc1')
    A('s_lshl_b32 s61, s62, 4'); A('v_lshl_add_u32 v3, v0, 2, s61'); A(f's_mov_b32 s60, {CLR}')
    A('s_mov_b64 exec, 15')
    A(f'buffer_store_dword v2, v3, {S(SWS)}, s60 offen sc1')
    A('s_mov_b64 exec, -1')
    A('s_waitcnt vmcnt(18)'); A('s_branch L_A_silu')
    A('L_A_noclr:')
    A('s_waitcnt vmcnt(16)')
    A('L_A_silu:')
    unpack16(vX, vOwn)
    for i in range(16): A(f'v_mul_f32 v{vX+16+i}, {f32(-LOG2E)}, v{vX+i}')
    for i in range(16): A(f'v_exp_f32 v{vX+16+i}, v{vX+16+i}')
    for i in range(16): A(f'v_add_f32 v{vX+16+i}, 1.0, v{vX+16+i}')
    for i in range(16): A(f'v_rcp_f32 v{vX+16+i}, v{vX+16+i}')
    for i in range(0, 16, 2): A(f'v_pk_mul_f32 {V(vX+i,2)}, {V(vX+i,2)}, {V(vX+16+i,2)}')
    for i in range(8): A(f'v_cvt_pk_bf16_f32 v{vOwn+i}, v{vX+2*i}, v{vX+2*i+1}')
    mv_zero()
    A('s_lshr_b32 s61, s62, 5'); A('s_cmp_eq_u32 s61, 1'); A('s_cselect_b32 s63, 1.0, 0')
    A('s_cmp_eq_u32 s61, 4'); A('s_cselect_b32 s63, 1.0, s63')
    stamp(1)
    A('s_waitcnt vmcnt(0)')
    stamp(2)
    m = pair_perm(vW, 8, vSp)
    mv_dot(m)
    for e in range(4): rbf(vAc+e, vAc+e)
    for e in range(4): A(f'v_add_f32 v{vAc+e}, s63, v{vAc+e}')
    for e in range(4): rbf(vAc+e, vAc+e)
    A('s_cmp_ge_u32 s62, 64'); A('s_cbranch_scc1 L_bar2')
    A('s_lshl_b32 s61, s62, 6'); A('v_lshl_add_u32 v1, v12, 2, s61'); A('v_lshl_add_u32 v1, v13, 12, v1')
    setexec(0x0003000300030003)
    A(f'buffer_store_dwordx4 {V(vAc,4)}, v1, {S(SWS)}, 0 offen sc1')
    A('s_mov_b64 exec, 1')
    A('v_mov_b32 v2, 1'); A('s_lshl_b32 s61, s62, 2'); A('v_mov_b32 v3, s61')
    stamp(3)
    A('s_waitcnt vmcnt(0)')
    A(f'buffer_store_dword v2, v3, {S(SDBG)}, 0 offen sc1')
    stamp(4)
    A('s_mov_b64 exec, -1')
    A('s_branch L_bar2')
    A('L_taskB:')
    srd(A, SW2, 4, 2048); srd(A, SW, 10, 512*4096*2)
    A('v_lshlrev_b32 v1, 5, v10'); A('v_lshl_add_u32 v1, v11, 10, v1')
    A(f'buffer_load_dwordx4 {V(vOwn,4)}, v1, {S(SW2)}, 0 offen')
    A(f'buffer_load_dwordx4 {V(vOwn+4,4)}, v1, {S(SW2)}, 0 offen offset:16')
    A('v_lshlrev_b32 v1, 17, v10'); A('v_lshl_add_u32 v1, v11, 4, v1')
    A('s_lshl_b32 s61, s34, 8'); A('s_lshl_b32 s60, s36, 5'); A('s_add_u32 s62, s61, s60'); A('v_add_u32 v1, s62, v1')
    mv_loads(SW, 8192, 1)
    for i in range(4): A(f'v_mov_b32 v{4+i}, -1')
    A('s_lshl_b32 s61, s2, 11'); A('v_lshl_add_u32 v3, v0, 4, s61'); A(f's_mov_b32 s60, {YBUF}')
    A(f'buffer_store_dwordx4 v[4:7], v3, {S(SWS)}, s60 offen sc1')
    A(f'buffer_store_dwordx4 v[4:7], v3, {S(SWS)}, s60 offen offset:1024 sc1')
    A('s_lshl_b32 s61, s2, 7'); A('v_lshl_add_u32 v3, v0, 4, s61'); A(f's_mov_b32 s60, {SMALL}')
    A('s_mov_b64 exec, 0xff')
    A(f'buffer_store_dwordx4 v[4:7], v3, {S(SWS)}, s60 offen sc1')
    A('s_mov_b64 exec, -1')
    A('s_waitcnt vmcnt(19)')
    unpack16(vX, vOwn)
    layernorm(vX, vX+16)
    mv_zero()
    stamp(1)
    A('s_waitcnt vmcnt(0)')
    stamp(2)
    m = pair_perm(vW, 8, vSp)
    A('v_lshlrev_b32 v1, 2, v0')
    A('v_lshlrev_b32 v6, 6, v10'); A('v_lshl_add_u32 v6, v11, 12, v6')
    A('s_mov_b32 s68, 0')
    A('L_B_flags:')
    A(f'buffer_load_dword v2, v1, {S(SDBG)}, 0 offen sc1')
    A('s_waitcnt vmcnt(0)')
    A('v_cmp_eq_u32 vcc, 0, v2'); A('s_cbranch_vccz L_B_go')
    bail(None, 'L_B_flags')
    A('L_B_go:')
    stamp(3)
    for i in range(4):
        A(f'buffer_load_dwordx4 {V(vX+16+4*i,4)}, v6, {S(SWS)}, 0 offen offset:{2048+16*i} sc1')
        A(f'buffer_load_dwordx4 {V(vX+32+4*i,4)}, v6, {S(SWS)}, 0 offen offset:{16*i} sc1')
    A('s_mov_b64 exec, 1')
    A('v_mov_b32 v2, 0'); A('s_lshl_b32 s61, s2, 2'); A('v_mov_b32 v3, s61'); A(f's_mov_b32 s60, {CLR}')
    A(f'buffer_store_dword v2, v3, {S(SWS)}, s60 offen sc1')
    A('s_mov_b64 exec, -1')
    A('s_waitcnt vmcnt(1)')
    stamp(4)
    modulate(vX, vX+16, vX+32)
    mv_dot(m)
    A(f'v_cvt_pk_bf16_f32 v2, v{vAc}, v{vAc+1}'); A(f'v_cvt_pk_bf16_f32 v3, v{vAc+2}, v{vAc+3}')
    A('v_lshl_add_u32 v1, v12, 1, s62'); A('v_lshl_add_u32 v1, v13, 13, v1')
    A('v_min_u32 v2, -2, v2'); A('v_min_u32 v3, -2, v3')
    A(f's_mov_b32 s60, {QBUF}')
    setexec(0x0003000300030003)
    A(f'buffer_store_dwordx2 v[2:3], v1, {S(SWS)}, s60 offen sc1')
    stamp(5)
    A('s_mov_b64 exec, -1')
    A('s_lshl_b32 s61, s35, 13'); A('s_lshl_b32 s63, s34, 8'); A('s_add_u32 s61, s61, s63')
    A('v_lshl_add_u32 v1, v0, 4, s61')
    poll([f'buffer_load_dwordx4 v[4:7], v1, {S(SWS)}, s60 offen sc1'], range(4, 8), 8, mask='0xffff')
    A('s_mov_b64 exec, 0xffff')
    A('v_lshlrev_b32 v1, 4, v0')
    A(f'ds_write_b128 v1, v[4:7] offset:{L_Q}')
    A('s_waitcnt lgkmcnt(0)')
    A('s_mov_b64 exec, -1')
    stamp(6)
    A('L_bar2:')
    A('s_barrier')
    A('s_cmp_eq_u32 s3, 5'); A('s_cbranch_scc1 L_bgF')
    A('s_cmp_eq_u32 s3, 6'); A('s_cbranch_scc1 L_bgG')
    A('s_cmp_lg_u32 s3, 4'); A('s_cbranch_scc1 L_wo')
    A('v_lshlrev_b32 v1, 4, v0'); A(f's_mov_b32 s60, {CLR}')
    poll([f'buffer_load_dwordx4 v[4:7], v1, {S(SWS)}, s60 offen sc1'], range(4, 8), 8, sleep=8)
    A('s_cmp_lt_u32 s33, 8'); A('s_cbranch_scc1 L_wo')
    A('s_cmp_ge_u32 s33, 24'); A('s_cbranch_scc1 L_wo')
    A('s_lshl_b32 s61, s62, 6'); A('v_lshl_add_u32 v1, v12, 2, s61'); A('v_lshl_add_u32 v1, v13, 13, v1')
    A(f's_mov_b32 s60, {MODB - 4096}')
    setexec(0x0003000300030003)
    A(f'buffer_store_dwordx4 {V(vAc,4)}, v1, {S(SWS)}, s60 offen sc1')
    A('s_mov_b64 exec, -1')
    A('s_branch L_wo')
    A('L_bgF:')
    A('s_lshr_b32 s62, s33, 3'); A('s_lshl_b32 s62, s62, 3'); A('s_add_u32 s62, s62, s32')
    A('s_cmp_ge_u32 s62, 28'); A('s_cbranch_scc1 L_wo')
    A('s_lshl_b32 s62, s62, 3'); A('s_add_u32 s62, s62, s36')
    srd(A, SW, 16, 512*1792*2); srd(A, SW2, 18, 512*1792*2)
    A(f's_mov_b32 s60, {16*3584}'); A('v_mul_lo_u32 v1, s60, v10'); A('s_lshl_b32 s61, s62, 4'); A('v_add_u32 v1, s61, v1')
    for i in range(16):
        A(f's_mov_b32 s60, {i*3584}')
        setexec(0x5555555555555555)
        A(f'buffer_load_dwordx4 {V(vW+4*i,4)}, v1, {S(SW)}, s60 offen {wf}')
        setexec(0xaaaaaaaaaaaaaaaa)
        A(f'buffer_load_dwordx4 {V(vW+4*i,4)}, v1, {S(SW2)}, s60 offen {wf}')
        A('s_waitcnt vmcnt(2)')
    A('s_mov_b64 exec, -1')
    A('s_waitcnt vmcnt(0)')
    mF = pair_perm(vW, 8, vSp)
    A('s_branch L_wo')
    A('L_bgG:')
    srd(A, SW, 20, 1792*512*2)
    A('s_lshl_b32 s62, s32, 5'); A('s_add_u32 s62, s62, s33')
    A('s_lshl_b32 s61, s62, 2'); A('v_lshlrev_b32 v1, 15, v0'); A('v_add_u32 v1, s61, v1')
    for i in range(32):
        if i % 4 == 0: A(f's_mov_b32 s60, {i*1024}')
        A(f'buffer_load_dword v{vW+i}, v1, {S(SW)}, s60 offen offset:{(i%4)*1024} {wf}')
        A('s_waitcnt vmcnt(2)')
    A('s_waitcnt vmcnt(0)')
    mG = {}; free = vW + 32
    for t in range(16):
        a, b = vW + 2*t, vW + 2*t + 1
        A(f'v_perm_b32 v{free}, v{b}, v{a}, s{PLO}'); mG[(t, 0)] = free
        A(f'v_perm_b32 v{b}, v{b}, v{a}, s{PHI}'); mG[(t, 1)] = b
        free = a
    A('L_wo:')
    srd(A, SW, 12, 4096*512*2)
    A('v_lshrrev_b32 v1, 4, v0'); A('v_lshlrev_b32 v1, 15, v1'); A('v_and_b32 v2, 15, v0'); A('v_lshl_add_u32 v1, v2, 4, v1')
    A('s_lshl_b32 s61, s34, 17'); A('s_sub_u32 s63, s3, 4'); A('s_lshl_b32 s60, s63, 8'); A('s_add_u32 s61, s61, s60')
    A('v_add_u32 v1, s61, v1')
    for i in range(32):
        if i % 4 == 0: A(f's_mov_b32 s60, {i*1024}')
        A(f'buffer_load_dwordx4 {V(vX+4*i,4)}, v1, {S(SW)}, s60 offen offset:{(i%4)*1024} {wf}')
        A(f's_waitcnt vmcnt({p.wowin-1})')
    A('s_waitcnt vmcnt(0)')
    mO = pair_perm(vX, 16, 127)
    vY = vAc
    for e in range(8): A(f'v_mov_b32 v{vY+e}, 0')
    A('v_lshl_add_u32 v1, v2, 1, v13'); A('s_lshl_b32 s60, s35, 7'); A('s_lshl_b32 s61, s63, 5'); A('s_add_u32 s60, s60, s61')
    A('v_add_u32 v1, s60, v1'); A('v_lshlrev_b32 v1, 11, v1'); A('s_lshl_b32 s61, s37, 4'); A('v_add_u32 v1, s61, v1')
    A('v_lshlrev_b32 v14, 3, v0'); A('v_mov_b32 v15, 0')
    stamp(7)
    A('s_barrier')
    stamp(8)
    A(f'ds_read_b128 v[2:5], v15 offset:{L_M}'); A(f'ds_read_b128 v[6:9], v15 offset:{L_L}')
    for w in range(4): A(f'ds_read_b64 {V(16+2*w,2)}, v14 offset:{L_O+512*w}')
    A('s_waitcnt lgkmcnt(4)')
    A('v_min3_f32 v14, v2, v3, v4'); A('v_min_f32 v14, v14, v5')
    for w in range(4): A(f'v_sub_f32 v{2+w}, v14, v{2+w}')
    for w in range(4): A(f'v_exp_f32 v{2+w}, v{2+w}')
    A('s_waitcnt lgkmcnt(0)')
    A('v_mul_f32 v16, v2, v16'); A('v_mul_f32 v17, v2, v17'); A('v_mul_f32 v15, v2, v6')
    for w in range(1, 4):
        A(f'v_fmac_f32 v16, v{2+w}, v{16+2*w}'); A(f'v_fmac_f32 v17, v{2+w}, v{17+2*w}'); A(f'v_fmac_f32 v15, v{2+w}, v{6+w}')
    A('v_cvt_pk_bf16_f32 v16, v16, v17')
    vB = 24
    for t in range(16): movdpp(vB+t, 16, f'row_newbcast:{t}')
    for t in range(16):
        for e in range(8): A(f'v_dot2c_f32_bf16 v{vY+e}, v{vB+t}, v{mO[(t,e)]}')
    for e in range(4): A(f'v_permlane32_swap_b32 v{vY+e}, v{vY+4+e}')
    for e in range(4): A(f'v_add_f32 v{vY+e}, v{vY+e}, v{vY+4+e}')
    for e in range(4): A(f'v_mov_b32 v{vY+4+e}, v{vY+e}')
    for e in range(4): A(f'v_permlane16_swap_b32 v{vY+e}, v{vY+4+e}')
    for e in range(4): A(f'v_add_f32 v{vY+e}, v{vY+e}, v{vY+4+e}')
    A(f's_mov_b32 s60, {YBUF}')
    setexec(0x0000ffff0000ffff)
    A(f'buffer_store_dwordx4 {V(vY,4)}, v1, {S(SWS)}, s60 offen sc1')
    A('s_cmp_eq_u32 s3, 5'); A('s_cbranch_scc1 L_taskF')
    A('s_cmp_eq_u32 s3, 6'); A('s_cbranch_scc1 L_taskG')
    A('s_cmp_eq_u32 s3, 4'); A('s_cbranch_scc1 L_taskR')
    A('s_mov_b64 exec, 1')
    A('s_lshl_b32 s60, s35, 7'); A('s_add_u32 s60, s60, s37'); A('s_lshl_b32 s60, s60, 3'); A('v_mov_b32 v1, s60')
    A(f's_mov_b32 s60, {ML}')
    A(f'buffer_store_dwordx2 v[14:15], v1, {S(SWS)}, s60 offen sc1')
    stamp(9)
    flush_stamps(10)
    A('s_endpgm')
    A('L_taskR:')
    stamp(9)
    A('s_mov_b64 exec, -1')
    srd(A, SW2, 4, 2048)
    A('v_lshrrev_b32 v2, 4, v0'); A('s_lshl_b32 s61, s2, 2'); A('v_add_u32 v2, s61, v2')
    A('v_lshlrev_b32 v3, 1, v2')
    A(f'buffer_load_ushort v20, v3, {S(SW2)}, 0 offen')
    A('s_lshr_b32 s62, s2, 7'); A('s_mul_i32 s61, s62, 1536'); A('v_add_lshl_u32 v3, v2, s61, 2')
    A('v_lshlrev_b32 v22, 2, v2')
    A('s_lshl_b32 s61, s2, 11'); A('v_lshl_add_u32 v4, v0, 4, s61')
    A('s_lshl_b32 s61, s62, 10'); A('v_lshl_add_u32 v5, v0, 3, s61')
    A(f's_mov_b32 s60, {YBUF}'); A(f's_mov_b32 s61, {ML}'); A(f's_mov_b32 s63, {MODB}')
    poll([f'buffer_load_dwordx4 v[24:27], v4, {S(SWS)}, s60 offen sc1',
          f'buffer_load_dwordx4 v[28:31], v4, {S(SWS)}, s60 offen offset:1024 sc1',
          f'buffer_load_dwordx2 v[32:33], v5, {S(SWS)}, s61 offen sc1',
          f'buffer_load_dwordx2 v[34:35], v5, {S(SWS)}, s61 offen offset:512 sc1',
          f'buffer_load_dword v21, v3, {S(SWS)}, s63 offen sc1'], list(range(24, 36)) + [21], 8)
    stamp(10)
    for a in (32, 34): dpp('v_min_f32', a+4, a, a, 'quad_perm:[1,0,3,2]')
    for a in (32, 34): dpp('v_min_f32', a+4, a+4, a+4, 'quad_perm:[2,3,0,1]')
    for a in (32, 34): A(f'v_sub_f32 v{a}, v{a+4}, v{a}')
    for a in (32, 34): A(f'v_exp_f32 v{a}, v{a}')
    A('v_lshlrev_b32 v20, 16, v20')
    for a in (32, 34): A(f'v_mul_f32 v{a+1}, v{a}, v{a+1}')
    for a in (32, 34): dpp('v_add_f32', a+1, a+1, a+1, 'quad_perm:[1,0,3,2]')
    for a in (32, 34): dpp('v_add_f32', a+1, a+1, a+1, 'quad_perm:[2,3,0,1]')
    for a in (32, 34): A(f'v_rcp_f32 v{a+1}, v{a+1}')
    for a in (32, 34): A(f'v_mul_f32 v{a}, v{a}, v{a+1}')
    for e in range(4): A(f'v_mul_f32 v{24+e}, v32, v{24+e}')
    for e in range(4): A(f'v_fmac_f32 v{24+e}, v34, v{28+e}')
    sum4_all(24)
    rbf(24, 24); A('v_mul_f32 v24, v21, v24'); rbf(24, 24); A('v_add_f32 v24, v20, v24'); rbf(24, 24)
    A(f's_mov_b32 s60, {X2}')
    setexec(0x0001000100010001)
    A(f'buffer_store_dword v24, v22, {S(SWS)}, s60 offen sc1')
    stamp(11)
    A('s_barrier')
    flush_stamps(12)
    A('s_endpgm')
    A('L_taskF:')
    stamp(9)
    A('s_mov_b64 exec, -1')
    A('s_lshr_b32 s61, s33, 3'); A('s_lshl_b32 s61, s61, 3'); A('s_add_u32 s61, s61, s32')
    A('s_cmp_ge_u32 s61, 28'); A('s_cbranch_scc1 L_exit2')
    A('v_lshlrev_b32 v6, 6, v10'); A('v_lshl_add_u32 v7, v11, 13, v6'); A('v_lshl_add_u32 v6, v11, 11, v6')
    A(f's_mov_b32 s60, {MODB + 2048}'); A(f's_mov_b32 s61, {MODB + 4096}')
    poll([f'buffer_load_dwordx4 {V(vX+32+4*i,4)}, v7, {S(SWS)}, s61 offen offset:{16*i} sc1' for i in range(4)] +
         [f'buffer_load_dwordx4 {V(vX+48+4*i,4)}, v7, {S(SWS)}, s60 offen offset:{16*i} sc1' for i in range(4)],
         range(vX+32, vX+64), 8)
    mv_zero()
    A('s_lshl_b32 s61, s62, 4'); A('v_lshl_add_u32 v1, v12, 1, s61'); A('v_lshl_add_u32 v1, v13, 12, v1')
    A(f's_mov_b32 s60, {X2}')
    A('s_barrier')
    poll([f'buffer_load_dwordx4 {V(vX+4*i,4)}, v6, {S(SWS)}, s60 offen offset:{16*i} sc1' for i in range(4)],
         range(vX, vX+16), 8)
    stamp(10)
    layernorm(vX, vX+16)
    modulate(vX, vX+32, vX+48)
    mv_dot(mF)
    for e in range(4): rbf(vAc+e, vAc+e)
    for e in range(4): dpp('v_mul_f32', vAc+e, vAc+e, vAc+e, 'quad_perm:[1,0,3,2]')
    A(f'v_cvt_pk_bf16_f32 v2, v{vAc}, v{vAc+1}'); A(f'v_cvt_pk_bf16_f32 v3, v{vAc+2}, v{vAc+3}')
    A('v_min_u32 v2, -2, v2'); A('v_min_u32 v3, -2, v3')
    A(f's_mov_b32 s60, {HH}')
    setexec(0x0001000100010001)
    A(f'buffer_store_dwordx2 v[2:3], v1, {S(SWS)}, s60 offen sc1')
    stamp(11)
    A('s_barrier')
    flush_stamps(12)
    A('L_exit2:')
    A('s_endpgm')
    A('L_taskG:')
    stamp(9)
    A('s_mov_b64 exec, -1')
    A('v_bfe_u32 v2, v0, 4, 1'); A('s_lshl_b32 s61, s62, 1'); A('v_add_u32 v2, s61, v2')
    A('v_lshl_add_u32 v3, v13, 9, v2'); A('v_lshlrev_b32 v4, 2, v3'); A('v_lshlrev_b32 v3, 1, v3')
    A('v_lshl_add_u32 v5, v13, 11, v2'); A('v_lshlrev_b32 v5, 2, v5')
    A(f's_mov_b32 s60, {MODB + 6144}')
    poll([f'buffer_load_dword v21, v5, {S(SWS)}, s60 offen sc1'], [21], 8)
    for i in range(32): A(f'v_mov_b32 v{vX+i}, 0')
    for e in range(4): A(f'v_mov_b32 v{24+e}, 0')
    A('v_lshlrev_b32 v6, 6, v0')
    srd(A, SW2, 26, 2048)
    A(f's_mov_b32 s60, {X2}')
    A('s_barrier')
    poll([f'buffer_load_dword v20, v4, {S(SWS)}, s60 offen sc1'], [20], 8)
    A(f's_mov_b32 s60, {HH}'); A(f's_mov_b32 s61, {HH + 4096}')
    A('s_barrier')
    A('s_mov_b32 s64, -1'); A('s_mov_b32 s65, 0xffffff')
    poll([f'buffer_load_dwordx4 {V(vX+4*i,4)}, v6, {S(SWS)}, s60 offen offset:{16*i} sc1' for i in range(4)] +
         [f'buffer_load_dwordx4 {V(vX+16+4*i,4)}, v6, {S(SWS)}, s61 offen offset:{16*i} sc1' for i in range(4)],
         range(vX, vX+32), 8, mask='s[64:65]')
    stamp(10)
    for t in range(16):
        for b in range(2):
            for j in range(2):
                A(f'v_dot2c_f32_bf16 v{24+2*b+j}, v{vX+16*b+t}, v{mG[(t,j)]}')
    sum4_all(24)
    rbf(24, 24); A('v_mul_f32 v24, v21, v24'); rbf(24, 24); A('v_add_f32 v24, v20, v24')
    A('v_cvt_pk_bf16_f32 v24, v24, v24')
    setexec(0x0001000100010001)
    A(f'buffer_store_short v24, v3, {S(SW2)}, 0 offen sc1')
    stamp(11)
    flush_stamps(12)
    A('s_endpgm')

    A('.section .rodata,"a"'); A('.p2align 6'); A(f'.amdhsa_kernel {NAME}_kernel')
    for l in ['.amdhsa_next_free_vgpr 256', '.amdhsa_next_free_sgpr 102', '.amdhsa_accum_offset 256',
              '.amdhsa_group_segment_fixed_size 0', '.amdhsa_kernarg_size 112', '.amdhsa_user_sgpr_count 2',
              '.amdhsa_user_sgpr_kernarg_segment_ptr 1', '.amdhsa_system_sgpr_workgroup_id_x 1']: A(l)
    A('.end_amdhsa_kernel')
    return '\n'.join(head) + '\n' + A.text()

if __name__ == '__main__':
    p = P()
    out = sys.argv[1]
    for a in sys.argv[2:]:
        k, v = a.split('=')
        cur = getattr(p, k)
        setattr(p, k, (v == '1') if isinstance(cur, bool) else type(cur)(v))
    open(out, 'w').write(gen(p))
```

```python
import sys, struct
from asmlib import Asm

NAME = 'adaLN_cond__mha_block_cached__glu_gated_bilinear__decode'

def f32(x): return '0x%08x' % struct.unpack('<I', struct.pack('<f', x))[0]
LOG2E = 1.4426950408889634
SCALE = 128 ** -0.5

MODP = 0x00000
CLRF = 0x08000
QP   = 0x10000
LATE = 0x50000
OP   = 0x50000
YB   = 0x78000
Y2   = 0x98000
X2   = 0x178000
MODB = 0x179000
PRG  = 0x17e000
STMP = 0x200000
WS_BYTES = 0x300000
L_Q = 0; L_O = 256; L_M = 2304; L_L = 2320; L_G = 2560; L_PR = 3072; L_LV = 3088; L_GU = 4096; L_WD = 4096 + 16384; L_X = 4096 + 24576

class P:
    N = 5
    Nf = 5
    Nc = 5
    E = 24
    EL = 16
    blate = True
    psh = 4
    pfull = 8
    pflag = 'sc1'
    psleep = 6
    ctl = True
    cps = '76,56,36,18'
    thr = '3,7,11,14'
    lv = '44445555,55555555,66655555,66666655,77666665'
    lv0 = 1
    lvc = '55555555'
    gw = 1
    csleep = 16
    up = 0
    upc = 0
    prio = 0
    Ne = 5
    Te = 0
    stamps = False
    wflag = 'nt'
    cflag = 'sc1 nt'
    limit = 1 << 17
    guearly = False
    gosleep = 2
    h0sleep = 1
    xsleep = 2
    skip = ''

def srd(A, d, ptr, nbytes, add=None):
    if add is None:
        A(f's_mov_b32 s{d}, s{ptr}'); A(f's_mov_b32 s{d+1}, s{ptr+1}')
    else:
        A(f's_add_u32 s{d}, s{ptr}, {add}'); A(f's_addc_u32 s{d+1}, s{ptr+1}, 0')
    A(f's_mov_b32 s{d+2}, {nbytes}'); A(f's_mov_b32 s{d+3}, 0x20000')

def S(d): return f's[{d}:{d+3}]'
def V(a, n): return f'v[{a}:{a+n-1}]'

SK, SV = 44, 48
SWS, SDBG, SW, SW2 = 44, 48, 52, 56
PLO, PHI = 69, 70
sX, sIdx, sH, sB, sJ, sP, sFB, sR = 32, 33, 34, 35, 36, 37, 38, 39

def gen(p):
    A = Asm()
    def stamp(k):
        if p.stamps: A(f's_memrealtime s[{72+2*k}:{73+2*k}]')
    def finish(n=15):
        if p.stamps:
            A('s_branch L_flush')
        else:
            A('s_endpgm')

    hdr = open('cdna_kernels/' + NAME + '.s.ref').read().split('\n')
    head = []
    for l in hdr:
        if l.startswith('; @launch'):
            head.append(f'; @launch grid=(256,1,1) block=(512,1,1) lds={L_X + 8192*p.EL}')
            break
        head.append(l)
    A('.amdgcn_target "amdgcn-amd-amdhsa--gfx950"')
    A('.text'); A(f'.globl {NAME}_kernel'); A('.p2align 8'); A(f'.type {NAME}_kernel,@function')
    A(f'{NAME}_kernel:')
    A('s_cmp_ge_u32 s2, 256'); A('s_cbranch_scc1 L_exit')
    A('s_load_dwordx16 s[4:19], s[0:1], 0')
    A('s_load_dwordx8 s[20:27], s[0:1], 64')
    A('s_load_dwordx4 s[28:31], s[0:1], 96')
    if p.stamps:
        for k in range(1, 15): A(f's_mov_b32 s{72+2*k}, 0')
    stamp(0)
    A('v_lshrrev_b32 v1, 6, v0'); A('v_and_b32 v0, 63, v0'); A('v_readfirstlane_b32 s3, v1')
    A(f's_and_b32 s{sX}, s2, 7'); A(f's_lshr_b32 s{sIdx}, s2, 3')
    A(f's_lshr_b32 s61, s{sIdx}, 3'); A(f's_lshl_b32 s60, s{sX}, 2'); A(f's_add_u32 s{sH}, s61, s60')
    A(f's_and_b32 s{sJ}, s{sIdx}, 7'); A(f's_lshr_b32 s{sB}, s{sJ}, 2')
    A(f's_and_b32 s60, s{sJ}, 3'); A(f's_lshl_b32 s{sP}, s{sH}, 2'); A(f's_add_u32 s{sP}, s{sP}, s60')
    A(f's_lshl_b32 s60, s{sB}, 7'); A(f's_add_u32 s{sP}, s{sP}, s60')
    A('s_cmp_ge_u32 s3, 4'); A('s_cbranch_scc1 L_helper')

    vOff, vS, vP, vLo, vHi, vM, vNM, vL, vT, vU, vA = 1, 2, 3, 4, 5, 6, 7, 8, 9, 10, 11
    vQ, vAcc, vRing, vExt = 12, 16, 24, 56
    N, E, EL, Nf, Nc = p.N, p.E, p.EL, p.Nf, p.Nc
    vTmp = vExt + 8*E
    assert vTmp + 8 <= 256 and (E + EL) % 4 == 0 and max(N, Nc) <= 7
    A(f's_lshl_b32 s60, s{sP}, 21')
    A('s_lshl_b32 s61, s3, 10'); A('v_lshlrev_b32 v1, 4, v0'); A('v_add_u32 v1, s61, v1')
    A(f's_mul_i32 s62, s3, {2048*EL}'); A(f's_add_u32 s62, s62, {L_X}'); A('s_mov_b32 m0, s62')
    A('s_waitcnt lgkmcnt(0)')
    srd(A, SK, 6, 1 << 21, 's60'); srd(A, SV, 8, 1 << 21, 's60')
    def issue(n, reg):
        if reg is None:
            A(f'buffer_load_dwordx4 v{vOff}, {S(SV if n & 1 else SK)}, 0 offen nt lds')
            A('s_add_u32 m0, m0, 0x400')
        else:
            A(f'buffer_load_dwordx4 {V(reg,4)}, v{vOff}, {S(SV if n & 1 else SK)}, 0 offen nt')
        if n & 1: A(f'v_add_u32 v{vOff}, 0x1000, v{vOff}')
        elif reg is None and n < Nf: A('s_nop 0')
    NX = 2*(E + EL)
    if p.prio: A(f's_setprio {p.prio}')
    for n in range(NX + Nc):
        if n >= Nf: A(f's_waitcnt vmcnt({Nf-1})')
        if n == 0: stamp(6)
        if n == Nf: stamp(7)
        if n == 12: stamp(8)
        if n == 36: stamp(9)
        if n == 56: stamp(10)
        issue(n, None if n < 2*EL else vExt + 4*(n - 2*EL) if n < NX else vRing + 4*(n - NX))
        if n == Nf - 1:
            A(f'v_mov_b32 v{vM}, {f32(-1e38)}'); A(f'v_mov_b32 v{vNM}, {f32(1e38*LOG2E)}'); A(f'v_mov_b32 v{vL}, 0')
            for e in range(8): A(f'v_mov_b32 v{vAcc+e}, 0')
            A(f'v_and_b32 v{vT}, 15, v0'); A(f'v_lshlrev_b32 v{vT}, 4, v{vT}')
            A(f'v_lshl_add_u32 v0, v0, 4, s62')
    A(f's_lshl_b32 s61, s3, 2'); A(f'v_mov_b32 v{vU}, s61'); A(f'v_mov_b32 v{vA}, 0x7fff'); A(f'v_mov_b32 v{vS}, {p.lv0}')
    A(f'ds_write_b32 v{vU}, v{vA} offset:{L_PR}'); A(f'ds_write_b32 v{vU}, v{vS} offset:{L_LV}')
    A('s_waitcnt lgkmcnt(0)')
    stamp(1)
    A('s_barrier')
    A(f'ds_read_b128 {V(vQ,4)}, v{vT} offset:{L_Q}')
    stamp(2)
    A('s_waitcnt lgkmcnt(0)')
    stubs = []
    def kwork(r):
        A(f'v_dot2_f32_bf16 v{vS}, v{r}, v{vQ}, 0')
        for i in (1, 2, 3): A(f'v_dot2_f32_bf16 v{vS}, v{r+i}, v{vQ+i}, v{vS}')
        for k in (8, 4, 2, 1): A(f'v_add_f32_dpp v{vS}, v{vS}, v{vS} row_ror:{k} row_mask:0xf bank_mask:0xf')
        A(f'v_cvt_pk_bf16_f32 v{vS}, 0, v{vS}')
        A(f'v_mul_f32 v{vS}, {f32(SCALE)}, v{vS}')
        A(f'v_cvt_pk_bf16_f32 v{vS}, 0, v{vS}')
        A(f'v_cmp_gt_f32 vcc, v{vS}, v{vM}')
        st = A.label('rs'); stubs.append(st)
        A(f's_cbranch_vccnz {st}'); A(f'{st}_b:')
        A(f'v_fmamk_f32 v{vP}, v{vS}, {f32(LOG2E)}, v{vNM}')
        A(f'v_exp_f32 v{vP}, v{vP}')
        A(f'v_cvt_pk_bf16_f32 v{vLo}, v{vP}, 0')
        A(f'v_cvt_pk_bf16_f32 v{vHi}, 0, v{vP}')
        A(f'v_add_f32 v{vL}, v{vL}, v{vP}')
    def vwork(r):
        for i in range(4):
            A(f'v_dot2c_f32_bf16 v{vAcc+2*i}, v{r+i}, v{vLo}')
            A(f'v_dot2c_f32_bf16 v{vAcc+2*i+1}, v{r+i}, v{vHi}')
    issued = [Nc]
    def step(j, W):
        A(f's_waitcnt vmcnt({issued[0] - j - 1})')
        while issued[0] < j + 1 + W:
            issue(issued[0], vRing + 4*(issued[0] % 8)); issued[0] += 1
        (vwork if j & 1 else kwork)(vRing + 4*(j % 8))
    def loop(name, trips, W, pre, post, up=0):
        if trips == 0: return
        A(f's_movk_i32 s60, {trips}')
        A('.p2align 4')
        A(f'{name}:')
        pre()
        for j in range(8): step(j, int(p.lvc[j]))
        assert int(p.lvc[7]) == W
        issued[0] -= 8
        post()
        A('s_sub_u32 s60, s60, 1'); A('s_cmp_lg_u32 s60, 0'); A(f's_cbranch_scc1 {name}')
    def pre1():
        A('s_set_gpr_idx_on s61, gpr_idx(SRC0)')
        for i in range(8): A(f'v_mov_b32 v{vTmp+i}, v{vExt+i}')
        A('s_set_gpr_idx_off'); A('s_add_u32 s61, s61, 8')
    def pre2():
        A(f'ds_read_b128 {V(vTmp,4)}, v0'); A(f'ds_read_b128 {V(vTmp+4,4)}, v0 offset:1024')
        A('v_add_u32 v0, 0x800, v0')
    def post1():
        kwork(vTmp); vwork(vTmp+4)
    def post2():
        A('s_waitcnt lgkmcnt(0)'); post1()
    A('s_mov_b32 s61, 0')
    A(f's_waitcnt vmcnt({Nc})')
    loop('L_cu1', E, Nc, pre1, post1, p.upc)
    loop('L_cu2', EL, Nc, pre2, post2, p.upc)
    left = (512 - E - EL)//4 - E - EL
    if Nc != N:
        for j in range(8): step(j, N)
        issued[0] -= 8; left -= 1
    assert issued[0] == N
    stamp(3)
    vPa, vPv, vLv = vExt, vExt+1, vExt+2
    levels = p.lv.split(',')
    A(f's_lshl_b32 s61, s3, 2'); A(f'v_mov_b32 v{vPa}, s61')
    A(f's_movk_i32 s60, {left}')
    A(f's_branch L_lv{p.lv0}')
    for k, pat in enumerate(levels):
        assert len(pat) == 8 and int(pat[7]) == N
        A('.p2align 4')
        A(f'L_lv{k}:')
        A(f'v_mov_b32 v{vPv}, s60')
        A(f'ds_write_b32 v{vPa}, v{vPv} offset:{L_PR}'); A(f'ds_read_b32 v{vLv}, v{vPa} offset:{L_LV}')
        for j in range(8): step(j, int(pat[j]))
        issued[0] -= 8
        assert issued[0] == N
        A('s_sub_u32 s60, s60, 1'); A('s_cbranch_scc1 L_never') if False else None
        A('s_waitcnt lgkmcnt(0)'); A(f'v_readfirstlane_b32 s61, v{vLv}')
        A('s_cmp_eq_u32 s60, 0'); A('s_cbranch_scc1 L_sdone')
        order = [k] + [x for x in range(len(levels)) if x != k]
        for x in order[:-1]:
            A(f's_cmp_eq_u32 s61, {x}'); A(f's_cbranch_scc1 L_lv{x}')
        A(f's_branch L_lv{order[-1]}')
    A('L_sdone:')
    A('v_mbcnt_lo_u32_b32 v0, -1, 0'); A('v_mbcnt_hi_u32_b32 v0, -1, v0')
    stamp(4)
    A(f'v_mov_b32 v{vT}, v{vL}')
    A(f'v_and_b32 v{vU}, 15, v0'); A(f'v_lshlrev_b32 v{vU}, 5, v{vU}')
    A(f'v_permlane32_swap_b32 v{vT}, v{vL}')
    A(f'v_lshrrev_b32 v{vA}, 4, v0')
    for e in range(4): A(f'v_permlane32_swap_b32 v{vAcc+e}, v{vAcc+e+4}')
    A(f'v_add_f32 v{vL}, v{vL}, v{vT}')
    for e in range(4): A(f'v_add_f32 v{vAcc+e}, v{vAcc+e}, v{vAcc+e+4}')
    A(f'v_mov_b32 v{vT}, v{vL}')
    A(f'v_lshl_add_u32 v{vU}, v{vA}, 3, v{vU}')
    for e in range(2): A(f'v_permlane16_swap_b32 v{vAcc+e}, v{vAcc+e+2}')
    A(f'v_permlane16_swap_b32 v{vT}, v{vL}')
    A(f's_lshl_b32 s61, s3, 9'); A(f'v_add_u32 v{vU}, s61, v{vU}')
    for e in range(2): A(f'v_add_f32 v{vAcc+e}, v{vAcc+e}, v{vAcc+e+2}')
    A(f'v_add_f32 v{vL}, v{vL}, v{vT}')
    A(f'ds_write_b64 v{vU}, {V(vAcc,2)} offset:{L_O}')
    A('s_lshl_b32 s61, s3, 2'); A(f'v_mov_b32 v{vA}, s61')
    A('s_mov_b64 exec, 1')
    A(f'ds_write_b32 v{vA}, v{vNM} offset:{L_M}'); A(f'ds_write_b32 v{vA}, v{vL} offset:{L_L}')
    A('s_waitcnt lgkmcnt(0)')
    A('s_barrier')
    stamp(5)
    if p.stamps:
        A('L_flush:')
        A('s_mov_b64 exec, 1')
        A('s_waitcnt lgkmcnt(0)')
        srd(A, SW2, 30, WS_BYTES)
        A('s_lshl_b32 s60, s2, 10'); A('s_lshl_b32 s61, s3, 7'); A('s_add_u32 s60, s60, s61'); A(f's_add_u32 s60, s60, {STMP}')
        A('v_mov_b32 v1, s60')
        for k in range(15):
            A(f'v_mov_b32 v2, s{72+2*k}')
            A(f'buffer_store_dword v2, v1, {S(SW2)}, 0 offen offset:{4*k} sc1')
        A('s_waitcnt vmcnt(0)')
    A('L_exit:')
    A('s_endpgm')
    for st in stubs:
        A(f'{st}:'); A('s_call_b64 s[40:41], L_rescale'); A(f's_branch {st}_b')
    A('L_rescale:')
    A(f'v_mov_b32 v{vT}, v{vS}'); A(f'v_mov_b32 v{vU}, v{vS}')
    A(f'v_permlane32_swap_b32 v{vT}, v{vU}')
    A(f'v_max_f32 v{vT}, v{vT}, v{vU}'); A(f'v_mov_b32 v{vU}, v{vT}')
    A(f'v_permlane16_swap_b32 v{vT}, v{vU}')
    A(f'v_max3_f32 v{vM}, v{vT}, v{vU}, v{vM}')
    A(f'v_mul_f32 v{vT}, {f32(-LOG2E)}, v{vM}')
    A(f'v_sub_f32 v{vA}, v{vT}, v{vNM}')
    A(f'v_exp_f32 v{vA}, v{vA}')
    A(f'v_mov_b32 v{vNM}, v{vT}')
    A(f'v_mul_f32 v{vL}, v{vL}, v{vA}')
    for e in range(8): A(f'v_mul_f32 v{vAcc+e}, v{vAcc+e}, v{vA}')
    A('s_setpc_b64 s[40:41]')

    vOwn, vA0, vA1, vW, vSp, vAc, vX = 16, 24, 32, 40, 104, 106, 128
    wf = p.wflag
    def dpp(op, d, a, b, ctl, rm='0xf'): A(f'{op}_dpp v{d}, v{a}, v{b} {ctl} row_mask:{rm} bank_mask:0xf')
    def movdpp(d, a, ctl): A(f'v_mov_b32_dpp v{d}, v{a} {ctl} row_mask:0xf bank_mask:0xf')
    def rbf(d, s): A(f'v_cvt_pk_bf16_f32 v{d}, 0, v{s}')
    def pk(op, d, a, b, bc=False): A(f'v_pk_{op}_f32 {V(d,2)}, {V(a,2)}, {V(b,2)}' + (' op_sel_hi:[1,0]' if bc else ''))
    def bail(back):
        A('s_add_u32 s68, s68, 1'); A(f's_cmp_lt_u32 s68, {p.limit}'); A(f's_cbranch_scc1 {back}')
    def maxall(d, regs):
        regs = list(regs)
        if len(regs) == 1: return regs[0]
        if len(regs) == 2: A(f'v_max_u32 v{d}, v{regs[0]}, v{regs[1]}'); return d
        A(f'v_max3_u32 v{d}, v{regs[0]}, v{regs[1]}, v{regs[2]}'); regs = regs[3:]
        while len(regs) >= 2:
            A(f'v_max3_u32 v{d}, v{d}, v{regs[0]}, v{regs[1]}'); regs = regs[2:]
        if regs: A(f'v_max_u32 v{d}, v{d}, v{regs[0]}')
        return d
    def poll(loads, regs, tmp, sleep=0):
        L = A.label('poll'); D = L + '_d'
        A('s_mov_b32 s68, 0')
        A(f'{L}:')
        for l in loads: A(l)
        A('s_waitcnt vmcnt(0)')
        t = maxall(tmp, regs)
        A(f'v_cmpx_eq_u32 vcc, -1, v{t}')
        A(f's_cbranch_execz {D}')
        if sleep: A(f's_sleep {sleep}')
        bail(L)
        A(f'{D}:')
        A('s_mov_b64 exec, -1')
    def waitprog(lim, all4):
        L = A.label('prog'); D = L + '_d'
        A('s_mov_b32 s68, 0'); A('v_mov_b32 v15, 0')
        A(f'{L}:')
        if all4:
            A(f'ds_read_b128 v[8:11], v15 offset:{L_PR}') if False else None
            A(f'ds_read_b64 v[8:9], v15 offset:{L_PR}'); A(f'ds_read_b64 v[6:7], v15 offset:{L_PR+8}')
            A('s_waitcnt lgkmcnt(0)'); A('v_max3_u32 v14, v8, v9, v6'); A('v_max_u32 v14, v14, v7')
        else:
            A(f'ds_read_b32 v14, v15 offset:{L_PR}'); A('s_waitcnt lgkmcnt(0)')
        A(f'v_cmp_lt_u32 vcc, {lim}, v14'); A(f's_cbranch_vccz {D}')
        A(f's_sleep {p.psleep}')
        bail(L)
        A(f'{D}:')
    def waitflag(off, sleep, want=None):
        L = A.label('flag'); D = L + '_d'
        A('s_mov_b32 s68, 0'); A('s_mov_b64 exec, 1'); A('v_mov_b32 v15, 0')
        A(f'{L}:')
        A(f'buffer_load_dword v14, v15, {S(SDBG)}, 0 offen offset:{off} sc1')
        A('s_waitcnt vmcnt(0)')
        A('v_cmp_eq_u32 vcc, 0, v14' if want is None else f'v_cmp_ne_u32 vcc, {want}, v14'); A(f's_cbranch_vccz {D}')
        A(f's_sleep {sleep}')
        bail(L)
        A(f'{D}:')
        A('s_mov_b64 exec, -1')
    def arrive(off, last, flagoff):
        D = A.label('arr')
        A('s_mov_b64 exec, 1'); A('v_mov_b32 v15, 0'); A('v_mov_b32 v14, 1')
        A(f'buffer_atomic_add v14, v15, {S(SDBG)}, 0 offen offset:{off} sc0 sc1')
        A('s_waitcnt vmcnt(0)')
        A(f'v_cmp_ne_u32 vcc, {last}, v14'); A(f's_cbranch_vccnz {D}')
        A(f'buffer_store_dword v14, v15, {S(SDBG)}, 0 offen offset:{flagoff} sc1')
        A(f'{D}:')
        A('s_mov_b64 exec, -1')
    def pair_perm(base, npairs, spare, w=4):
        m = {}; free = spare
        for t in range(npairs):
            for j in range(w):
                a, b = base + 2*w*t + j, base + 2*w*t + w + j
                A(f'v_perm_b32 v{free}, v{b}, v{a}, s{PLO}'); m[(t, 2*j)] = free
                A(f'v_perm_b32 v{b}, v{b}, v{a}, s{PHI}'); m[(t, 2*j+1)] = b
                free = a
        return m
    def zero(r, n):
        for e in range(n): A(f'v_mov_b32 v{r+e}, 0')
    def mv_dots(m):
        for t in range(8):
            for e in range(8):
                A(f'v_dot2c_f32_bf16 v{vAc+e}, v{vA0+t}, v{m[(t,e)]}')
                A(f'v_dot2c_f32_bf16 v{vAc+8+e}, v{vA1+t}, v{m[(t,e)]}')
    def fold(r, n, which):
        h = n // 2
        for e in range(h): A(f'v_permlane{which}_swap_b32 v{r+e}, v{r+h+e}')
        for e in range(h): A(f'v_add_f32 v{r+e}, v{r+e}, v{r+h+e}')
    def rors(r, n, ks):
        for k in ks:
            for e in range(n): dpp('v_add_f32', r+e, r+e, r+e, f'row_ror:{k}')
    def allsum_parity(r, t):
        rors(r, 1, (2, 4, 8))
        A(f'v_mov_b32 v{t}, v{r}'); A(f'v_permlane16_swap_b32 v{t}, v{r}'); A(f'v_add_f32 v{r}, v{r}, v{t}')
        A(f'v_mov_b32 v{t}, v{r}'); A(f'v_permlane32_swap_b32 v{t}, v{r}'); A(f'v_add_f32 v{r}, v{r}, v{t}')
    def unpack(dst, src, n):
        for i in range(n):
            A(f'v_lshlrev_b32 v{dst+2*i}, 16, v{src+i}'); A(f'v_and_b32 v{dst+2*i+1}, 0xffff0000, v{src+i}')
    def setexec(mask):
        lo, hi = mask & 0xffffffff, mask >> 32
        A(f's_mov_b32 exec_lo, 0x{lo:x}'); A(f's_mov_b32 exec_hi, 0x{hi:x}')
    def ln_tail(nmean, var):
        rbf(var, var); rbf(nmean, nmean)
        A(f'v_add_f32 v{var}, {f32(1e-5)}, v{var}'); rbf(var, var)
        A(f'v_sqrt_f32 v{var}, v{var}'); rbf(var, var); A(f'v_rcp_f32 v{var}, v{var}')

    def modcalc(x):
        A(f's_waitcnt vmcnt({16+x})')
        unpack(vX, vOwn, 8)
        for i in range(16): A(f'v_mul_f32 v{vX+16+i}, {f32(-LOG2E)}, v{vX+i}')
        for i in range(16): A(f'v_exp_f32 v{vX+16+i}, v{vX+16+i}')
        for i in range(16): A(f'v_add_f32 v{vX+16+i}, 1.0, v{vX+16+i}')
        for i in range(16): A(f'v_rcp_f32 v{vX+16+i}, v{vX+16+i}')
        for i in range(0, 16, 2): pk('mul', vX+i, vX+i, vX+16+i)
        for i in range(8): A(f'v_cvt_pk_bf16_f32 v{vOwn+i}, v{vX+2*i}, v{vX+2*i+1}')
        for t in range(8):
            movdpp(vA0+t, vOwn+t, 'quad_perm:[0,0,2,2]'); movdpp(vA1+t, vOwn+t, 'quad_perm:[1,1,3,3]')
        stamp(1)
        free = vSp
        for t in range(8):
            A(f's_waitcnt vmcnt({14-2*t+x})')
            m = {}
            for j in range(4):
                a, b = vW + 8*t + j, vW + 8*t + 4 + j
                A(f'v_perm_b32 v{free}, v{b}, v{a}, s{PLO}'); m[2*j] = free
                A(f'v_perm_b32 v{b}, v{b}, v{a}, s{PHI}'); m[2*j+1] = b
                free = a
            for e in range(8):
                A(f'v_dot2c_f32_bf16 v{vAc+e}, v{vA0+t}, v{m[e]}')
                A(f'v_dot2c_f32_bf16 v{vAc+8+e}, v{vA1+t}, v{m[e]}')
        stamp(2)

    A('L_helper:')
    A(f's_mov_b32 s{PLO}, 0x05040100'); A(f's_mov_b32 s{PHI}, 0x07060302')
    A('v_and_b32 v11, 1, v0'); A('v_bfe_u32 v12, v0, 4, 1'); A('v_lshrrev_b32 v13, 5, v0')
    A('v_mov_b32 v5, 0'); A('v_mov_b32 v6, 0')
    A(f's_lshr_b32 s60, s{sIdx}, 3'); A('s_lshl_b32 s60, s60, 3'); A(f's_add_u32 s60, s60, s{sX}')
    A(f's_lshl_b32 s{sFB}, s60, 3'); A(f's_add_u32 s{sFB}, s{sFB}, s{sJ}')
    A(f's_sub_u32 s60, s{sIdx}, 8'); A(f's_lshl_b32 s61, s{sX}, 2'); A(f's_add_u32 s{sR}, s60, s61')
    A('s_cmp_lt_u32 s60, 4'); A(f's_cselect_b32 s{sR}, s{sR}, 64')
    A('s_waitcnt lgkmcnt(0)')
    srd(A, SWS, 30, WS_BYTES); srd(A, SDBG, 28, 256)
    A('s_cmp_eq_u32 s3, 5'); A('s_cbranch_scc1 L_taskB')
    A('s_cmp_eq_u32 s3, 6'); A('s_cbranch_scc1 L_clear')
    A('s_cmp_eq_u32 s3, 7'); A(f's_cbranch_scc1 {"L_stage" if p.guearly else "L_bar2"}')
    A('s_cmp_ge_u32 s2, 64'); A('s_cbranch_scc1 L_bar2')
    A('s_and_b32 s62, s2, 15'); A('s_lshr_b32 s63, s2, 4')
    A('s_call_b64 s[42:43], L_modload')
    for i in range(4): A(f'v_mov_b32 v{4+i}, -1')
    A('s_lshl_b32 s61, s2, 12'); A('v_lshl_add_u32 v3, v0, 4, s61'); A(f's_mov_b32 s60, {QP}')
    for i in range(4): A(f'buffer_store_dwordx4 v[4:7], v3, {S(SWS)}, s60 offen offset:{1024*i} {p.cflag}')
    A('s_lshl_b32 s61, s2, 4'); A(f's_add_u32 s61, s61, {CLRF}'); A('v_mov_b32 v3, 0'); A('s_mov_b64 exec, 1')
    A(f'buffer_store_dwordx4 v[4:7], v3, {S(SWS)}, s61 offen sc1')
    A('s_mov_b64 exec, -1')
    zero(vAc, 16)
    modcalc(5)
    fold(vAc, 16, 32); fold(vAc, 8, 16); rors(vAc, 4, (8,))
    A('v_and_b32 v1, 7, v0'); A('v_lshlrev_b32 v1, 5, v1'); A('v_lshl_add_u32 v1, v12, 4, v1'); A('v_lshl_add_u32 v1, v13, 8, v1')
    A('s_lshl_b32 s60, s62, 2'); A('s_add_u32 s60, s60, s63'); A('s_lshl_b32 s60, s60, 9')
    setexec(0x00ff00ff00ff00ff)
    A(f'buffer_store_dwordx4 {V(vAc,4)}, v1, {S(SWS)}, s60 offen sc1')
    stamp(3)
    A('s_waitcnt vmcnt(0)')
    stamp(4)
    arrive(0, 63, 128)
    stamp(5)
    A('s_branch L_bar2')
    A('L_modload:')
    srd(A, SW2, 22, 2048); srd(A, SW, 24, 512*3072*2)
    A('v_lshrrev_b32 v10, 3, v0')
    A('v_lshlrev_b32 v1, 5, v10'); A('v_lshl_add_u32 v1, v11, 10, v1'); A('s_lshl_b32 s60, s63, 8')
    A(f'buffer_load_dwordx4 {V(vOwn,4)}, v1, {S(SW2)}, s60 offen')
    A(f'buffer_load_dwordx4 {V(vOwn+4,4)}, v1, {S(SW2)}, s60 offen offset:16')
    A(f's_mov_b32 s60, {16*6144}'); A('v_mul_lo_u32 v1, s60, v10'); A('v_and_b32 v2, 7, v0'); A('v_lshl_add_u32 v1, v2, 4, v1')
    A(f's_mul_i32 s60, s63, {128*6144}'); A('s_lshl_b32 s61, s62, 7'); A('s_add_u32 s60, s60, s61')
    for i in range(16):
        A(f'buffer_load_dwordx4 {V(vW+4*i,4)}, v1, {S(SW)}, s60 offen {wf}')
        if i < 15: A('s_add_u32 s60, s60, 6144')
    A('s_setpc_b64 s[42:43]')
    A('L_clear:')
    for i in range(4): A(f'v_mov_b32 v{4+i}, -1')
    A('s_mul_i32 s61, s2, 5120'); A('v_lshl_add_u32 v3, v0, 4, s61'); A(f's_mov_b32 s60, {LATE}'); A(f's_mov_b32 s61, {LATE+4096}')
    if 'c' not in p.skip:
        for i in range(4): A(f'buffer_store_dwordx4 v[4:7], v3, {S(SWS)}, s60 offen offset:{1024*i} {p.cflag}')
        A(f'buffer_store_dwordx4 v[4:7], v3, {S(SWS)}, s61 offen {p.cflag}')
    A('s_waitcnt vmcnt(0)')
    A('s_branch L_bar2')
    A('L_taskB:')
    srd(A, SW2, 4, 2048); srd(A, SW, 10, 512*4096*2)
    A('v_lshrrev_b32 v10, 1, v0'); A('v_lshlrev_b32 v1, 5, v10'); A('v_lshl_add_u32 v1, v11, 10, v1')
    A(f'buffer_load_dwordx4 {V(vOwn,4)}, v1, {S(SW2)}, 0 offen')
    A(f'buffer_load_dwordx4 {V(vOwn+4,4)}, v1, {S(SW2)}, 0 offen offset:16')
    A('v_lshrrev_b32 v9, 4, v0'); A('v_and_b32 v8, 14, v0'); A('v_lshl_add_u32 v8, v9, 4, v8')
    A('v_lshlrev_b32 v1, 1, v8'); A('v_lshl_add_u32 v1, v11, 10, v1'); A(f's_lshl_b32 s60, s{sJ}, 7')
    A(f'buffer_load_dword v7, v1, {S(SW2)}, s60 offen')
    A('v_lshlrev_b32 v1, 17, v9'); A('v_and_b32 v10, 15, v0'); A('v_lshl_add_u32 v1, v10, 4, v1')
    A(f's_lshl_b32 s60, s{sJ}, 19'); A(f's_lshl_b32 s61, s{sH}, 8'); A('s_add_u32 s60, s60, s61')
    def wqloads():
        for i in range(16):
            A(f'buffer_load_dwordx4 {V(vW+4*i,4)}, v1, {S(SW)}, s60 offen {wf}')
            if i < 15: A('s_add_u32 s60, s60, 8192')
    if not p.blate:
        wqloads(); A('s_waitcnt vmcnt(16)')
    else:
        A('s_waitcnt vmcnt(0)')
    unpack(vX, vOwn, 8)
    w = vX + 16
    pk('add', w, vX, vX+2)
    for i in range(4, 16, 2): pk('add', w, w, vX+i)
    A(f'v_add_f32 v2, v{w}, v{w+1}')
    allsum_parity(2, 3)
    A(f'v_mul_f32 v2, {f32(-1.0/512)}, v2')
    for i in range(0, 16, 2): pk('add', w+i, vX+i, 2, True)
    pk('mul', 4, w, w)
    for i in range(2, 16, 2): A(f'v_pk_fma_f32 v[4:5], {V(w+i,2)}, {V(w+i,2)}, v[4:5]')
    A('v_add_f32 v4, v4, v5')
    allsum_parity(4, 5)
    A(f'v_mul_f32 v4, {f32(1.0/512)}, v4')
    if p.blate: wqloads()
    ln_tail(2, 4)
    unpack(vX, 7, 1)
    pk('add', vX, vX, 2, True); rbf(vX, vX); rbf(vX+1, vX+1)
    pk('mul', vX, vX, 4, True); rbf(vX, vX); rbf(vX+1, vX+1)
    zero(vAc, 16)
    A('v_lshlrev_b32 v6, 2, v8'); A('v_lshl_add_u32 v6, v11, 8, v6')
    A('v_lshlrev_b32 v1, 5, v10'); A('v_lshl_add_u32 v1, v12, 4, v1'); A('v_lshl_add_u32 v1, v13, 12, v1')
    A(f's_lshl_b32 s62, s{sJ}, 11'); A('s_add_u32 s63, s62, 16384')
    stamp(1)
    A('s_waitcnt vmcnt(0)')
    stamp(2)
    m = pair_perm(vW, 8, vSp)
    waitflag(128, p.gosleep)
    stamp(3)
    for i in range(4):
        A(f'buffer_load_dwordx2 {V(vX+2+2*i,2)}, v6, {S(SWS)}, s63 offen offset:{512*i} sc1')
    for i in range(4):
        A(f'buffer_load_dwordx2 {V(vX+10+2*i,2)}, v6, {S(SWS)}, s62 offen offset:{512*i} sc1')
    A(f's_lshl_b32 s60, s{sH}, 13'); A(f's_lshl_b32 s61, s{sJ}, 9'); A('s_add_u32 s61, s61, s60'); A(f's_add_u32 s61, s61, {QP}')
    A(f's_lshl_b32 s62, s{sB}, 12'); A('s_add_u32 s60, s60, s62'); A(f's_add_u32 s60, s60, {QP}')
    A('s_waitcnt vmcnt(4)')
    c1, sa = vX+2, vX+10
    pk('add', c1, c1, c1+2); pk('add', c1+4, c1+4, c1+6); pk('add', c1, c1, c1+4)
    rbf(c1, c1); rbf(c1+1, c1+1)
    A(f'v_add_f32 v{c1}, 1.0, v{c1}'); A(f'v_add_f32 v{c1+1}, 1.0, v{c1+1}')
    rbf(c1, c1); rbf(c1+1, c1+1)
    pk('mul', vX, vX, c1); rbf(vX, vX); rbf(vX+1, vX+1)
    A('s_waitcnt vmcnt(0)')
    stamp(4)
    pk('add', sa, sa, sa+2); pk('add', sa+4, sa+4, sa+6); pk('add', sa, sa, sa+4)
    rbf(sa, sa); rbf(sa+1, sa+1)
    pk('add', vX, vX, sa)
    A(f'v_cvt_pk_bf16_f32 v{vOwn}, v{vX}, v{vX+1}')
    for t in range(8):
        movdpp(vA0+t, vOwn, f'row_newbcast:{2*t}'); movdpp(vA1+t, vOwn, f'row_newbcast:{2*t+1}')
    mv_dots(m)
    fold(vAc, 16, 32); fold(vAc, 8, 16)
    A(f'buffer_store_dwordx4 {V(vAc,4)}, v1, {S(SWS)}, s61 offen sc1')
    stamp(5)
    A('v_lshlrev_b32 v1, 4, v0')
    A('v_and_b32 v2, 31, v0'); A('v_lshlrev_b32 v2, 3, v2'); A('v_lshl_add_u32 v2, v13, 2, v2')
    A('s_waitcnt vmcnt(0)')
    poll([f'buffer_load_dwordx4 {V(vX+4*i,4)}, v1, {S(SWS)}, s60 offen offset:{1024*i} sc1' for i in range(4)],
         range(vX, vX+16), 8, sleep=1)
    for a, b in ((0, 4), (8, 12), (0, 8)):
        pk('add', vX+a, vX+a, vX+b); pk('add', vX+a+2, vX+a+2, vX+b+2)
    fold(vX, 4, 32)
    A(f'v_cvt_pk_bf16_f32 v3, v{vX}, v{vX+1}')
    A(f'ds_write_b32 v2, v3 offset:{L_Q}')
    A('s_waitcnt lgkmcnt(0)')
    stamp(6)
    A('L_bar2:')
    A('s_barrier')
    A('s_cmp_eq_u32 s3, 5'); A('s_cbranch_scc1 L_wo')
    A('s_cmp_eq_u32 s3, 4'); A('s_cbranch_scc1 L_bgA')
    A('s_cmp_eq_u32 s3, 7'); A(f's_cbranch_scc1 {"L_wo" if p.guearly else "L_stage"}')
    A('s_mov_b64 exec, 1'); A('v_mov_b32 v15, 0'); A('s_lshl_b32 s61, s2, 2'); A(f's_add_u32 s61, s61, {CLRF}')
    if 'f' not in p.skip: A(f'buffer_store_dword v15, v15, {S(SWS)}, s61 offen sc1')
    A('s_mov_b64 exec, -1')
    waitprog(left, True)
    srd(A, SW, 12, 4096*512*2)
    A('v_lshrrev_b32 v3, 3, v0'); A('v_lshlrev_b32 v1, 13, v3'); A('v_and_b32 v2, 7, v0'); A('v_lshl_add_u32 v1, v2, 4, v1')
    A(f's_lshl_b32 s60, s{sH}, 17'); A(f's_lshl_b32 s61, s{sJ}, 7'); A('s_add_u32 s60, s60, s61')
    for n in range(16 if 'o' not in p.skip else 0):
        A(f's_add_u32 s61, s60, {(n>>3)*65536 + (n&4)*1024}')
        A(f'buffer_load_dwordx4 {V(vX+4*n,4)}, v1, {S(SW)}, s61 offen offset:{(n&3)*1024} {wf}')
        A('s_waitcnt vmcnt(2)')
    A('v_lshlrev_b32 v3, 6, v3'); A('v_and_b32 v4, 3, v0'); A('v_lshl_add_u32 v3, v4, 4, v3'); A('v_bfe_u32 v4, v0, 2, 1'); A('v_lshl_add_u32 v3, v4, 13, v3')
    A('s_waitcnt vmcnt(0)')
    for hf in range(2):
        for t in range(4):
            for j in range(4):
                a_, b_ = vX + 32*hf + 8*t + j, vX + 32*hf + 8*t + 4 + j
                d = 192 + 32*hf + 8*t + 2*j
                A(f'v_perm_b32 v{d}, v{b_}, v{a_}, s{PLO}'); A(f'v_perm_b32 v{d+1}, v{b_}, v{a_}, s{PHI}')
        for q in range(8): A(f'ds_write_b128 v3, {V(192+32*hf+4*q,4)} offset:{L_X + 1024*q + 512*hf}')
    A('s_waitcnt lgkmcnt(0)')
    A('s_branch L_wo')
    A('L_bgA:')
    A(f's_cmp_lt_u32 s{sFB}, 224'); A('s_cbranch_scc1 L_bgA_wait')
    A(f's_sub_u32 s62, s{sFB}, {224 - 16}'); A('s_mov_b32 s63, 0')
    zero(vAc, 16)
    A('L_bgA_loop:')
    if 'b' not in p.skip:
        A('s_call_b64 s[42:43], L_modload')
        modcalc(0)
    A('s_add_u32 s63, s63, 1'); A('s_cmp_lt_u32 s63, 4'); A('s_cbranch_scc1 L_bgA_loop')
    fold(vAc, 16, 32); fold(vAc, 8, 16); rors(vAc, 4, (8,))
    A('s_lshr_b32 s61, s62, 3'); A('s_cmp_eq_u32 s61, 4'); A('s_cselect_b32 s63, 1.0, 0')
    for e in range(4): rbf(vAc+e, vAc+e)
    for e in range(4): A(f'v_add_f32 v{vAc+e}, s63, v{vAc+e}')
    for e in range(4): rbf(vAc+e, vAc+e)
    A('L_bgA_wait:')
    waitprog(left, False)
    A('v_lshlrev_b32 v10, 4, v0'); A(f's_mov_b32 s60, {CLRF}')
    if 'f' not in p.skip: poll([f'buffer_load_dwordx4 v[4:7], v10, {S(SWS)}, s60 offen sc1'], range(4, 8), 8, sleep=p.csleep)
    A(f's_cmp_lt_u32 s{sFB}, 224'); A('s_cbranch_scc1 L_ctl')
    A('v_and_b32 v1, 7, v0'); A('v_lshlrev_b32 v1, 5, v1'); A('v_lshl_add_u32 v1, v12, 4, v1'); A('v_lshl_add_u32 v1, v13, 13, v1')
    A('s_lshl_b32 s60, s62, 8'); A(f's_add_u32 s60, s60, {MODB - 4096}')
    setexec(0x00ff00ff00ff00ff)
    A(f'buffer_store_dwordx4 {V(vAc,4)}, v1, {S(SWS)}, s60 offen sc1')
    A('s_mov_b64 exec, -1')
    A('L_ctl:')
    A('v_lshlrev_b32 v10, 2, v0'); A(f's_mov_b32 s62, {PRG}'); A('v_lshlrev_b32 v2, 7, v0'); A('v_lshlrev_b32 v3, 4, v0')
    A(f's_lshr_b32 s60, s{sIdx}, {p.psh}'); A('s_lshl_b32 s60, s60, 3'); A(f's_add_u32 s60, s60, s{sX}'); A('s_lshl_b32 s60, s60, 7'); A(f's_add_u32 s63, s60, {PRG}')
    for k, cp in enumerate(p.cps.split(',') if p.ctl else []):
        waitprog(int(cp), False)
        A('v_mov_b32 v14, -1'); setexec((1 << (256 >> p.psh)) - 1)
        if 'L' not in p.skip: A(f'buffer_load_dword v14, v2, {S(SWS)}, s62 offen sc1')
        A(f's_and_b32 s60, s{sIdx}, {(1 << p.psh) - 1}'); A(f's_cmp_lg_u32 s60, {(1 << p.psh)//2}'); A(f's_cbranch_scc1 L_nopub{k}')
        A(f's_mov_b64 exec, {(1 << p.pfull) - 1}')
        for i in range(4): A(f'v_mov_b32 v{4+i}, {cp}')
        if 'S' not in p.skip: A(f'buffer_store_dwordx4 v[4:7], v3, {S(SWS)}, s63 offen {p.pflag}')
        A(f'L_nopub{k}:')
        A('s_mov_b64 exec, -1')
        A('s_waitcnt vmcnt(0)'); A(f'v_cmp_ge_u32 vcc, {cp}, v14'); A('s_bcnt1_i32_b64 s60, vcc')
        A('s_mov_b64 exec, 15'); A('s_mov_b32 s61, 0')
        if p.stamps and k < 6: A(f's_add_u32 s{74+2*k}, s60, s72')
        for t in p.thr.split(','):
            A(f's_cmp_ge_u32 s60, {t}'); A('s_addc_u32 s61, s61, 0')
        A('v_mov_b32 v14, s61')
        A(f'ds_write_b32 v10, v14 offset:{L_LV}')
        A('s_mov_b64 exec, -1')
    A('s_branch L_wo')
    A('L_stage:')
    A(f's_cmp_ge_u32 s{sFB}, 224'); A('s_cbranch_scc1 L_stage_done')
    srd(A, SW, 16, 512*1792*2); srd(A, SW2, 18, 512*1792*2)
    A(f's_mov_b32 s60, {4*3584}'); A('v_mul_lo_u32 v1, s60, v0'); A(f's_lshl_b32 s61, s{sFB}, 4'); A('v_add_u32 v1, s61, v1')
    for i in range(8 if 'g' not in p.skip else 0):
        A(f's_mov_b32 s60, {(256*(i>>2) + (i&3))*3584}')
        A(f'buffer_load_dwordx4 {V(vX+8*i,4)}, v1, {S(SW)}, s60 offen {wf}')
        A(f's_waitcnt vmcnt({p.gw})')
        A(f'buffer_load_dwordx4 {V(vX+8*i+4,4)}, v1, {S(SW2)}, s60 offen {wf}')
        A(f's_waitcnt vmcnt({p.gw})')
    A('s_waitcnt vmcnt(0)')
    vD = 192
    for t in range(4):
        for j in range(8):
            a, b = vX + 16*t + j, vX + 16*t + 8 + j
            A(f'v_perm_b32 v{vD+16*t+2*j}, v{b}, v{a}, s{PLO}'); A(f'v_perm_b32 v{vD+16*t+2*j+1}, v{b}, v{a}, s{PHI}')
    srd(A, SW, 20, 1792*512*2)
    A(f's_lshl_b32 s60, s{sFB}, 13'); A('s_add_u32 s61, s60, 4096'); A('v_lshlrev_b32 v1, 3, v0')
    for r in range(8 if 'd' not in p.skip else 0):
        for u in range(2):
            A(f'buffer_load_dwordx2 {V(vX+4*r+2*u,2)}, v1, {S(SW)}, s{60+(r>>2)} offen offset:{(r&3)*1024+u*512} {wf}')
    A('v_lshlrev_b32 v2, 4, v0')
    for q in range(16): A(f'ds_write_b128 v2, {V(vD+4*q,4)} offset:{L_GU+1024*q}')
    A('s_waitcnt vmcnt(0) lgkmcnt(0)')
    for t in range(4):
        for j in range(4):
            a, b = vX + 8*t + j, vX + 8*t + 4 + j
            A(f'v_perm_b32 v{vD+8*t+2*j}, v{b}, v{a}, s{PLO}'); A(f'v_perm_b32 v{vD+8*t+2*j+1}, v{b}, v{a}, s{PHI}')
    for q in range(8): A(f'ds_write_b128 v2, {V(vD+4*q,4)} offset:{L_WD+1024*q}')
    A('s_waitcnt lgkmcnt(0)')
    A('L_stage_done:')
    if p.guearly: A('s_branch L_bar2')
    A('L_wo:')
    A('s_and_b32 s64, s3, 1'); A('s_bfe_u32 s65, s3, 0x10001')
    A('v_and_b32 v2, 3, v0')
    A('s_lshl_b32 s60, s64, 13'); A('v_lshl_add_u32 v7, v0, 4, s60')
    def woread():
        for q in range(8): A(f'ds_read_b128 {V(vW+4*q,4)}, v7 offset:{L_X + 1024*q}')
    mO = {(t, e): vW + 8*t + e for t in range(4) for e in range(8)}
    vY = vAc
    zero(vY, 8)
    A('v_lshlrev_b32 v1, 5, v2'); A('v_lshl_add_u32 v1, v13, 4, v1'); A('v_lshl_add_u32 v1, v12, 3, v1')
    A('s_lshl_b32 s66, s65, 4'); A(f's_lshl_b32 s61, s{sJ}, 1'); A('s_add_u32 s66, s66, s61'); A('s_add_u32 s66, s66, s64')
    A('s_lshl_b32 s66, s66, 5'); A(f's_add_u32 s66, s66, s{sH}'); A('s_lshl_b32 s66, s66, 7'); A(f's_add_u32 s66, s66, {YB}')
    A('v_lshlrev_b32 v3, 3, v0'); A('v_mul_u32_u24 v4, 640, v2')
    A('s_lshl_b32 s67, s65, 5'); A(f's_add_u32 s67, s67, s{sH}'); A('s_mul_i32 s67, s67, 2560'); A(f's_add_u32 s67, s67, {OP}')
    A(f's_mul_i32 s62, s{sP}, 640'); A(f's_add_u32 s62, s62, {OP}')
    A('v_mov_b32 v15, 0')
    stamp(7)
    A('s_barrier')
    stamp(8)
    if 'E' in p.skip: A('s_branch L_fin')
    A('s_cmp_lg_u32 s3, 4'); A('s_cbranch_scc1 L_notcomb')
    A(f'ds_read_b128 v[24:27], v15 offset:{L_M}'); A(f'ds_read_b128 v[28:31], v15 offset:{L_L}')
    for w in range(4): A(f'ds_read_b64 {V(16+2*w,2)}, v3 offset:{L_O+512*w}')
    A('s_waitcnt lgkmcnt(4)')
    A('v_min3_f32 v8, v24, v25, v26'); A('v_min_f32 v8, v8, v27')
    for w in range(4): A(f'v_sub_f32 v{24+w}, v8, v{24+w}')
    for w in range(4): A(f'v_exp_f32 v{24+w}, v{24+w}')
    A('s_waitcnt lgkmcnt(0)')
    A('v_mul_f32 v16, v24, v16'); A('v_mul_f32 v17, v24, v17'); A('v_mul_f32 v9, v24, v28')
    for w in range(1, 4):
        A(f'v_fmac_f32 v16, v{24+w}, v{16+2*w}'); A(f'v_fmac_f32 v17, v{24+w}, v{17+2*w}'); A(f'v_fmac_f32 v9, v{24+w}, v{28+w}')
    A(f'buffer_store_dwordx2 v[16:17], v3, {S(SWS)}, s62 offen sc1')
    A('s_mov_b64 exec, 1')
    A(f'buffer_store_dwordx2 v[8:9], v15, {S(SWS)}, s62 offen offset:512 sc1')
    A('s_mov_b64 exec, -1')
    stamp(9)
    woread()
    A('s_waitcnt vmcnt(0) lgkmcnt(0)')
    A('s_branch L_bar3b')
    A('L_notcomb:')
    woread()
    A('s_waitcnt lgkmcnt(0)')
    A('s_cmp_eq_u32 s3, 7'); A('s_cbranch_scc1 L_preR')
    vGU, vWD, vC1, vSB, vX2 = 128, 192, 224, 232, 240
    A(f's_cmp_ge_u32 s{sFB}, 224'); A('s_cbranch_scc1 L_bar3b')
    A('s_sub_u32 s63, s3, 5'); A('s_lshl_b32 s60, s63, 13'); A(f's_add_u32 s60, s60, {MODB + 2048}'); A('s_add_u32 s61, s60, 2048')
    A('v_lshlrev_b32 v5, 4, v0')
    for q in range(16): A(f'ds_read_b128 {V(vGU+4*q,4)}, v5 offset:{L_GU+1024*q}')
    A('s_waitcnt lgkmcnt(8)')
    for q in range(8): A(f'ds_read_b128 {V(vWD+4*q,4)}, v5 offset:{L_WD+1024*q}')
    poll([f'buffer_load_dwordx4 {V(vC1+4*i,4)}, v5, {S(SWS)}, s61 offen offset:{1024*i} sc1' for i in range(2)] +
         [f'buffer_load_dwordx4 {V(vSB+4*i,4)}, v5, {S(SWS)}, s60 offen offset:{1024*i} sc1' for i in range(2)],
         range(vC1, vC1+16), 8)
    A('s_waitcnt lgkmcnt(0)')
    A('s_branch L_bar3b')
    A('L_preR:')
    A(f's_cmp_ge_u32 s{sR}, 32'); A('s_cbranch_scc1 L_bar3b')
    srd(A, SW2, 4, 2048)
    A('v_and_b32 v5, 7, v0'); A('v_lshlrev_b32 v5, 2, v5'); A('v_lshl_add_u32 v5, v13, 1, v5'); A('v_add_u32 v5, v5, v12')
    A('v_lshlrev_b32 v6, 1, v5'); A('v_lshlrev_b32 v5, 2, v5')
    A(f's_lshl_b32 s60, s{sR}, 6')
    A(f'buffer_load_ushort v34, v6, {S(SW2)}, s60 offen')
    A(f's_lshr_b32 s60, s{sR}, 4'); A('s_lshl_b32 s60, s60, 13'); A(f's_and_b32 s61, s{sR}, 15'); A('s_lshl_b32 s61, s61, 7')
    A('s_add_u32 s60, s60, s61'); A(f's_add_u32 s60, s60, {MODB}'); A('s_add_u32 s61, s60, 6144')
    poll([f'buffer_load_dword v32, v5, {S(SWS)}, s60 offen sc1', f'buffer_load_dword v33, v5, {S(SWS)}, s61 offen sc1'], (32, 33), 8)
    A('v_lshlrev_b32 v34, 16, v34')
    A('L_bar3b:')
    A('s_barrier')
    poll([f'buffer_load_dwordx2 {V(16+2*i,2)}, v3, {S(SWS)}, s67 offen offset:{640*i} sc1' for i in range(4)] +
         [f'buffer_load_dwordx2 v[24:25], v4, {S(SWS)}, s67 offen offset:512 sc1'], range(16, 26), 8, sleep=p.h0sleep)
    stamp(10)
    dpp('v_min_f32', 26, 24, 24, 'quad_perm:[1,0,3,2]'); dpp('v_min_f32', 26, 26, 26, 'quad_perm:[2,3,0,1]')
    A('v_sub_f32 v24, v26, v24'); A('v_exp_f32 v24, v24'); A('v_mul_f32 v25, v24, v25')
    dpp('v_add_f32', 25, 25, 25, 'quad_perm:[1,0,3,2]'); dpp('v_add_f32', 25, 25, 25, 'quad_perm:[2,3,0,1]')
    A('v_rcp_f32 v25, v25'); A('v_mul_f32 v24, v24, v25')
    dpp('v_mul_f32', 16, 24, 16, 'quad_perm:[0,0,0,0]'); dpp('v_mul_f32', 17, 24, 17, 'quad_perm:[0,0,0,0]')
    for i in range(1, 4):
        dpp('v_fmac_f32', 16, 24, 16+2*i, f'quad_perm:[{i},{i},{i},{i}]'); dpp('v_fmac_f32', 17, 24, 17+2*i, f'quad_perm:[{i},{i},{i},{i}]')
    A('v_cvt_pk_bf16_f32 v16, v16, v17')
    for t in range(4): movdpp(20+t, 16, f'quad_perm:[{t},{t},{t},{t}]')
    for t in range(4):
        for e in range(8): A(f'v_dot2c_f32_bf16 v{vY+e}, v{20+t}, v{mO[(t,e)]}')
    fold(vY, 8, 32); fold(vY, 4, 16); rors(vY, 2, (8, 4))
    setexec(0x000f000f000f000f)
    A(f'buffer_store_dwordx2 {V(vY,2)}, v1, {S(SWS)}, s66 offen sc1')
    stamp(11)
    A('s_mov_b64 exec, -1')
    if 'Y' in p.skip: A('s_branch L_fin')
    A('s_cmp_eq_u32 s3, 7'); A('s_cbranch_scc1 L_taskR')
    A('s_cmp_eq_u32 s3, 4'); A('s_cbranch_scc1 L_toG')
    A(f's_cmp_ge_u32 s{sFB}, 224'); A('s_cbranch_scc1 L_fin')
    zero(vAc, 16); zero(16, 8)
    A('v_lshrrev_b32 v1, 3, v0'); A('v_mul_u32_u24 v1, 28672, v1'); A('v_and_b32 v2, 7, v0'); A('v_lshl_add_u32 v1, v2, 4, v1')
    A(f's_mul_i32 s66, s63, {16*28672}'); A(f's_lshl_b32 s61, s{sFB}, 7'); A('s_add_u32 s66, s66, s61'); A(f's_add_u32 s66, s66, {Y2}')
    A(f's_add_u32 s67, s66, {8*28672}')
    A('s_lshl_b32 s60, s63, 11'); A(f's_add_u32 s60, s60, {X2}')
    poll([f'buffer_load_dwordx4 {V(vX2+4*i,4)}, v5, {S(SWS)}, s60 offen offset:{1024*i} sc1' for i in range(2)],
         range(vX2, vX2+8), 8, sleep=p.xsleep)
    stamp(12)
    A(f'v_readfirstlane_b32 s60, v{vX2}')
    w = 24
    for i in range(0, 8, 2): A(f'v_pk_add_f32 {V(w+i,2)}, {V(vX2+i,2)}, s[60:61] op_sel_hi:[1,0] neg_lo:[0,1] neg_hi:[0,1]')
    pk('mul', 8, w, w); pk('add', 6, w, w+2)
    A(f'v_pk_fma_f32 v[8:9], {V(w+2,2)}, {V(w+2,2)}, v[8:9]'); pk('add', 6, 6, w+4)
    A(f'v_pk_fma_f32 v[8:9], {V(w+4,2)}, {V(w+4,2)}, v[8:9]'); pk('add', 6, 6, w+6)
    A(f'v_pk_fma_f32 v[8:9], {V(w+6,2)}, {V(w+6,2)}, v[8:9]')
    A('v_add_f32 v6, v6, v7'); A('v_add_f32 v7, v8, v9')
    rors(6, 2, (8, 4, 2, 1))
    for r in (6, 7): dpp('v_add_f32', r, r, r, 'row_bcast:15', '0xa')
    for r in (6, 7): dpp('v_add_f32', r, r, r, 'row_bcast:31', '0xc')
    A('v_readlane_b32 s61, v6, 63'); A('v_readlane_b32 s62, v7, 63')
    A(f'v_mov_b32 v8, {f32(1.0/512)}')
    A('v_mul_f32 v6, s61, v8'); A('v_mul_f32 v8, s62, v8')
    A('v_fma_f32 v8, -v6, v6, v8'); A('v_add_f32 v6, s60, v6'); A('v_max_f32 v8, 0, v8'); A('v_sub_f32 v6, 0, v6')
    ln_tail(6, 8)
    for i in range(0, 8, 2): pk('add', vX2+i, vX2+i, 6, True)
    for i in range(8): rbf(vX2+i, vX2+i)
    for i in range(0, 8, 2): pk('mul', vX2+i, vX2+i, 8, True)
    for i in range(8): rbf(vX2+i, vX2+i)
    for i in range(0, 8, 2): pk('mul', vX2+i, vX2+i, vC1+i)
    for i in range(8): rbf(vX2+i, vX2+i)
    for i in range(0, 8, 2): pk('add', vX2+i, vX2+i, vSB+i)
    for i in range(4): A(f'v_cvt_pk_bf16_f32 v{w+i}, v{vX2+2*i}, v{vX2+2*i+1}')
    for t in range(4):
        for c in range(16): A(f'v_dot2c_f32_bf16 v{vAc+c}, v{w+t}, v{vGU+16*t+c}')
    fold(vAc, 16, 32); fold(vAc, 8, 16); rors(vAc, 4, (8, 4, 2, 1))
    for e in range(4): rbf(vAc+e, vAc+e)
    for e in range(4): A(f'v_mov_b32 v{vAc+4+e}, v{vAc+e}')
    for e in range(4): A(f'v_permlane32_swap_b32 v{vAc+e}, v{vAc+4+e}')
    pk('mul', vAc, vAc, vAc+4); pk('mul', vAc+2, vAc+2, vAc+6)
    A(f'v_cvt_pk_bf16_f32 v6, v{vAc}, v{vAc+1}'); A(f'v_cvt_pk_bf16_f32 v7, v{vAc+2}, v{vAc+3}')
    A('v_readlane_b32 s60, v6, 0'); A('v_readlane_b32 s61, v7, 0'); A('v_readlane_b32 s62, v6, 16'); A('v_readlane_b32 s63, v7, 16')
    for t in range(4):
        for c in range(8): A(f'v_dot2c_f32_bf16 v{16+c}, s{60+t}, v{vWD+8*t+c}')
    A(f'buffer_store_dwordx4 v[16:19], v1, {S(SWS)}, s66 offen sc1')
    A(f'buffer_store_dwordx4 v[20:23], v1, {S(SWS)}, s67 offen sc1')
    stamp(13)
    A(f's_cmp_ge_u32 s{sR}, 32'); A('s_cbranch_scc1 L_fin')
    A('s_waitcnt vmcnt(0)')
    A('s_branch L_taskG')
    A('L_taskR:')
    A(f's_cmp_ge_u32 s{sR}, 32'); A('s_cbranch_scc1 L_fin')
    A('v_lshlrev_b32 v1, 4, v0'); A(f's_lshl_b32 s60, s{sR}, 12'); A(f's_add_u32 s60, s60, {YB}')
    A(f's_lshl_b32 s61, s{sR}, 7'); A(f's_add_u32 s61, s61, {X2}')
    poll([f'buffer_load_dwordx4 {V(16+4*i,4)}, v1, {S(SWS)}, s60 offen offset:{1024*i} sc1' for i in range(4)], range(16, 32), 8)
    stamp(12)
    for a, b in ((16, 20), (24, 28), (16, 24)):
        pk('add', a, a, b); pk('add', a+2, a+2, b+2)
    fold(16, 4, 32); fold(16, 2, 16); rors(16, 1, (8,))
    rbf(16, 16); A('v_mul_f32 v16, v32, v16'); rbf(16, 16); A('v_add_f32 v16, v34, v16'); rbf(34, 16)
    setexec(0x00ff00ff00ff00ff)
    A(f'buffer_store_dword v34, v5, {S(SWS)}, s61 offen sc1')
    stamp(13)
    A('s_mov_b64 exec, -1')
    A('L_toG:')
    A(f's_cmp_ge_u32 s{sR}, 32'); A('s_cbranch_scc1 L_fin')
    A('L_taskG:')
    srd(A, SW2, 26, 2048)
    A('v_lshlrev_b32 v1, 4, v0')
    A(f's_mul_i32 s60, s{sR}, 28672'); A('s_sub_u32 s61, s3, 4'); A('s_mul_i32 s62, s61, 7168'); A('s_add_u32 s60, s60, s62')
    A(f's_add_u32 s60, s60, {Y2}'); A('s_add_u32 s62, s60, 4096')
    A('v_and_b32 v2, 7, v0'); A('v_lshlrev_b32 v2, 2, v2'); A('v_lshl_add_u32 v2, v13, 1, v2'); A('v_add_lshl_u32 v2, v2, v12, 2')
    A('s_lshl_b32 s61, s61, 7'); A('v_add_u32 v3, s61, v2')
    A('s_barrier')
    poll([f'buffer_load_dwordx4 {V(vX+4*i,4)}, v1, {S(SWS)}, s{60 if i < 4 else 62} offen offset:{1024*(i&3)} sc1' for i in range(7)],
         range(vX, vX+28), 8)
    if p.stamps: A('s_memrealtime s[74:75]')
    for a, b in ((0, 4), (8, 12), (16, 20), (0, 8), (16, 24), (0, 16)):
        pk('add', vX+a, vX+a, vX+b); pk('add', vX+a+2, vX+a+2, vX+b+2)
    fold(vX, 4, 32); fold(vX, 2, 16); rors(vX, 1, (8,))
    A(f'ds_write_b32 v3, v{vX} offset:{L_G}')
    A('s_waitcnt lgkmcnt(0)')
    A('s_barrier')
    A('s_cmp_lg_u32 s3, 7'); A('s_cbranch_scc1 L_fin')
    for w in range(4): A(f'ds_read_b32 v{16+w}, v2 offset:{L_G+128*w}')
    A(f's_lshl_b32 s60, s{sR}, 6')
    A('s_waitcnt lgkmcnt(0)')
    pk('add', 16, 16, 18); A('v_add_f32 v16, v16, v17')
    rbf(16, 16); A('v_mul_f32 v16, v33, v16'); rbf(16, 16); A('v_add_f32 v16, v34, v16')
    A('v_cvt_pk_bf16_f32 v16, v16, v16')
    setexec(0x00ff00ff00ff00ff)
    A(f'buffer_store_short v16, v6, {S(SW2)}, s60 offen sc1')
    stamp(14)
    A('L_fin:')
    finish()

    A('.section .rodata,"a"'); A('.p2align 6'); A(f'.amdhsa_kernel {NAME}_kernel')
    for l in ['.amdhsa_next_free_vgpr 256', '.amdhsa_next_free_sgpr 102', '.amdhsa_accum_offset 256',
              '.amdhsa_group_segment_fixed_size 0', '.amdhsa_kernarg_size 112', '.amdhsa_user_sgpr_count 2',
              '.amdhsa_user_sgpr_kernarg_segment_ptr 1', '.amdhsa_system_sgpr_workgroup_id_x 1']: A(l)
    A('.end_amdhsa_kernel')
    return '\n'.join(head) + '\n' + A.text()

if __name__ == '__main__':
    p = P()
    out = sys.argv[1]
    for a in sys.argv[2:]:
        k, v = a.split('=')
        cur = getattr(p, k)
        setattr(p, k, (v == '1') if isinstance(cur, bool) else type(cur)(v))
    open(out, 'w').write(gen(p))
```

```python
import sys, struct
from asmlib import Asm

NAME = 'adaLN_cond__mha_block_cached__glu_gated_bilinear__decode'

def f32(x): return '0x%08x' % struct.unpack('<I', struct.pack('<f', x))[0]
LOG2E = 1.4426950408889634
SCALE = 128 ** -0.5

MODP = 0x00000
CLRF = 0x08000
QP   = 0x10000
LATE = 0x50000
OP   = 0x50000
YB   = 0x78000
Y2   = 0x98000
X2   = 0x178000
MODB = 0x179000
PRG  = 0x17e000
STMP = 0x200000
WS_BYTES = 0x300000
L_Q = 0; L_O = 256; L_M = 2304; L_L = 2320; L_G = 2560; L_PR = 3072; L_LV = 3088; L_GU = 4096; L_WD = 4096 + 16384; L_X = 4096 + 24576

class P:
    N = 5
    Nf = 5
    Nc = 5
    E = 24
    EL = 16
    blate = True
    hold = 0
    psh = 4
    pfull = 8
    pflag = 'sc1'
    psleep = 6
    ctl = True
    cps = '76,56,36,18'
    thr = '3,7,11,14'
    lv = '44445555,55555555,66655555,66666655,77666665'
    lv0 = 1
    lvc = '55555555'
    gw = 1
    csleep = 16
    up = 0
    upc = 0
    prio = 0
    Ne = 5
    Te = 0
    stamps = False
    wflag = 'nt'
    cflag = 'sc1 nt'
    limit = 1 << 17
    guearly = False
    gosleep = 2
    h0sleep = 1
    xsleep = 2
    skip = ''

def srd(A, d, ptr, nbytes, add=None):
    if add is None:
        A(f's_mov_b32 s{d}, s{ptr}'); A(f's_mov_b32 s{d+1}, s{ptr+1}')
    else:
        A(f's_add_u32 s{d}, s{ptr}, {add}'); A(f's_addc_u32 s{d+1}, s{ptr+1}, 0')
    A(f's_mov_b32 s{d+2}, {nbytes}'); A(f's_mov_b32 s{d+3}, 0x20000')

def S(d): return f's[{d}:{d+3}]'
def V(a, n): return f'v[{a}:{a+n-1}]'

SK, SV = 44, 48
SWS, SDBG, SW, SW2 = 44, 48, 52, 56
PLO, PHI = 69, 70
sX, sIdx, sH, sB, sJ, sP, sFB, sR = 32, 33, 34, 35, 36, 37, 38, 39

def gen(p):
    A = Asm()
    def stamp(k):
        if p.stamps: A(f's_memrealtime s[{72+2*k}:{73+2*k}]')
    def finish(n=15):
        if p.stamps:
            A('s_branch L_flush')
        else:
            A('s_endpgm')

    hdr = open('cdna_kernels/' + NAME + '.s.ref').read().split('\n')
    head = []
    for l in hdr:
        if l.startswith('; @launch'):
            head.append(f'; @launch grid=(256,1,1) block=(512,1,1) lds={L_X + 8192*p.EL}')
            break
        head.append(l)
    A('.amdgcn_target "amdgcn-amd-amdhsa--gfx950"')
    A('.text'); A(f'.globl {NAME}_kernel'); A('.p2align 8'); A(f'.type {NAME}_kernel,@function')
    A(f'{NAME}_kernel:')
    A('s_cmp_ge_u32 s2, 256'); A('s_cbranch_scc1 L_exit')
    A('s_load_dwordx16 s[4:19], s[0:1], 0')
    A('s_load_dwordx8 s[20:27], s[0:1], 64')
    A('s_load_dwordx4 s[28:31], s[0:1], 96')
    if p.stamps:
        for k in range(1, 15): A(f's_mov_b32 s{72+2*k}, 0')
    stamp(0)
    if p.hold: A('s_memrealtime s[100:101]')
    A('v_lshrrev_b32 v1, 6, v0'); A('v_and_b32 v0, 63, v0'); A('v_readfirstlane_b32 s3, v1')
    A(f's_and_b32 s{sX}, s2, 7'); A(f's_lshr_b32 s{sIdx}, s2, 3')
    A(f's_lshr_b32 s61, s{sIdx}, 3'); A(f's_lshl_b32 s60, s{sX}, 2'); A(f's_add_u32 s{sH}, s61, s60')
    A(f's_and_b32 s{sJ}, s{sIdx}, 7'); A(f's_lshr_b32 s{sB}, s{sJ}, 2')
    A(f's_and_b32 s60, s{sJ}, 3'); A(f's_lshl_b32 s{sP}, s{sH}, 2'); A(f's_add_u32 s{sP}, s{sP}, s60')
    A(f's_lshl_b32 s60, s{sB}, 7'); A(f's_add_u32 s{sP}, s{sP}, s60')
    A('s_cmp_ge_u32 s3, 4'); A('s_cbranch_scc1 L_helper')

    vOff, vS, vP, vLo, vHi, vM, vNM, vL, vT, vU, vA = 1, 2, 3, 4, 5, 6, 7, 8, 9, 10, 11
    vQ, vAcc, vRing, vExt = 12, 16, 24, 56
    N, E, EL, Nf, Nc = p.N, p.E, p.EL, p.Nf, p.Nc
    vTmp = vExt + 8*E
    assert vTmp + 8 <= 256 and (E + EL) % 4 == 0 and max(N, Nc) <= 7
    A(f's_lshl_b32 s60, s{sP}, 21')
    A('s_lshl_b32 s61, s3, 10'); A('v_lshlrev_b32 v1, 4, v0'); A('v_add_u32 v1, s61, v1')
    A(f's_mul_i32 s62, s3, {2048*EL}'); A(f's_add_u32 s62, s62, {L_X}'); A('s_mov_b32 m0, s62')
    A('s_waitcnt lgkmcnt(0)')
    srd(A, SK, 6, 1 << 21, 's60'); srd(A, SV, 8, 1 << 21, 's60')
    def issue(n, reg):
        if reg is None:
            A(f'buffer_load_dwordx4 v{vOff}, {S(SV if n & 1 else SK)}, 0 offen nt lds')
            A('s_add_u32 m0, m0, 0x400')
        else:
            A(f'buffer_load_dwordx4 {V(reg,4)}, v{vOff}, {S(SV if n & 1 else SK)}, 0 offen nt')
        if n & 1: A(f'v_add_u32 v{vOff}, 0x1000, v{vOff}')
        elif reg is None and n < Nf: A('s_nop 0')
    NX = 2*(E + EL)
    if p.prio: A(f's_setprio {p.prio}')
    for n in range(NX + Nc):
        if n >= Nf: A(f's_waitcnt vmcnt({Nf-1})')
        if n == 0: stamp(6)
        if n == Nf: stamp(7)
        if n == 12: stamp(8)
        if n == 36: stamp(9)
        if n == 56: stamp(10)
        issue(n, None if n < 2*EL else vExt + 4*(n - 2*EL) if n < NX else vRing + 4*(n - NX))
        if n == Nf - 1:
            A(f'v_mov_b32 v{vM}, {f32(-1e38)}'); A(f'v_mov_b32 v{vNM}, {f32(1e38*LOG2E)}'); A(f'v_mov_b32 v{vL}, 0')
            for e in range(8): A(f'v_mov_b32 v{vAcc+e}, 0')
            A(f'v_and_b32 v{vT}, 15, v0'); A(f'v_lshlrev_b32 v{vT}, 4, v{vT}')
            A(f'v_lshl_add_u32 v0, v0, 4, s62')
    A(f's_lshl_b32 s61, s3, 2'); A(f'v_mov_b32 v{vU}, s61'); A(f'v_mov_b32 v{vA}, 0x7fff'); A(f'v_mov_b32 v{vS}, {p.lv0}')
    A(f'ds_write_b32 v{vU}, v{vA} offset:{L_PR}'); A(f'ds_write_b32 v{vU}, v{vS} offset:{L_LV}')
    A('s_waitcnt lgkmcnt(0)')
    stamp(1)
    A('s_barrier')
    A(f'ds_read_b128 {V(vQ,4)}, v{vT} offset:{L_Q}')
    stamp(2)
    A('s_waitcnt lgkmcnt(0)')
    stubs = []
    def kwork(r):
        A(f'v_dot2_f32_bf16 v{vS}, v{r}, v{vQ}, 0')
        for i in (1, 2, 3): A(f'v_dot2_f32_bf16 v{vS}, v{r+i}, v{vQ+i}, v{vS}')
        for k in (8, 4, 2, 1): A(f'v_add_f32_dpp v{vS}, v{vS}, v{vS} row_ror:{k} row_mask:0xf bank_mask:0xf')
        A(f'v_cvt_pk_bf16_f32 v{vS}, 0, v{vS}')
        A(f'v_mul_f32 v{vS}, {f32(SCALE)}, v{vS}')
        A(f'v_cvt_pk_bf16_f32 v{vS}, 0, v{vS}')
        A(f'v_cmp_gt_f32 vcc, v{vS}, v{vM}')
        st = A.label('rs'); stubs.append(st)
        A(f's_cbranch_vccnz {st}'); A(f'{st}_b:')
        A(f'v_fmamk_f32 v{vP}, v{vS}, {f32(LOG2E)}, v{vNM}')
        A(f'v_exp_f32 v{vP}, v{vP}')
        A(f'v_cvt_pk_bf16_f32 v{vLo}, v{vP}, 0')
        A(f'v_cvt_pk_bf16_f32 v{vHi}, 0, v{vP}')
        A(f'v_add_f32 v{vL}, v{vL}, v{vP}')
    def vwork(r):
        for i in range(4):
            A(f'v_dot2c_f32_bf16 v{vAcc+2*i}, v{r+i}, v{vLo}')
            A(f'v_dot2c_f32_bf16 v{vAcc+2*i+1}, v{r+i}, v{vHi}')
    issued = [Nc]
    def step(j, W):
        A(f's_waitcnt vmcnt({issued[0] - j - 1})')
        while issued[0] < j + 1 + W:
            issue(issued[0], vRing + 4*(issued[0] % 8)); issued[0] += 1
        (vwork if j & 1 else kwork)(vRing + 4*(j % 8))
    def loop(name, trips, W, pre, post, up=0):
        if trips == 0: return
        A(f's_movk_i32 s60, {trips}')
        A('.p2align 4')
        A(f'{name}:')
        pre()
        for j in range(8): step(j, int(p.lvc[j]))
        assert int(p.lvc[7]) == W
        issued[0] -= 8
        post()
        A('s_sub_u32 s60, s60, 1'); A('s_cmp_lg_u32 s60, 0'); A(f's_cbranch_scc1 {name}')
    def pre1():
        A('s_set_gpr_idx_on s61, gpr_idx(SRC0)')
        for i in range(8): A(f'v_mov_b32 v{vTmp+i}, v{vExt+i}')
        A('s_set_gpr_idx_off'); A('s_add_u32 s61, s61, 8')
    def pre2():
        A(f'ds_read_b128 {V(vTmp,4)}, v0'); A(f'ds_read_b128 {V(vTmp+4,4)}, v0 offset:1024')
        A('v_add_u32 v0, 0x800, v0')
    def post1():
        kwork(vTmp); vwork(vTmp+4)
    def post2():
        A('s_waitcnt lgkmcnt(0)'); post1()
    A('s_mov_b32 s61, 0')
    A(f's_waitcnt vmcnt({Nc})')
    loop('L_cu1', E, Nc, pre1, post1, p.upc)
    loop('L_cu2', EL, Nc, pre2, post2, p.upc)
    left = (512 - E - EL)//4 - E - EL
    if Nc != N:
        for j in range(8): step(j, N)
        issued[0] -= 8; left -= 1
    assert issued[0] == N
    stamp(3)
    vPa, vPv, vLv = vExt, vExt+1, vExt+2
    levels = p.lv.split(',')
    A(f's_lshl_b32 s61, s3, 2'); A(f'v_mov_b32 v{vPa}, s61')
    A(f's_movk_i32 s60, {left}')
    A(f's_branch L_lv{p.lv0}')
    for k, pat in enumerate(levels):
        assert len(pat) == 8 and int(pat[7]) == N
        A('.p2align 4')
        A(f'L_lv{k}:')
        A(f'v_mov_b32 v{vPv}, s60')
        A(f'ds_write_b32 v{vPa}, v{vPv} offset:{L_PR}'); A(f'ds_read_b32 v{vLv}, v{vPa} offset:{L_LV}')
        for j in range(8): step(j, int(pat[j]))
        issued[0] -= 8
        assert issued[0] == N
        A('s_sub_u32 s60, s60, 1'); A('s_cbranch_scc1 L_never') if False else None
        A('s_waitcnt lgkmcnt(0)'); A(f'v_readfirstlane_b32 s61, v{vLv}')
        A('s_cmp_eq_u32 s60, 0'); A('s_cbranch_scc1 L_sdone')
        order = [k] + [x for x in range(len(levels)) if x != k]
        for x in order[:-1]:
            A(f's_cmp_eq_u32 s61, {x}'); A(f's_cbranch_scc1 L_lv{x}')
        A(f's_branch L_lv{order[-1]}')
    A('L_sdone:')
    A('v_mbcnt_lo_u32_b32 v0, -1, 0'); A('v_mbcnt_hi_u32_b32 v0, -1, v0')
    stamp(4)
    A(f'v_mov_b32 v{vT}, v{vL}')
    A(f'v_and_b32 v{vU}, 15, v0'); A(f'v_lshlrev_b32 v{vU}, 5, v{vU}')
    A(f'v_permlane32_swap_b32 v{vT}, v{vL}')
    A(f'v_lshrrev_b32 v{vA}, 4, v0')
    for e in range(4): A(f'v_permlane32_swap_b32 v{vAcc+e}, v{vAcc+e+4}')
    A(f'v_add_f32 v{vL}, v{vL}, v{vT}')
    for e in range(4): A(f'v_add_f32 v{vAcc+e}, v{vAcc+e}, v{vAcc+e+4}')
    A(f'v_mov_b32 v{vT}, v{vL}')
    A(f'v_lshl_add_u32 v{vU}, v{vA}, 3, v{vU}')
    for e in range(2): A(f'v_permlane16_swap_b32 v{vAcc+e}, v{vAcc+e+2}')
    A(f'v_permlane16_swap_b32 v{vT}, v{vL}')
    A(f's_lshl_b32 s61, s3, 9'); A(f'v_add_u32 v{vU}, s61, v{vU}')
    for e in range(2): A(f'v_add_f32 v{vAcc+e}, v{vAcc+e}, v{vAcc+e+2}')
    A(f'v_add_f32 v{vL}, v{vL}, v{vT}')
    A(f'ds_write_b64 v{vU}, {V(vAcc,2)} offset:{L_O}')
    A('s_lshl_b32 s61, s3, 2'); A(f'v_mov_b32 v{vA}, s61')
    A('s_mov_b64 exec, 1')
    A(f'ds_write_b32 v{vA}, v{vNM} offset:{L_M}'); A(f'ds_write_b32 v{vA}, v{vL} offset:{L_L}')
    A('s_waitcnt lgkmcnt(0)')
    A('s_barrier')
    stamp(5)
    if p.stamps:
        A('L_flush:')
        A('s_mov_b64 exec, 1')
        A('s_waitcnt lgkmcnt(0)')
        srd(A, SW2, 30, WS_BYTES)
        A('s_lshl_b32 s60, s2, 10'); A('s_lshl_b32 s61, s3, 7'); A('s_add_u32 s60, s60, s61'); A(f's_add_u32 s60, s60, {STMP}')
        A('v_mov_b32 v1, s60')
        for k in range(15):
            A(f'v_mov_b32 v2, s{72+2*k}')
            A(f'buffer_store_dword v2, v1, {S(SW2)}, 0 offen offset:{4*k} sc1')
        A('s_waitcnt vmcnt(0)')
    A('L_exit:')
    A('s_endpgm')
    for st in stubs:
        A(f'{st}:'); A('s_call_b64 s[40:41], L_rescale'); A(f's_branch {st}_b')
    A('L_rescale:')
    A(f'v_mov_b32 v{vT}, v{vS}'); A(f'v_mov_b32 v{vU}, v{vS}')
    A(f'v_permlane32_swap_b32 v{vT}, v{vU}')
    A(f'v_max_f32 v{vT}, v{vT}, v{vU}'); A(f'v_mov_b32 v{vU}, v{vT}')
    A(f'v_permlane16_swap_b32 v{vT}, v{vU}')
    A(f'v_max3_f32 v{vM}, v{vT}, v{vU}, v{vM}')
    A(f'v_mul_f32 v{vT}, {f32(-LOG2E)}, v{vM}')
    A(f'v_sub_f32 v{vA}, v{vT}, v{vNM}')
    A(f'v_exp_f32 v{vA}, v{vA}')
    A(f'v_mov_b32 v{vNM}, v{vT}')
    A(f'v_mul_f32 v{vL}, v{vL}, v{vA}')
    for e in range(8): A(f'v_mul_f32 v{vAcc+e}, v{vAcc+e}, v{vA}')
    A('s_setpc_b64 s[40:41]')

    vOwn, vA0, vA1, vW, vSp, vAc, vX = 16, 24, 32, 40, 104, 106, 128
    wf = p.wflag
    def dpp(op, d, a, b, ctl, rm='0xf'): A(f'{op}_dpp v{d}, v{a}, v{b} {ctl} row_mask:{rm} bank_mask:0xf')
    def movdpp(d, a, ctl): A(f'v_mov_b32_dpp v{d}, v{a} {ctl} row_mask:0xf bank_mask:0xf')
    def rbf(d, s): A(f'v_cvt_pk_bf16_f32 v{d}, 0, v{s}')
    def pk(op, d, a, b, bc=False): A(f'v_pk_{op}_f32 {V(d,2)}, {V(a,2)}, {V(b,2)}' + (' op_sel_hi:[1,0]' if bc else ''))
    def bail(back):
        A('s_add_u32 s68, s68, 1'); A(f's_cmp_lt_u32 s68, {p.limit}'); A(f's_cbranch_scc1 {back}')
    def maxall(d, regs):
        regs = list(regs)
        if len(regs) == 1: return regs[0]
        if len(regs) == 2: A(f'v_max_u32 v{d}, v{regs[0]}, v{regs[1]}'); return d
        A(f'v_max3_u32 v{d}, v{regs[0]}, v{regs[1]}, v{regs[2]}'); regs = regs[3:]
        while len(regs) >= 2:
            A(f'v_max3_u32 v{d}, v{d}, v{regs[0]}, v{regs[1]}'); regs = regs[2:]
        if regs: A(f'v_max_u32 v{d}, v{d}, v{regs[0]}')
        return d
    def poll(loads, regs, tmp, sleep=0):
        L = A.label('poll'); D = L + '_d'
        A('s_mov_b32 s68, 0')
        A(f'{L}:')
        for l in loads: A(l)
        A('s_waitcnt vmcnt(0)')
        t = maxall(tmp, regs)
        A(f'v_cmpx_eq_u32 vcc, -1, v{t}')
        A(f's_cbranch_execz {D}')
        if sleep: A(f's_sleep {sleep}')
        bail(L)
        A(f'{D}:')
        A('s_mov_b64 exec, -1')
    def waitprog(lim, all4):
        L = A.label('prog'); D = L + '_d'
        A('s_mov_b32 s68, 0'); A('v_mov_b32 v15, 0')
        A(f'{L}:')
        if all4:
            A(f'ds_read_b128 v[8:11], v15 offset:{L_PR}') if False else None
            A(f'ds_read_b64 v[8:9], v15 offset:{L_PR}'); A(f'ds_read_b64 v[6:7], v15 offset:{L_PR+8}')
            A('s_waitcnt lgkmcnt(0)'); A('v_max3_u32 v14, v8, v9, v6'); A('v_max_u32 v14, v14, v7')
        else:
            A(f'ds_read_b32 v14, v15 offset:{L_PR}'); A('s_waitcnt lgkmcnt(0)')
        A(f'v_cmp_lt_u32 vcc, {lim}, v14'); A(f's_cbranch_vccz {D}')
        A(f's_sleep {p.psleep}')
        bail(L)
        A(f'{D}:')
    def waitflag(off, sleep, want=None):
        L = A.label('flag'); D = L + '_d'
        A('s_mov_b32 s68, 0'); A('s_mov_b64 exec, 1'); A('v_mov_b32 v15, 0')
        A(f'{L}:')
        A(f'buffer_load_dword v14, v15, {S(SDBG)}, 0 offen offset:{off} sc1')
        A('s_waitcnt vmcnt(0)')
        A('v_cmp_eq_u32 vcc, 0, v14' if want is None else f'v_cmp_ne_u32 vcc, {want}, v14'); A(f's_cbranch_vccz {D}')
        A(f's_sleep {sleep}')
        bail(L)
        A(f'{D}:')
        A('s_mov_b64 exec, -1')
    def arrive(off, last, flagoff):
        D = A.label('arr')
        A('s_mov_b64 exec, 1'); A('v_mov_b32 v15, 0'); A('v_mov_b32 v14, 1')
        A(f'buffer_atomic_add v14, v15, {S(SDBG)}, 0 offen offset:{off} sc0 sc1')
        A('s_waitcnt vmcnt(0)')
        A(f'v_cmp_ne_u32 vcc, {last}, v14'); A(f's_cbranch_vccnz {D}')
        A(f'buffer_store_dword v14, v15, {S(SDBG)}, 0 offen offset:{flagoff} sc1')
        A(f'{D}:')
        A('s_mov_b64 exec, -1')
    def pair_perm(base, npairs, spare, w=4):
        m = {}; free = spare
        for t in range(npairs):
            for j in range(w):
                a, b = base + 2*w*t + j, base + 2*w*t + w + j
                A(f'v_perm_b32 v{free}, v{b}, v{a}, s{PLO}'); m[(t, 2*j)] = free
                A(f'v_perm_b32 v{b}, v{b}, v{a}, s{PHI}'); m[(t, 2*j+1)] = b
                free = a
        return m
    def zero(r, n):
        for e in range(n): A(f'v_mov_b32 v{r+e}, 0')
    def mv_dots(m):
        for t in range(8):
            for e in range(8):
                A(f'v_dot2c_f32_bf16 v{vAc+e}, v{vA0+t}, v{m[(t,e)]}')
                A(f'v_dot2c_f32_bf16 v{vAc+8+e}, v{vA1+t}, v{m[(t,e)]}')
    def fold(r, n, which):
        h = n // 2
        for e in range(h): A(f'v_permlane{which}_swap_b32 v{r+e}, v{r+h+e}')
        for e in range(h): A(f'v_add_f32 v{r+e}, v{r+e}, v{r+h+e}')
    def rors(r, n, ks):
        for k in ks:
            for e in range(n): dpp('v_add_f32', r+e, r+e, r+e, f'row_ror:{k}')
    def allsum_parity(r, t):
        rors(r, 1, (2, 4, 8))
        A(f'v_mov_b32 v{t}, v{r}'); A(f'v_permlane16_swap_b32 v{t}, v{r}'); A(f'v_add_f32 v{r}, v{r}, v{t}')
        A(f'v_mov_b32 v{t}, v{r}'); A(f'v_permlane32_swap_b32 v{t}, v{r}'); A(f'v_add_f32 v{r}, v{r}, v{t}')
    def unpack(dst, src, n):
        for i in range(n):
            A(f'v_lshlrev_b32 v{dst+2*i}, 16, v{src+i}'); A(f'v_and_b32 v{dst+2*i+1}, 0xffff0000, v{src+i}')
    def setexec(mask):
        lo, hi = mask & 0xffffffff, mask >> 32
        A(f's_mov_b32 exec_lo, 0x{lo:x}'); A(f's_mov_b32 exec_hi, 0x{hi:x}')
    def ln_tail(nmean, var):
        rbf(var, var); rbf(nmean, nmean)
        A(f'v_add_f32 v{var}, {f32(1e-5)}, v{var}'); rbf(var, var)
        A(f'v_sqrt_f32 v{var}, v{var}'); rbf(var, var); A(f'v_rcp_f32 v{var}, v{var}')

    def modcalc(x):
        A(f's_waitcnt vmcnt({16+x})')
        unpack(vX, vOwn, 8)
        for i in range(16): A(f'v_mul_f32 v{vX+16+i}, {f32(-LOG2E)}, v{vX+i}')
        for i in range(16): A(f'v_exp_f32 v{vX+16+i}, v{vX+16+i}')
        for i in range(16): A(f'v_add_f32 v{vX+16+i}, 1.0, v{vX+16+i}')
        for i in range(16): A(f'v_rcp_f32 v{vX+16+i}, v{vX+16+i}')
        for i in range(0, 16, 2): pk('mul', vX+i, vX+i, vX+16+i)
        for i in range(8): A(f'v_cvt_pk_bf16_f32 v{vOwn+i}, v{vX+2*i}, v{vX+2*i+1}')
        for t in range(8):
            movdpp(vA0+t, vOwn+t, 'quad_perm:[0,0,2,2]'); movdpp(vA1+t, vOwn+t, 'quad_perm:[1,1,3,3]')
        stamp(1)
        free = vSp
        for t in range(8):
            A(f's_waitcnt vmcnt({14-2*t+x})')
            m = {}
            for j in range(4):
                a, b = vW + 8*t + j, vW + 8*t + 4 + j
                A(f'v_perm_b32 v{free}, v{b}, v{a}, s{PLO}'); m[2*j] = free
                A(f'v_perm_b32 v{b}, v{b}, v{a}, s{PHI}'); m[2*j+1] = b
                free = a
            for e in range(8):
                A(f'v_dot2c_f32_bf16 v{vAc+e}, v{vA0+t}, v{m[e]}')
                A(f'v_dot2c_f32_bf16 v{vAc+8+e}, v{vA1+t}, v{m[e]}')
        stamp(2)

    A('L_helper:')
    A(f's_mov_b32 s{PLO}, 0x05040100'); A(f's_mov_b32 s{PHI}, 0x07060302')
    A('v_and_b32 v11, 1, v0'); A('v_bfe_u32 v12, v0, 4, 1'); A('v_lshrrev_b32 v13, 5, v0')
    A('v_mov_b32 v5, 0'); A('v_mov_b32 v6, 0')
    A(f's_lshr_b32 s60, s{sIdx}, 3'); A('s_lshl_b32 s60, s60, 3'); A(f's_add_u32 s60, s60, s{sX}')
    A(f's_lshl_b32 s{sFB}, s60, 3'); A(f's_add_u32 s{sFB}, s{sFB}, s{sJ}')
    A(f's_sub_u32 s60, s{sIdx}, 8'); A(f's_lshl_b32 s61, s{sX}, 2'); A(f's_add_u32 s{sR}, s60, s61')
    A('s_cmp_lt_u32 s60, 4'); A(f's_cselect_b32 s{sR}, s{sR}, 64')
    A('s_waitcnt lgkmcnt(0)')
    srd(A, SWS, 30, WS_BYTES); srd(A, SDBG, 28, 256)
    A('s_cmp_eq_u32 s3, 5'); A('s_cbranch_scc1 L_taskB')
    A('s_cmp_eq_u32 s3, 6'); A('s_cbranch_scc1 L_clear')
    A('s_cmp_eq_u32 s3, 7'); A(f's_cbranch_scc1 {"L_stage" if p.guearly else "L_bar2"}')
    A('s_cmp_ge_u32 s2, 64'); A('s_cbranch_scc1 L_bar2')
    A('s_and_b32 s62, s2, 15'); A('s_lshr_b32 s63, s2, 4')
    A('s_call_b64 s[42:43], L_modload')
    for i in range(4): A(f'v_mov_b32 v{4+i}, -1')
    A('s_lshl_b32 s61, s2, 12'); A('v_lshl_add_u32 v3, v0, 4, s61'); A(f's_mov_b32 s60, {QP}')
    for i in range(4): A(f'buffer_store_dwordx4 v[4:7], v3, {S(SWS)}, s60 offen offset:{1024*i} {p.cflag}')
    A('s_lshl_b32 s61, s2, 4'); A(f's_add_u32 s61, s61, {CLRF}'); A('v_mov_b32 v3, 0'); A('s_mov_b64 exec, 1')
    A(f'buffer_store_dwordx4 v[4:7], v3, {S(SWS)}, s61 offen sc1')
    A('s_mov_b64 exec, -1')
    zero(vAc, 16)
    modcalc(5)
    fold(vAc, 16, 32); fold(vAc, 8, 16); rors(vAc, 4, (8,))
    A('v_and_b32 v1, 7, v0'); A('v_lshlrev_b32 v1, 5, v1'); A('v_lshl_add_u32 v1, v12, 4, v1'); A('v_lshl_add_u32 v1, v13, 8, v1')
    A('s_lshl_b32 s60, s62, 2'); A('s_add_u32 s60, s60, s63'); A('s_lshl_b32 s60, s60, 9')
    setexec(0x00ff00ff00ff00ff)
    A(f'buffer_store_dwordx4 {V(vAc,4)}, v1, {S(SWS)}, s60 offen sc1')
    stamp(3)
    A('s_waitcnt vmcnt(0)')
    stamp(4)
    arrive(0, 63, 128)
    stamp(5)
    A('s_branch L_bar2')
    A('L_modload:')
    srd(A, SW2, 22, 2048); srd(A, SW, 24, 512*3072*2)
    A('v_lshrrev_b32 v10, 3, v0')
    A('v_lshlrev_b32 v1, 5, v10'); A('v_lshl_add_u32 v1, v11, 10, v1'); A('s_lshl_b32 s60, s63, 8')
    A(f'buffer_load_dwordx4 {V(vOwn,4)}, v1, {S(SW2)}, s60 offen')
    A(f'buffer_load_dwordx4 {V(vOwn+4,4)}, v1, {S(SW2)}, s60 offen offset:16')
    A(f's_mov_b32 s60, {16*6144}'); A('v_mul_lo_u32 v1, s60, v10'); A('v_and_b32 v2, 7, v0'); A('v_lshl_add_u32 v1, v2, 4, v1')
    A(f's_mul_i32 s60, s63, {128*6144}'); A('s_lshl_b32 s61, s62, 7'); A('s_add_u32 s60, s60, s61')
    for i in range(16):
        A(f'buffer_load_dwordx4 {V(vW+4*i,4)}, v1, {S(SW)}, s60 offen {wf}')
        if i < 15: A('s_add_u32 s60, s60, 6144')
    A('s_setpc_b64 s[42:43]')
    A('L_clear:')
    for i in range(4): A(f'v_mov_b32 v{4+i}, -1')
    A('s_mul_i32 s61, s2, 5120'); A('v_lshl_add_u32 v3, v0, 4, s61'); A(f's_mov_b32 s60, {LATE}'); A(f's_mov_b32 s61, {LATE+4096}')
    if 'c' not in p.skip:
        for i in range(4): A(f'buffer_store_dwordx4 v[4:7], v3, {S(SWS)}, s60 offen offset:{1024*i} {p.cflag}')
        A(f'buffer_store_dwordx4 v[4:7], v3, {S(SWS)}, s61 offen {p.cflag}')
    A('s_waitcnt vmcnt(0)')
    A('s_branch L_bar2')
    A('L_taskB:')
    srd(A, SW2, 4, 2048); srd(A, SW, 10, 512*4096*2)
    A('v_lshrrev_b32 v10, 1, v0'); A('v_lshlrev_b32 v1, 5, v10'); A('v_lshl_add_u32 v1, v11, 10, v1')
    A(f'buffer_load_dwordx4 {V(vOwn,4)}, v1, {S(SW2)}, 0 offen')
    A(f'buffer_load_dwordx4 {V(vOwn+4,4)}, v1, {S(SW2)}, 0 offen offset:16')
    A('v_lshrrev_b32 v9, 4, v0'); A('v_and_b32 v8, 14, v0'); A('v_lshl_add_u32 v8, v9, 4, v8')
    A('v_lshlrev_b32 v1, 1, v8'); A('v_lshl_add_u32 v1, v11, 10, v1'); A(f's_lshl_b32 s60, s{sJ}, 7')
    A(f'buffer_load_dword v7, v1, {S(SW2)}, s60 offen')
    A('v_lshlrev_b32 v1, 17, v9'); A('v_and_b32 v10, 15, v0'); A('v_lshl_add_u32 v1, v10, 4, v1')
    A(f's_lshl_b32 s60, s{sJ}, 19'); A(f's_lshl_b32 s61, s{sH}, 8'); A('s_add_u32 s60, s60, s61')
    def wqloads():
        for i in range(16):
            A(f'buffer_load_dwordx4 {V(vW+4*i,4)}, v1, {S(SW)}, s60 offen {wf}')
            if i < 15: A('s_add_u32 s60, s60, 8192')
    if not p.blate:
        wqloads(); A('s_waitcnt vmcnt(16)')
    else:
        A('s_waitcnt vmcnt(0)')
    unpack(vX, vOwn, 8)
    w = vX + 16
    pk('add', w, vX, vX+2)
    for i in range(4, 16, 2): pk('add', w, w, vX+i)
    A(f'v_add_f32 v2, v{w}, v{w+1}')
    allsum_parity(2, 3)
    A(f'v_mul_f32 v2, {f32(-1.0/512)}, v2')
    for i in range(0, 16, 2): pk('add', w+i, vX+i, 2, True)
    pk('mul', 4, w, w)
    for i in range(2, 16, 2): A(f'v_pk_fma_f32 v[4:5], {V(w+i,2)}, {V(w+i,2)}, v[4:5]')
    A('v_add_f32 v4, v4, v5')
    allsum_parity(4, 5)
    A(f'v_mul_f32 v4, {f32(1.0/512)}, v4')
    if p.blate: wqloads()
    ln_tail(2, 4)
    unpack(vX, 7, 1)
    pk('add', vX, vX, 2, True); rbf(vX, vX); rbf(vX+1, vX+1)
    pk('mul', vX, vX, 4, True); rbf(vX, vX); rbf(vX+1, vX+1)
    zero(vAc, 16)
    A('v_lshlrev_b32 v6, 2, v8'); A('v_lshl_add_u32 v6, v11, 8, v6')
    A('v_lshlrev_b32 v1, 5, v10'); A('v_lshl_add_u32 v1, v12, 4, v1'); A('v_lshl_add_u32 v1, v13, 12, v1')
    A(f's_lshl_b32 s62, s{sJ}, 11'); A('s_add_u32 s63, s62, 16384')
    stamp(1)
    A('s_waitcnt vmcnt(0)')
    stamp(2)
    m = pair_perm(vW, 8, vSp)
    waitflag(128, p.gosleep)
    stamp(3)
    for i in range(4):
        A(f'buffer_load_dwordx2 {V(vX+2+2*i,2)}, v6, {S(SWS)}, s63 offen offset:{512*i} sc1')
    for i in range(4):
        A(f'buffer_load_dwordx2 {V(vX+10+2*i,2)}, v6, {S(SWS)}, s62 offen offset:{512*i} sc1')
    A(f's_lshl_b32 s60, s{sH}, 13'); A(f's_lshl_b32 s61, s{sJ}, 9'); A('s_add_u32 s61, s61, s60'); A(f's_add_u32 s61, s61, {QP}')
    A(f's_lshl_b32 s62, s{sB}, 12'); A('s_add_u32 s60, s60, s62'); A(f's_add_u32 s60, s60, {QP}')
    A('s_waitcnt vmcnt(4)')
    c1, sa = vX+2, vX+10
    pk('add', c1, c1, c1+2); pk('add', c1+4, c1+4, c1+6); pk('add', c1, c1, c1+4)
    rbf(c1, c1); rbf(c1+1, c1+1)
    A(f'v_add_f32 v{c1}, 1.0, v{c1}'); A(f'v_add_f32 v{c1+1}, 1.0, v{c1+1}')
    rbf(c1, c1); rbf(c1+1, c1+1)
    pk('mul', vX, vX, c1); rbf(vX, vX); rbf(vX+1, vX+1)
    A('s_waitcnt vmcnt(0)')
    stamp(4)
    pk('add', sa, sa, sa+2); pk('add', sa+4, sa+4, sa+6); pk('add', sa, sa, sa+4)
    rbf(sa, sa); rbf(sa+1, sa+1)
    pk('add', vX, vX, sa)
    A(f'v_cvt_pk_bf16_f32 v{vOwn}, v{vX}, v{vX+1}')
    for t in range(8):
        movdpp(vA0+t, vOwn, f'row_newbcast:{2*t}'); movdpp(vA1+t, vOwn, f'row_newbcast:{2*t+1}')
    mv_dots(m)
    fold(vAc, 16, 32); fold(vAc, 8, 16)
    A(f'buffer_store_dwordx4 {V(vAc,4)}, v1, {S(SWS)}, s61 offen sc1')
    stamp(5)
    A('v_lshlrev_b32 v1, 4, v0')
    A('v_and_b32 v2, 31, v0'); A('v_lshlrev_b32 v2, 3, v2'); A('v_lshl_add_u32 v2, v13, 2, v2')
    A('s_waitcnt vmcnt(0)')
    poll([f'buffer_load_dwordx4 {V(vX+4*i,4)}, v1, {S(SWS)}, s60 offen offset:{1024*i} sc1' for i in range(4)],
         range(vX, vX+16), 8, sleep=1)
    for a, b in ((0, 4), (8, 12), (0, 8)):
        pk('add', vX+a, vX+a, vX+b); pk('add', vX+a+2, vX+a+2, vX+b+2)
    fold(vX, 4, 32)
    A(f'v_cvt_pk_bf16_f32 v3, v{vX}, v{vX+1}')
    A(f'ds_write_b32 v2, v3 offset:{L_Q}')
    A('s_waitcnt lgkmcnt(0)')
    stamp(6)
    A('L_bar2:')
    A('s_barrier')
    A('s_cmp_eq_u32 s3, 5'); A('s_cbranch_scc1 L_wo')
    A('s_cmp_eq_u32 s3, 4'); A('s_cbranch_scc1 L_bgA')
    A('s_cmp_eq_u32 s3, 7'); A(f's_cbranch_scc1 {"L_wo" if p.guearly else "L_stage"}')
    A('s_mov_b64 exec, 1'); A('v_mov_b32 v15, 0'); A('s_lshl_b32 s61, s2, 2'); A(f's_add_u32 s61, s61, {CLRF}')
    if 'f' not in p.skip: A(f'buffer_store_dword v15, v15, {S(SWS)}, s61 offen sc1')
    A('s_mov_b64 exec, -1')
    waitprog(left, True)
    srd(A, SW, 12, 4096*512*2)
    A('v_lshrrev_b32 v3, 3, v0'); A('v_lshlrev_b32 v1, 13, v3'); A('v_and_b32 v2, 7, v0'); A('v_lshl_add_u32 v1, v2, 4, v1')
    A(f's_lshl_b32 s60, s{sH}, 17'); A(f's_lshl_b32 s61, s{sJ}, 7'); A('s_add_u32 s60, s60, s61')
    for n in range(16 if 'o' not in p.skip else 0):
        A(f's_add_u32 s61, s60, {(n>>3)*65536 + (n&4)*1024}')
        A(f'buffer_load_dwordx4 {V(vX+4*n,4)}, v1, {S(SW)}, s61 offen offset:{(n&3)*1024} {wf}')
        A('s_waitcnt vmcnt(2)')
    A('v_lshlrev_b32 v3, 6, v3'); A('v_and_b32 v4, 3, v0'); A('v_lshl_add_u32 v3, v4, 4, v3'); A('v_bfe_u32 v4, v0, 2, 1'); A('v_lshl_add_u32 v3, v4, 13, v3')
    A('s_waitcnt vmcnt(0)')
    for hf in range(2):
        for t in range(4):
            for j in range(4):
                a_, b_ = vX + 32*hf + 8*t + j, vX + 32*hf + 8*t + 4 + j
                d = 192 + 32*hf + 8*t + 2*j
                A(f'v_perm_b32 v{d}, v{b_}, v{a_}, s{PLO}'); A(f'v_perm_b32 v{d+1}, v{b_}, v{a_}, s{PHI}')
        for q in range(8): A(f'ds_write_b128 v3, {V(192+32*hf+4*q,4)} offset:{L_X + 1024*q + 512*hf}')
    A('s_waitcnt lgkmcnt(0)')
    A('s_branch L_wo')
    A('L_bgA:')
    A(f's_cmp_lt_u32 s{sFB}, 224'); A('s_cbranch_scc1 L_bgA_wait')
    A(f's_sub_u32 s62, s{sFB}, {224 - 16}'); A('s_mov_b32 s63, 0')
    zero(vAc, 16)
    A('L_bgA_loop:')
    if 'b' not in p.skip:
        A('s_call_b64 s[42:43], L_modload')
        modcalc(0)
    A('s_add_u32 s63, s63, 1'); A('s_cmp_lt_u32 s63, 4'); A('s_cbranch_scc1 L_bgA_loop')
    fold(vAc, 16, 32); fold(vAc, 8, 16); rors(vAc, 4, (8,))
    A('s_lshr_b32 s61, s62, 3'); A('s_cmp_eq_u32 s61, 4'); A('s_cselect_b32 s63, 1.0, 0')
    for e in range(4): rbf(vAc+e, vAc+e)
    for e in range(4): A(f'v_add_f32 v{vAc+e}, s63, v{vAc+e}')
    for e in range(4): rbf(vAc+e, vAc+e)
    A('L_bgA_wait:')
    waitprog(left, False)
    A('v_lshlrev_b32 v10, 4, v0'); A(f's_mov_b32 s60, {CLRF}')
    if 'f' not in p.skip: poll([f'buffer_load_dwordx4 v[4:7], v10, {S(SWS)}, s60 offen sc1'], range(4, 8), 8, sleep=p.csleep)
    A(f's_cmp_lt_u32 s{sFB}, 224'); A('s_cbranch_scc1 L_ctl')
    A('v_and_b32 v1, 7, v0'); A('v_lshlrev_b32 v1, 5, v1'); A('v_lshl_add_u32 v1, v12, 4, v1'); A('v_lshl_add_u32 v1, v13, 13, v1')
    A('s_lshl_b32 s60, s62, 8'); A(f's_add_u32 s60, s60, {MODB - 4096}')
    setexec(0x00ff00ff00ff00ff)
    A(f'buffer_store_dwordx4 {V(vAc,4)}, v1, {S(SWS)}, s60 offen sc1')
    A('s_mov_b64 exec, -1')
    A('L_ctl:')
    A('v_lshlrev_b32 v10, 2, v0'); A(f's_mov_b32 s62, {PRG}'); A('v_lshlrev_b32 v2, 7, v0'); A('v_lshlrev_b32 v3, 4, v0')
    A(f's_lshr_b32 s60, s{sIdx}, {p.psh}'); A('s_lshl_b32 s60, s60, 3'); A(f's_add_u32 s60, s60, s{sX}'); A('s_lshl_b32 s60, s60, 7'); A(f's_add_u32 s63, s60, {PRG}')
    for k, cp in enumerate(p.cps.split(',') if p.ctl else []):
        waitprog(int(cp), False)
        A('v_mov_b32 v14, -1'); setexec((1 << (256 >> p.psh)) - 1)
        if 'L' not in p.skip: A(f'buffer_load_dword v14, v2, {S(SWS)}, s62 offen sc1')
        A(f's_and_b32 s60, s{sIdx}, {(1 << p.psh) - 1}'); A(f's_cmp_lg_u32 s60, {(1 << p.psh)//2}'); A(f's_cbranch_scc1 L_nopub{k}')
        A(f's_mov_b64 exec, {(1 << p.pfull) - 1}')
        for i in range(4): A(f'v_mov_b32 v{4+i}, {cp}')
        if 'S' not in p.skip: A(f'buffer_store_dwordx4 v[4:7], v3, {S(SWS)}, s63 offen {p.pflag}')
        A(f'L_nopub{k}:')
        A('s_mov_b64 exec, -1')
        A('s_waitcnt vmcnt(0)'); A(f'v_cmp_ge_u32 vcc, {cp}, v14'); A('s_bcnt1_i32_b64 s60, vcc')
        A('s_mov_b64 exec, 15'); A('s_mov_b32 s61, 0')
        if p.stamps and k < 6: A(f's_add_u32 s{74+2*k}, s60, s72')
        for t in p.thr.split(','):
            A(f's_cmp_ge_u32 s60, {t}'); A('s_addc_u32 s61, s61, 0')
        A('v_mov_b32 v14, s61')
        A(f'ds_write_b32 v10, v14 offset:{L_LV}')
        A('s_mov_b64 exec, -1')
    A('s_branch L_wo')
    A('L_stage:')
    A(f's_cmp_ge_u32 s{sFB}, 224'); A('s_cbranch_scc1 L_stage_done')
    srd(A, SW, 16, 512*1792*2); srd(A, SW2, 18, 512*1792*2)
    A(f's_mov_b32 s60, {4*3584}'); A('v_mul_lo_u32 v1, s60, v0'); A(f's_lshl_b32 s61, s{sFB}, 4'); A('v_add_u32 v1, s61, v1')
    for i in range(8 if 'g' not in p.skip else 0):
        A(f's_mov_b32 s60, {(256*(i>>2) + (i&3))*3584}')
        A(f'buffer_load_dwordx4 {V(vX+8*i,4)}, v1, {S(SW)}, s60 offen {wf}')
        A(f's_waitcnt vmcnt({p.gw})')
        A(f'buffer_load_dwordx4 {V(vX+8*i+4,4)}, v1, {S(SW2)}, s60 offen {wf}')
        A(f's_waitcnt vmcnt({p.gw})')
    A('s_waitcnt vmcnt(0)')
    vD = 192
    for t in range(4):
        for j in range(8):
            a, b = vX + 16*t + j, vX + 16*t + 8 + j
            A(f'v_perm_b32 v{vD+16*t+2*j}, v{b}, v{a}, s{PLO}'); A(f'v_perm_b32 v{vD+16*t+2*j+1}, v{b}, v{a}, s{PHI}')
    srd(A, SW, 20, 1792*512*2)
    A(f's_lshl_b32 s60, s{sFB}, 13'); A('s_add_u32 s61, s60, 4096'); A('v_lshlrev_b32 v1, 3, v0')
    for r in range(8 if 'd' not in p.skip else 0):
        for u in range(2):
            A(f'buffer_load_dwordx2 {V(vX+4*r+2*u,2)}, v1, {S(SW)}, s{60+(r>>2)} offen offset:{(r&3)*1024+u*512} {wf}')
    A('v_lshlrev_b32 v2, 4, v0')
    for q in range(16): A(f'ds_write_b128 v2, {V(vD+4*q,4)} offset:{L_GU+1024*q}')
    A('s_waitcnt vmcnt(0) lgkmcnt(0)')
    for t in range(4):
        for j in range(4):
            a, b = vX + 8*t + j, vX + 8*t + 4 + j
            A(f'v_perm_b32 v{vD+8*t+2*j}, v{b}, v{a}, s{PLO}'); A(f'v_perm_b32 v{vD+8*t+2*j+1}, v{b}, v{a}, s{PHI}')
    for q in range(8): A(f'ds_write_b128 v2, {V(vD+4*q,4)} offset:{L_WD+1024*q}')
    A('s_waitcnt lgkmcnt(0)')
    A('L_stage_done:')
    if p.guearly: A('s_branch L_bar2')
    A('L_wo:')
    A('s_and_b32 s64, s3, 1'); A('s_bfe_u32 s65, s3, 0x10001')
    A('v_and_b32 v2, 3, v0')
    A('s_lshl_b32 s60, s64, 13'); A('v_lshl_add_u32 v7, v0, 4, s60')
    def woread():
        for q in range(8): A(f'ds_read_b128 {V(vW+4*q,4)}, v7 offset:{L_X + 1024*q}')
    mO = {(t, e): vW + 8*t + e for t in range(4) for e in range(8)}
    vY = vAc
    zero(vY, 8)
    A('v_lshlrev_b32 v1, 5, v2'); A('v_lshl_add_u32 v1, v13, 4, v1'); A('v_lshl_add_u32 v1, v12, 3, v1')
    A('s_lshl_b32 s66, s65, 4'); A(f's_lshl_b32 s61, s{sJ}, 1'); A('s_add_u32 s66, s66, s61'); A('s_add_u32 s66, s66, s64')
    A('s_lshl_b32 s66, s66, 5'); A(f's_add_u32 s66, s66, s{sH}'); A('s_lshl_b32 s66, s66, 7'); A(f's_add_u32 s66, s66, {YB}')
    A('v_lshlrev_b32 v3, 3, v0'); A('v_mul_u32_u24 v4, 640, v2')
    A('s_lshl_b32 s67, s65, 5'); A(f's_add_u32 s67, s67, s{sH}'); A('s_mul_i32 s67, s67, 2560'); A(f's_add_u32 s67, s67, {OP}')
    A(f's_mul_i32 s62, s{sP}, 640'); A(f's_add_u32 s62, s62, {OP}')
    A('v_mov_b32 v15, 0')
    stamp(7)
    A('s_barrier')
    stamp(8)
    if 'E' in p.skip: A('s_branch L_fin')
    A('s_cmp_lg_u32 s3, 4'); A('s_cbranch_scc1 L_notcomb')
    A(f'ds_read_b128 v[24:27], v15 offset:{L_M}'); A(f'ds_read_b128 v[28:31], v15 offset:{L_L}')
    for w in range(4): A(f'ds_read_b64 {V(16+2*w,2)}, v3 offset:{L_O+512*w}')
    A('s_waitcnt lgkmcnt(4)')
    A('v_min3_f32 v8, v24, v25, v26'); A('v_min_f32 v8, v8, v27')
    for w in range(4): A(f'v_sub_f32 v{24+w}, v8, v{24+w}')
    for w in range(4): A(f'v_exp_f32 v{24+w}, v{24+w}')
    A('s_waitcnt lgkmcnt(0)')
    A('v_mul_f32 v16, v24, v16'); A('v_mul_f32 v17, v24, v17'); A('v_mul_f32 v9, v24, v28')
    for w in range(1, 4):
        A(f'v_fmac_f32 v16, v{24+w}, v{16+2*w}'); A(f'v_fmac_f32 v17, v{24+w}, v{17+2*w}'); A(f'v_fmac_f32 v9, v{24+w}, v{28+w}')
    A(f'buffer_store_dwordx2 v[16:17], v3, {S(SWS)}, s62 offen sc1')
    A('s_mov_b64 exec, 1')
    A(f'buffer_store_dwordx2 v[8:9], v15, {S(SWS)}, s62 offen offset:512 sc1')
    A('s_mov_b64 exec, -1')
    stamp(9)
    woread()
    A('s_waitcnt vmcnt(0) lgkmcnt(0)')
    A('s_branch L_bar3b')
    A('L_notcomb:')
    woread()
    A('s_waitcnt lgkmcnt(0)')
    A('s_cmp_eq_u32 s3, 7'); A('s_cbranch_scc1 L_preR')
    vGU, vWD, vC1, vSB, vX2 = 128, 192, 224, 232, 240
    A(f's_cmp_ge_u32 s{sFB}, 224'); A('s_cbranch_scc1 L_bar3b')
    A('s_sub_u32 s63, s3, 5'); A('s_lshl_b32 s60, s63, 13'); A(f's_add_u32 s60, s60, {MODB + 2048}'); A('s_add_u32 s61, s60, 2048')
    A('v_lshlrev_b32 v5, 4, v0')
    for q in range(16): A(f'ds_read_b128 {V(vGU+4*q,4)}, v5 offset:{L_GU+1024*q}')
    A('s_waitcnt lgkmcnt(8)')
    for q in range(8): A(f'ds_read_b128 {V(vWD+4*q,4)}, v5 offset:{L_WD+1024*q}')
    poll([f'buffer_load_dwordx4 {V(vC1+4*i,4)}, v5, {S(SWS)}, s61 offen offset:{1024*i} sc1' for i in range(2)] +
         [f'buffer_load_dwordx4 {V(vSB+4*i,4)}, v5, {S(SWS)}, s60 offen offset:{1024*i} sc1' for i in range(2)],
         range(vC1, vC1+16), 8)
    A('s_waitcnt lgkmcnt(0)')
    A('s_branch L_bar3b')
    A('L_preR:')
    A(f's_cmp_ge_u32 s{sR}, 32'); A('s_cbranch_scc1 L_bar3b')
    srd(A, SW2, 4, 2048)
    A('v_and_b32 v5, 7, v0'); A('v_lshlrev_b32 v5, 2, v5'); A('v_lshl_add_u32 v5, v13, 1, v5'); A('v_add_u32 v5, v5, v12')
    A('v_lshlrev_b32 v6, 1, v5'); A('v_lshlrev_b32 v5, 2, v5')
    A(f's_lshl_b32 s60, s{sR}, 6')
    A(f'buffer_load_ushort v34, v6, {S(SW2)}, s60 offen')
    A(f's_lshr_b32 s60, s{sR}, 4'); A('s_lshl_b32 s60, s60, 13'); A(f's_and_b32 s61, s{sR}, 15'); A('s_lshl_b32 s61, s61, 7')
    A('s_add_u32 s60, s60, s61'); A(f's_add_u32 s60, s60, {MODB}'); A('s_add_u32 s61, s60, 6144')
    poll([f'buffer_load_dword v32, v5, {S(SWS)}, s60 offen sc1', f'buffer_load_dword v33, v5, {S(SWS)}, s61 offen sc1'], (32, 33), 8)
    A('v_lshlrev_b32 v34, 16, v34')
    A('L_bar3b:')
    A('s_barrier')
    poll([f'buffer_load_dwordx2 {V(16+2*i,2)}, v3, {S(SWS)}, s67 offen offset:{640*i} sc1' for i in range(4)] +
         [f'buffer_load_dwordx2 v[24:25], v4, {S(SWS)}, s67 offen offset:512 sc1'], range(16, 26), 8, sleep=p.h0sleep)
    stamp(10)
    dpp('v_min_f32', 26, 24, 24, 'quad_perm:[1,0,3,2]'); dpp('v_min_f32', 26, 26, 26, 'quad_perm:[2,3,0,1]')
    A('v_sub_f32 v24, v26, v24'); A('v_exp_f32 v24, v24'); A('v_mul_f32 v25, v24, v25')
    dpp('v_add_f32', 25, 25, 25, 'quad_perm:[1,0,3,2]'); dpp('v_add_f32', 25, 25, 25, 'quad_perm:[2,3,0,1]')
    A('v_rcp_f32 v25, v25'); A('v_mul_f32 v24, v24, v25')
    dpp('v_mul_f32', 16, 24, 16, 'quad_perm:[0,0,0,0]'); dpp('v_mul_f32', 17, 24, 17, 'quad_perm:[0,0,0,0]')
    for i in range(1, 4):
        dpp('v_fmac_f32', 16, 24, 16+2*i, f'quad_perm:[{i},{i},{i},{i}]'); dpp('v_fmac_f32', 17, 24, 17+2*i, f'quad_perm:[{i},{i},{i},{i}]')
    A('v_cvt_pk_bf16_f32 v16, v16, v17')
    for t in range(4): movdpp(20+t, 16, f'quad_perm:[{t},{t},{t},{t}]')
    for t in range(4):
        for e in range(8): A(f'v_dot2c_f32_bf16 v{vY+e}, v{20+t}, v{mO[(t,e)]}')
    fold(vY, 8, 32); fold(vY, 4, 16); rors(vY, 2, (8, 4))
    setexec(0x000f000f000f000f)
    A(f'buffer_store_dwordx2 {V(vY,2)}, v1, {S(SWS)}, s66 offen sc1')
    stamp(11)
    A('s_mov_b64 exec, -1')
    if 'Y' in p.skip: A('s_branch L_fin')
    A('s_cmp_eq_u32 s3, 7'); A('s_cbranch_scc1 L_taskR')
    A('s_cmp_eq_u32 s3, 4'); A('s_cbranch_scc1 L_toG')
    A(f's_cmp_ge_u32 s{sFB}, 224'); A('s_cbranch_scc1 L_fin')
    zero(vAc, 16); zero(16, 8)
    A('v_lshrrev_b32 v1, 3, v0'); A('v_mul_u32_u24 v1, 28672, v1'); A('v_and_b32 v2, 7, v0'); A('v_lshl_add_u32 v1, v2, 4, v1')
    A(f's_mul_i32 s66, s63, {16*28672}'); A(f's_lshl_b32 s61, s{sFB}, 7'); A('s_add_u32 s66, s66, s61'); A(f's_add_u32 s66, s66, {Y2}')
    A(f's_add_u32 s67, s66, {8*28672}')
    A('s_lshl_b32 s60, s63, 11'); A(f's_add_u32 s60, s60, {X2}')
    poll([f'buffer_load_dwordx4 {V(vX2+4*i,4)}, v5, {S(SWS)}, s60 offen offset:{1024*i} sc1' for i in range(2)],
         range(vX2, vX2+8), 8, sleep=p.xsleep)
    stamp(12)
    A(f'v_readfirstlane_b32 s60, v{vX2}')
    w = 24
    for i in range(0, 8, 2): A(f'v_pk_add_f32 {V(w+i,2)}, {V(vX2+i,2)}, s[60:61] op_sel_hi:[1,0] neg_lo:[0,1] neg_hi:[0,1]')
    pk('mul', 8, w, w); pk('add', 6, w, w+2)
    A(f'v_pk_fma_f32 v[8:9], {V(w+2,2)}, {V(w+2,2)}, v[8:9]'); pk('add', 6, 6, w+4)
    A(f'v_pk_fma_f32 v[8:9], {V(w+4,2)}, {V(w+4,2)}, v[8:9]'); pk('add', 6, 6, w+6)
    A(f'v_pk_fma_f32 v[8:9], {V(w+6,2)}, {V(w+6,2)}, v[8:9]')
    A('v_add_f32 v6, v6, v7'); A('v_add_f32 v7, v8, v9')
    rors(6, 2, (8, 4, 2, 1))
    for r in (6, 7): dpp('v_add_f32', r, r, r, 'row_bcast:15', '0xa')
    for r in (6, 7): dpp('v_add_f32', r, r, r, 'row_bcast:31', '0xc')
    A('v_readlane_b32 s61, v6, 63'); A('v_readlane_b32 s62, v7, 63')
    A(f'v_mov_b32 v8, {f32(1.0/512)}')
    A('v_mul_f32 v6, s61, v8'); A('v_mul_f32 v8, s62, v8')
    A('v_fma_f32 v8, -v6, v6, v8'); A('v_add_f32 v6, s60, v6'); A('v_max_f32 v8, 0, v8'); A('v_sub_f32 v6, 0, v6')
    ln_tail(6, 8)
    for i in range(0, 8, 2): pk('add', vX2+i, vX2+i, 6, True)
    for i in range(8): rbf(vX2+i, vX2+i)
    for i in range(0, 8, 2): pk('mul', vX2+i, vX2+i, 8, True)
    for i in range(8): rbf(vX2+i, vX2+i)
    for i in range(0, 8, 2): pk('mul', vX2+i, vX2+i, vC1+i)
    for i in range(8): rbf(vX2+i, vX2+i)
    for i in range(0, 8, 2): pk('add', vX2+i, vX2+i, vSB+i)
    for i in range(4): A(f'v_cvt_pk_bf16_f32 v{w+i}, v{vX2+2*i}, v{vX2+2*i+1}')
    for t in range(4):
        for c in range(16): A(f'v_dot2c_f32_bf16 v{vAc+c}, v{w+t}, v{vGU+16*t+c}')
    fold(vAc, 16, 32); fold(vAc, 8, 16); rors(vAc, 4, (8, 4, 2, 1))
    for e in range(4): rbf(vAc+e, vAc+e)
    for e in range(4): A(f'v_mov_b32 v{vAc+4+e}, v{vAc+e}')
    for e in range(4): A(f'v_permlane32_swap_b32 v{vAc+e}, v{vAc+4+e}')
    pk('mul', vAc, vAc, vAc+4); pk('mul', vAc+2, vAc+2, vAc+6)
    A(f'v_cvt_pk_bf16_f32 v6, v{vAc}, v{vAc+1}'); A(f'v_cvt_pk_bf16_f32 v7, v{vAc+2}, v{vAc+3}')
    A('v_readlane_b32 s60, v6, 0'); A('v_readlane_b32 s61, v7, 0'); A('v_readlane_b32 s62, v6, 16'); A('v_readlane_b32 s63, v7, 16')
    for t in range(4):
        for c in range(8): A(f'v_dot2c_f32_bf16 v{16+c}, s{60+t}, v{vWD+8*t+c}')
    A(f'buffer_store_dwordx4 v[16:19], v1, {S(SWS)}, s66 offen sc1')
    A(f'buffer_store_dwordx4 v[20:23], v1, {S(SWS)}, s67 offen sc1')
    stamp(13)
    A(f's_cmp_ge_u32 s{sR}, 32'); A('s_cbranch_scc1 L_fin')
    A('s_waitcnt vmcnt(0)')
    A('s_branch L_taskG')
    A('L_taskR:')
    A(f's_cmp_ge_u32 s{sR}, 32'); A('s_cbranch_scc1 L_fin')
    A('v_lshlrev_b32 v1, 4, v0'); A(f's_lshl_b32 s60, s{sR}, 12'); A(f's_add_u32 s60, s60, {YB}')
    A(f's_lshl_b32 s61, s{sR}, 7'); A(f's_add_u32 s61, s61, {X2}')
    poll([f'buffer_load_dwordx4 {V(16+4*i,4)}, v1, {S(SWS)}, s60 offen offset:{1024*i} sc1' for i in range(4)], range(16, 32), 8)
    stamp(12)
    for a, b in ((16, 20), (24, 28), (16, 24)):
        pk('add', a, a, b); pk('add', a+2, a+2, b+2)
    fold(16, 4, 32); fold(16, 2, 16); rors(16, 1, (8,))
    rbf(16, 16); A('v_mul_f32 v16, v32, v16'); rbf(16, 16); A('v_add_f32 v16, v34, v16'); rbf(34, 16)
    setexec(0x00ff00ff00ff00ff)
    A(f'buffer_store_dword v34, v5, {S(SWS)}, s61 offen sc1')
    stamp(13)
    A('s_mov_b64 exec, -1')
    A('L_toG:')
    A(f's_cmp_ge_u32 s{sR}, 32'); A('s_cbranch_scc1 L_fin')
    A('L_taskG:')
    srd(A, SW2, 26, 2048)
    A('v_lshlrev_b32 v1, 4, v0')
    A(f's_mul_i32 s60, s{sR}, 28672'); A('s_sub_u32 s61, s3, 4'); A('s_mul_i32 s62, s61, 7168'); A('s_add_u32 s60, s60, s62')
    A(f's_add_u32 s60, s60, {Y2}'); A('s_add_u32 s62, s60, 4096')
    A('v_and_b32 v2, 7, v0'); A('v_lshlrev_b32 v2, 2, v2'); A('v_lshl_add_u32 v2, v13, 1, v2'); A('v_add_lshl_u32 v2, v2, v12, 2')
    A('s_lshl_b32 s61, s61, 7'); A('v_add_u32 v3, s61, v2')
    A('s_barrier')
    poll([f'buffer_load_dwordx4 {V(vX+4*i,4)}, v1, {S(SWS)}, s{60 if i < 4 else 62} offen offset:{1024*(i&3)} sc1' for i in range(7)],
         range(vX, vX+28), 8)
    if p.stamps: A('s_memrealtime s[74:75]')
    for a, b in ((0, 4), (8, 12), (16, 20), (0, 8), (16, 24), (0, 16)):
        pk('add', vX+a, vX+a, vX+b); pk('add', vX+a+2, vX+a+2, vX+b+2)
    fold(vX, 4, 32); fold(vX, 2, 16); rors(vX, 1, (8,))
    A(f'ds_write_b32 v3, v{vX} offset:{L_G}')
    A('s_waitcnt lgkmcnt(0)')
    A('s_barrier')
    A('s_cmp_lg_u32 s3, 7'); A('s_cbranch_scc1 L_fin')
    for w in range(4): A(f'ds_read_b32 v{16+w}, v2 offset:{L_G+128*w}')
    A(f's_lshl_b32 s60, s{sR}, 6')
    A('s_waitcnt lgkmcnt(0)')
    pk('add', 16, 16, 18); A('v_add_f32 v16, v16, v17')
    rbf(16, 16); A('v_mul_f32 v16, v33, v16'); rbf(16, 16); A('v_add_f32 v16, v34, v16')
    A('v_cvt_pk_bf16_f32 v16, v16, v16')
    setexec(0x00ff00ff00ff00ff)
    A(f'buffer_store_short v16, v6, {S(SW2)}, s60 offen sc1')
    stamp(14)
    A('L_fin:')
    if p.hold:
        A('s_cmp_lg_u32 s3, 7'); A('s_cbranch_scc1 L_fin2')
        A('L_hold:'); A('s_memrealtime s[60:61]'); A('s_waitcnt lgkmcnt(0)'); A('s_sub_u32 s60, s60, s100'); A('s_sleep 1')
        A(f's_cmp_lt_u32 s60, {p.hold*100}'); A('s_cbranch_scc1 L_hold')
        A('L_fin2:')
    finish()

    A('.section .rodata,"a"'); A('.p2align 6'); A(f'.amdhsa_kernel {NAME}_kernel')
    for l in ['.amdhsa_next_free_vgpr 256', '.amdhsa_next_free_sgpr 102', '.amdhsa_accum_offset 256',
              '.amdhsa_group_segment_fixed_size 0', '.amdhsa_kernarg_size 112', '.amdhsa_user_sgpr_count 2',
              '.amdhsa_user_sgpr_kernarg_segment_ptr 1', '.amdhsa_system_sgpr_workgroup_id_x 1']: A(l)
    A('.end_amdhsa_kernel')
    return '\n'.join(head) + '\n' + A.text()

if __name__ == '__main__':
    p = P()
    out = sys.argv[1]
    for a in sys.argv[2:]:
        k, v = a.split('=')
        cur = getattr(p, k)
        setattr(p, k, (v == '1') if isinstance(cur, bool) else type(cur)(v))
    open(out, 'w').write(gen(p))
```

```python
import sys, struct
from asmlib import Asm

NAME = 'adaLN_cond__mha_block_cached__glu_gated_bilinear__decode'

def f32(x): return '0x%08x' % struct.unpack('<I', struct.pack('<f', x))[0]
LOG2E = 1.4426950408889634
SCALE = 128 ** -0.5

MODP = 0x00000
CLRF = 0x08000
QP   = 0x10000
LATE = 0x50000
OP   = 0x50000
YB   = 0x78000
Y2   = 0x98000
X2   = 0x178000
MODB = 0x179000
PRG  = 0x17e000
STMP = 0x200000
WS_BYTES = 0x300000
L_Q = 0; L_O = 256; L_M = 2304; L_L = 2320; L_G = 2560; L_PR = 3072; L_LV = 3088; L_GU = 4096; L_WD = 4096 + 16384; L_X = 4096 + 24576

class P:
    N = 5
    Nf = 5
    Nc = 5
    E = 24
    EL = 16
    blate = True
    own = False
    clk = False
    mae = '94:78:44,42:36:16,16:11:2'
    gf = 5
    gs = 4
    pe = '55555555'
    po = '55555555'
    pb = '77777765'
    Tb = 0
    qsleep = 0
    qpsleep = 1
    qflag = 'sc1'
    pcls = False
    pstride = 128
    plflag = 'sc1'
    gub = False
    hold = 0
    psh = 4
    pfull = 8
    pflag = 'sc1'
    psleep = 6
    ctl = False
    cps = '76,56,36,18'
    thr = '3,7,11,14'
    lv = '44445555,55555555,66655555,66666655,77666665'
    lv0 = 1
    lvc = '55555555'
    gw = 1
    csleep = 16
    up = 0
    upc = 0
    prio = 0
    Ne = 5
    Te = 0
    stamps = False
    wflag = 'nt'
    cflag = 'sc1 nt'
    limit = 1 << 17
    guearly = False
    gosleep = 2
    h0sleep = 1
    xsleep = 2
    skip = ''

def srd(A, d, ptr, nbytes, add=None):
    if add is None:
        A(f's_mov_b32 s{d}, s{ptr}'); A(f's_mov_b32 s{d+1}, s{ptr+1}')
    else:
        A(f's_add_u32 s{d}, s{ptr}, {add}'); A(f's_addc_u32 s{d+1}, s{ptr+1}, 0')
    A(f's_mov_b32 s{d+2}, {nbytes}'); A(f's_mov_b32 s{d+3}, 0x20000')

def S(d): return f's[{d}:{d+3}]'
def V(a, n): return f'v[{a}:{a+n-1}]'

SK, SV = 44, 48
SWS, SDBG, SW, SW2 = 44, 48, 52, 56
PLO, PHI = 69, 70
sX, sIdx, sH, sB, sJ, sP, sFB, sR = 32, 33, 34, 35, 36, 37, 38, 39

def gen(p):
    A = Asm()
    def stamp(k):
        if p.stamps: A(f's_memrealtime s[{72+2*k}:{73+2*k}]')
    def finish(n=15):
        if p.stamps:
            A('s_branch L_flush')
        else:
            A('s_endpgm')

    hdr = open('cdna_kernels/' + NAME + '.s.ref').read().split('\n')
    head = []
    for l in hdr:
        if l.startswith('; @launch'):
            head.append(f'; @launch grid=(256,1,1) block=(512,1,1) lds={L_X + 8192*p.EL}')
            break
        head.append(l)
    A('.amdgcn_target "amdgcn-amd-amdhsa--gfx950"')
    A('.text'); A(f'.globl {NAME}_kernel'); A('.p2align 8'); A(f'.type {NAME}_kernel,@function')
    A(f'{NAME}_kernel:')
    A('s_cmp_ge_u32 s2, 256'); A('s_cbranch_scc1 L_exit')
    A('s_load_dwordx16 s[4:19], s[0:1], 0')
    A('s_load_dwordx8 s[20:27], s[0:1], 64')
    A('s_load_dwordx4 s[28:31], s[0:1], 96')
    if p.stamps:
        for k in range(1, 15): A(f's_mov_b32 s{72+2*k}, 0')
    stamp(0)
    if p.hold: A('s_memrealtime s[100:101]')
    A('v_lshrrev_b32 v1, 6, v0'); A('v_and_b32 v0, 63, v0'); A('v_readfirstlane_b32 s3, v1')
    A(f's_and_b32 s{sX}, s2, 7'); A(f's_lshr_b32 s{sIdx}, s2, 3')
    A(f's_lshr_b32 s61, s{sIdx}, 3'); A(f's_lshl_b32 s60, s{sX}, 2'); A(f's_add_u32 s{sH}, s61, s60')
    A(f's_and_b32 s{sJ}, s{sIdx}, 7'); A(f's_lshr_b32 s{sB}, s{sJ}, 2')
    A(f's_and_b32 s60, s{sJ}, 3'); A(f's_lshl_b32 s{sP}, s{sH}, 2'); A(f's_add_u32 s{sP}, s{sP}, s60')
    A(f's_lshl_b32 s60, s{sB}, 7'); A(f's_add_u32 s{sP}, s{sP}, s60')
    A('s_cmp_ge_u32 s3, 4'); A('s_cbranch_scc1 L_helper')

    vOff, vS, vP, vLo, vHi, vM, vNM, vL, vT, vU, vA = 1, 2, 3, 4, 5, 6, 7, 8, 9, 10, 11
    vQ, vAcc, vRing, vExt = 12, 16, 24, 56
    N, E, EL, Nf, Nc = p.N, p.E, p.EL, p.Nf, p.Nc
    vTmp = vExt + 8*E
    assert vTmp + 8 <= 256 and (E + EL) % 4 == 0 and max(N, Nc) <= 7
    A(f's_lshl_b32 s60, s{sP}, 21')
    A('s_lshl_b32 s61, s3, 10'); A('v_lshlrev_b32 v1, 4, v0'); A('v_add_u32 v1, s61, v1')
    A(f's_mul_i32 s62, s3, {2048*EL}'); A(f's_add_u32 s62, s62, {L_X}'); A('s_mov_b32 m0, s62')
    A('s_waitcnt lgkmcnt(0)')
    srd(A, SK, 6, 1 << 21, 's60'); srd(A, SV, 8, 1 << 21, 's60')
    def issue(n, reg):
        if reg is None:
            A(f'buffer_load_dwordx4 v{vOff}, {S(SV if n & 1 else SK)}, 0 offen nt lds')
            A('s_add_u32 m0, m0, 0x400')
        else:
            A(f'buffer_load_dwordx4 {V(reg,4)}, v{vOff}, {S(SV if n & 1 else SK)}, 0 offen nt')
        if n & 1: A(f'v_add_u32 v{vOff}, 0x1000, v{vOff}')
        elif reg is None and n < Nf: A('s_nop 0')
    NX = 2*(E + EL)
    if p.prio: A(f's_setprio {p.prio}')
    for n in range(NX + Nc):
        if n >= Nf: A(f's_waitcnt vmcnt({Nf-1})')
        if n == 0: stamp(6)
        if n == Nf: stamp(7)
        if n == 12: stamp(8)
        if n == 36: stamp(9)
        if n == 56: stamp(10)
        issue(n, None if n < 2*EL else vExt + 4*(n - 2*EL) if n < NX else vRing + 4*(n - NX))
        if n == Nf - 1:
            A(f'v_mov_b32 v{vM}, {f32(-1e38)}'); A(f'v_mov_b32 v{vNM}, {f32(1e38*LOG2E)}'); A(f'v_mov_b32 v{vL}, 0')
            for e in range(8): A(f'v_mov_b32 v{vAcc+e}, 0')
            A(f'v_and_b32 v{vT}, 15, v0'); A(f'v_lshlrev_b32 v{vT}, 4, v{vT}')
            A(f'v_lshl_add_u32 v0, v0, 4, s62')
    A(f's_lshl_b32 s61, s3, 2'); A(f'v_mov_b32 v{vU}, s61'); A(f'v_mov_b32 v{vA}, 0x7fff'); A(f'v_mov_b32 v{vS}, {p.lv0}')
    A(f'ds_write_b32 v{vU}, v{vA} offset:{L_PR}'); A(f'ds_write_b32 v{vU}, v{vS} offset:{L_LV}')
    A('s_waitcnt lgkmcnt(0)')
    stamp(1)
    A('s_barrier')
    A(f'ds_read_b128 {V(vQ,4)}, v{vT} offset:{L_Q}')
    stamp(2)
    A('s_waitcnt lgkmcnt(0)')
    stubs = []
    def kwork(r):
        A(f'v_dot2_f32_bf16 v{vS}, v{r}, v{vQ}, 0')
        for i in (1, 2, 3): A(f'v_dot2_f32_bf16 v{vS}, v{r+i}, v{vQ+i}, v{vS}')
        for k in (8, 4, 2, 1): A(f'v_add_f32_dpp v{vS}, v{vS}, v{vS} row_ror:{k} row_mask:0xf bank_mask:0xf')
        A(f'v_cvt_pk_bf16_f32 v{vS}, 0, v{vS}')
        A(f'v_mul_f32 v{vS}, {f32(SCALE)}, v{vS}')
        A(f'v_cvt_pk_bf16_f32 v{vS}, 0, v{vS}')
        A(f'v_cmp_gt_f32 vcc, v{vS}, v{vM}')
        st = A.label('rs'); stubs.append(st)
        A(f's_cbranch_vccnz {st}'); A(f'{st}_b:')
        A(f'v_fmamk_f32 v{vP}, v{vS}, {f32(LOG2E)}, v{vNM}')
        A(f'v_exp_f32 v{vP}, v{vP}')
        A(f'v_cvt_pk_bf16_f32 v{vLo}, v{vP}, 0')
        A(f'v_cvt_pk_bf16_f32 v{vHi}, 0, v{vP}')
        A(f'v_add_f32 v{vL}, v{vL}, v{vP}')
    def vwork(r):
        for i in range(4):
            A(f'v_dot2c_f32_bf16 v{vAcc+2*i}, v{r+i}, v{vLo}')
            A(f'v_dot2c_f32_bf16 v{vAcc+2*i+1}, v{r+i}, v{vHi}')
    issued = [Nc]
    def step(j, W):
        A(f's_waitcnt vmcnt({issued[0] - j - 1})')
        while issued[0] < j + 1 + W:
            issue(issued[0], vRing + 4*(issued[0] % 8)); issued[0] += 1
        (vwork if j & 1 else kwork)(vRing + 4*(j % 8))
    def loop(name, trips, W, pre, post, up=0):
        if trips == 0: return
        A(f's_movk_i32 s60, {trips}')
        A('.p2align 4')
        A(f'{name}:')
        pre()
        for j in range(8): step(j, int(p.lvc[j]))
        assert int(p.lvc[7]) == W
        issued[0] -= 8
        post()
        A('s_sub_u32 s60, s60, 1'); A('s_cmp_lg_u32 s60, 0'); A(f's_cbranch_scc1 {name}')
    def pre1():
        A('s_set_gpr_idx_on s61, gpr_idx(SRC0)')
        for i in range(8): A(f'v_mov_b32 v{vTmp+i}, v{vExt+i}')
        A('s_set_gpr_idx_off'); A('s_add_u32 s61, s61, 8')
    def pre2():
        A(f'ds_read_b128 {V(vTmp,4)}, v0'); A(f'ds_read_b128 {V(vTmp+4,4)}, v0 offset:1024')
        A('v_add_u32 v0, 0x800, v0')
    def post1():
        kwork(vTmp); vwork(vTmp+4)
    def post2():
        A('s_waitcnt lgkmcnt(0)'); post1()
    A('s_mov_b32 s61, 0')
    A(f's_waitcnt vmcnt({Nc})')
    loop('L_cu1', E, Nc, pre1, post1, p.upc)
    left = (512 - E - EL)//4 - E - EL
    if p.clk:
        A(f's_lshl_b32 s61, s3, 2'); A(f'v_mov_b32 v{vExt}, s61'); A(f'v_mov_b32 v{vExt+1}, {left + EL}')
        A(f'ds_write_b32 v{vExt}, v{vExt+1} offset:{L_PR}')
    loop('L_cu2', EL, Nc, pre2, post2, p.upc)
    if Nc != N:
        for j in range(8): step(j, N)
        issued[0] -= 8; left -= 1
    assert issued[0] == N
    stamp(3)
    vPa, vPv, vLv = vExt, vExt+1, vExt+2
    if not p.ctl:
        A(f's_lshl_b32 s61, s3, 2'); A(f'v_mov_b32 v{vPa}, s61'); A(f'v_mov_b32 v{vPv}, 0')
        A(f'ds_write_b32 v{vPa}, v{vPv} offset:{L_PR}')
        def sloop(name, pat, trips, nxt):
            assert int(pat[7]) == N
            A(f's_movk_i32 s60, {trips}')
            A('.p2align 4'); A(f'{name}:')
            for j in range(8): step(j, int(pat[j]))
            issued[0] -= 8
            assert issued[0] == N
            A('s_sub_u32 s60, s60, 1'); A('s_cmp_lg_u32 s60, 0'); A(f's_cbranch_scc1 {name}')
            if nxt: A(f's_branch {nxt}')
        if p.pe != p.po:
            A('s_getreg_b32 s61, hwreg(HW_REG_XCC_ID, 0, 1)'); A('s_cmp_eq_u32 s61, 0'); A('s_cbranch_scc1 L_even')
            sloop('L_so', p.po, left - p.Tb, 'L_boost')
            A('L_even:')
        sloop('L_se', p.pe, left - p.Tb, None)
        A('L_boost:')
        if p.Tb: sloop('L_sb', p.pb, p.Tb, None)
    else:
        levels = p.lv.split(',')
        A(f's_lshl_b32 s61, s3, 2'); A(f'v_mov_b32 v{vPa}, s61')
        A(f's_movk_i32 s60, {left}')
        A(f's_branch L_lv{p.lv0}')
        for k, pat in enumerate(levels):
            assert len(pat) == 8 and int(pat[7]) == N
            A('.p2align 4')
            A(f'L_lv{k}:')
            A(f'v_mov_b32 v{vPv}, s60')
            A(f'ds_write_b32 v{vPa}, v{vPv} offset:{L_PR}'); A(f'ds_read_b32 v{vLv}, v{vPa} offset:{L_LV}')
            for j in range(8): step(j, int(pat[j]))
            issued[0] -= 8
            assert issued[0] == N
            A('s_sub_u32 s60, s60, 1'); A('s_cbranch_scc1 L_never') if False else None
            A('s_waitcnt lgkmcnt(0)'); A(f'v_readfirstlane_b32 s61, v{vLv}')
            A('s_cmp_eq_u32 s60, 0'); A('s_cbranch_scc1 L_sdone')
            order = [k] + [x for x in range(len(levels)) if x != k]
            for x in order[:-1]:
                A(f's_cmp_eq_u32 s61, {x}'); A(f's_cbranch_scc1 L_lv{x}')
            A(f's_branch L_lv{order[-1]}')
    A('L_sdone:')
    A('v_mbcnt_lo_u32_b32 v0, -1, 0'); A('v_mbcnt_hi_u32_b32 v0, -1, v0')
    stamp(4)
    A(f'v_mov_b32 v{vT}, v{vL}')
    A(f'v_and_b32 v{vU}, 15, v0'); A(f'v_lshlrev_b32 v{vU}, 5, v{vU}')
    A(f'v_permlane32_swap_b32 v{vT}, v{vL}')
    A(f'v_lshrrev_b32 v{vA}, 4, v0')
    for e in range(4): A(f'v_permlane32_swap_b32 v{vAcc+e}, v{vAcc+e+4}')
    A(f'v_add_f32 v{vL}, v{vL}, v{vT}')
    for e in range(4): A(f'v_add_f32 v{vAcc+e}, v{vAcc+e}, v{vAcc+e+4}')
    A(f'v_mov_b32 v{vT}, v{vL}')
    A(f'v_lshl_add_u32 v{vU}, v{vA}, 3, v{vU}')
    for e in range(2): A(f'v_permlane16_swap_b32 v{vAcc+e}, v{vAcc+e+2}')
    A(f'v_permlane16_swap_b32 v{vT}, v{vL}')
    A(f's_lshl_b32 s61, s3, 9'); A(f'v_add_u32 v{vU}, s61, v{vU}')
    for e in range(2): A(f'v_add_f32 v{vAcc+e}, v{vAcc+e}, v{vAcc+e+2}')
    A(f'v_add_f32 v{vL}, v{vL}, v{vT}')
    A(f'ds_write_b64 v{vU}, {V(vAcc,2)} offset:{L_O}')
    A('s_lshl_b32 s61, s3, 2'); A(f'v_mov_b32 v{vA}, s61')
    A('s_mov_b64 exec, 1')
    A(f'ds_write_b32 v{vA}, v{vNM} offset:{L_M}'); A(f'ds_write_b32 v{vA}, v{vL} offset:{L_L}')
    A('s_waitcnt lgkmcnt(0)')
    A('s_barrier')
    stamp(5)
    if p.stamps:
        A('L_flush:')
        A('s_mov_b64 exec, 1')
        A('s_waitcnt lgkmcnt(0)')
        srd(A, SW2, 30, WS_BYTES)
        A('s_lshl_b32 s60, s2, 10'); A('s_lshl_b32 s61, s3, 7'); A('s_add_u32 s60, s60, s61'); A(f's_add_u32 s60, s60, {STMP}')
        A('v_mov_b32 v1, s60')
        for k in range(15):
            A(f'v_mov_b32 v2, s{72+2*k}')
            A(f'buffer_store_dword v2, v1, {S(SW2)}, 0 offen offset:{4*k} sc1')
        A('s_waitcnt vmcnt(0)')
    A('L_exit:')
    A('s_endpgm')
    for st in stubs:
        A(f'{st}:'); A('s_call_b64 s[40:41], L_rescale'); A(f's_branch {st}_b')
    A('L_rescale:')
    A(f'v_mov_b32 v{vT}, v{vS}'); A(f'v_mov_b32 v{vU}, v{vS}')
    A(f'v_permlane32_swap_b32 v{vT}, v{vU}')
    A(f'v_max_f32 v{vT}, v{vT}, v{vU}'); A(f'v_mov_b32 v{vU}, v{vT}')
    A(f'v_permlane16_swap_b32 v{vT}, v{vU}')
    A(f'v_max3_f32 v{vM}, v{vT}, v{vU}, v{vM}')
    A(f'v_mul_f32 v{vT}, {f32(-LOG2E)}, v{vM}')
    A(f'v_sub_f32 v{vA}, v{vT}, v{vNM}')
    A(f'v_exp_f32 v{vA}, v{vA}')
    A(f'v_mov_b32 v{vNM}, v{vT}')
    A(f'v_mul_f32 v{vL}, v{vL}, v{vA}')
    for e in range(8): A(f'v_mul_f32 v{vAcc+e}, v{vAcc+e}, v{vA}')
    A('s_setpc_b64 s[40:41]')

    vOwn, vA0, vA1, vW, vSp, vAc, vX = 16, 24, 32, 40, 104, 106, 128
    wf = p.wflag
    def dpp(op, d, a, b, ctl, rm='0xf'): A(f'{op}_dpp v{d}, v{a}, v{b} {ctl} row_mask:{rm} bank_mask:0xf')
    def movdpp(d, a, ctl): A(f'v_mov_b32_dpp v{d}, v{a} {ctl} row_mask:0xf bank_mask:0xf')
    def rbf(d, s): A(f'v_cvt_pk_bf16_f32 v{d}, 0, v{s}')
    def pk(op, d, a, b, bc=False): A(f'v_pk_{op}_f32 {V(d,2)}, {V(a,2)}, {V(b,2)}' + (' op_sel_hi:[1,0]' if bc else ''))
    def bail(back):
        A('s_add_u32 s68, s68, 1'); A(f's_cmp_lt_u32 s68, {p.limit}'); A(f's_cbranch_scc1 {back}')
    def maxall(d, regs):
        regs = list(regs)
        if len(regs) == 1: return regs[0]
        if len(regs) == 2: A(f'v_max_u32 v{d}, v{regs[0]}, v{regs[1]}'); return d
        A(f'v_max3_u32 v{d}, v{regs[0]}, v{regs[1]}, v{regs[2]}'); regs = regs[3:]
        while len(regs) >= 2:
            A(f'v_max3_u32 v{d}, v{d}, v{regs[0]}, v{regs[1]}'); regs = regs[2:]
        if regs: A(f'v_max_u32 v{d}, v{d}, v{regs[0]}')
        return d
    def poll(loads, regs, tmp, sleep=0):
        L = A.label('poll'); D = L + '_d'
        A('s_mov_b32 s68, 0')
        A(f'{L}:')
        for l in loads: A(l)
        A('s_waitcnt vmcnt(0)')
        t = maxall(tmp, regs)
        A(f'v_cmpx_eq_u32 vcc, -1, v{t}')
        A(f's_cbranch_execz {D}')
        if sleep: A(f's_sleep {sleep}')
        bail(L)
        A(f'{D}:')
        A('s_mov_b64 exec, -1')
    def waitprog(lim, all4):
        L = A.label('prog'); D = L + '_d'
        A('s_mov_b32 s68, 0'); A('v_mov_b32 v15, 0')
        A(f'{L}:')
        if all4:
            A(f'ds_read_b128 v[8:11], v15 offset:{L_PR}') if False else None
            A(f'ds_read_b64 v[8:9], v15 offset:{L_PR}'); A(f'ds_read_b64 v[6:7], v15 offset:{L_PR+8}')
            A('s_waitcnt lgkmcnt(0)'); A('v_max3_u32 v14, v8, v9, v6'); A('v_max_u32 v14, v14, v7')
        else:
            A(f'ds_read_b32 v14, v15 offset:{L_PR}'); A('s_waitcnt lgkmcnt(0)')
        A(f'v_cmp_lt_u32 vcc, {lim}, v14'); A(f's_cbranch_vccz {D}')
        A(f's_sleep {p.psleep}')
        bail(L)
        A(f'{D}:')
    def waitflag(off, sleep, want=None):
        L = A.label('flag'); D = L + '_d'
        A('s_mov_b32 s68, 0'); A('s_mov_b64 exec, 1'); A('v_mov_b32 v15, 0')
        A(f'{L}:')
        A(f'buffer_load_dword v14, v15, {S(SDBG)}, 0 offen offset:{off} sc1')
        A('s_waitcnt vmcnt(0)')
        A('v_cmp_eq_u32 vcc, 0, v14' if want is None else f'v_cmp_ne_u32 vcc, {want}, v14'); A(f's_cbranch_vccz {D}')
        A(f's_sleep {sleep}')
        bail(L)
        A(f'{D}:')
        A('s_mov_b64 exec, -1')
    def arrive(off, last, flagoff):
        D = A.label('arr')
        A('s_mov_b64 exec, 1'); A('v_mov_b32 v15, 0'); A('v_mov_b32 v14, 1')
        A(f'buffer_atomic_add v14, v15, {S(SDBG)}, 0 offen offset:{off} sc0 sc1')
        A('s_waitcnt vmcnt(0)')
        A(f'v_cmp_ne_u32 vcc, {last}, v14'); A(f's_cbranch_vccnz {D}')
        A(f'buffer_store_dword v14, v15, {S(SDBG)}, 0 offen offset:{flagoff} sc1')
        A(f'{D}:')
        A('s_mov_b64 exec, -1')
    def pair_perm(base, npairs, spare, w=4):
        m = {}; free = spare
        for t in range(npairs):
            for j in range(w):
                a, b = base + 2*w*t + j, base + 2*w*t + w + j
                A(f'v_perm_b32 v{free}, v{b}, v{a}, s{PLO}'); m[(t, 2*j)] = free
                A(f'v_perm_b32 v{b}, v{b}, v{a}, s{PHI}'); m[(t, 2*j+1)] = b
                free = a
        return m
    def zero(r, n):
        for e in range(n): A(f'v_mov_b32 v{r+e}, 0')
    def mv_dots(m):
        for t in range(8):
            for e in range(8):
                A(f'v_dot2c_f32_bf16 v{vAc+e}, v{vA0+t}, v{m[(t,e)]}')
                A(f'v_dot2c_f32_bf16 v{vAc+8+e}, v{vA1+t}, v{m[(t,e)]}')
    def fold(r, n, which):
        h = n // 2
        for e in range(h): A(f'v_permlane{which}_swap_b32 v{r+e}, v{r+h+e}')
        for e in range(h): A(f'v_add_f32 v{r+e}, v{r+e}, v{r+h+e}')
    def rors(r, n, ks):
        for k in ks:
            for e in range(n): dpp('v_add_f32', r+e, r+e, r+e, f'row_ror:{k}')
    def allsum_parity(r, t):
        rors(r, 1, (2, 4, 8))
        A(f'v_mov_b32 v{t}, v{r}'); A(f'v_permlane16_swap_b32 v{t}, v{r}'); A(f'v_add_f32 v{r}, v{r}, v{t}')
        A(f'v_mov_b32 v{t}, v{r}'); A(f'v_permlane32_swap_b32 v{t}, v{r}'); A(f'v_add_f32 v{r}, v{r}, v{t}')
    def unpack(dst, src, n):
        for i in range(n):
            A(f'v_lshlrev_b32 v{dst+2*i}, 16, v{src+i}'); A(f'v_and_b32 v{dst+2*i+1}, 0xffff0000, v{src+i}')
    def setexec(mask):
        lo, hi = mask & 0xffffffff, mask >> 32
        A(f's_mov_b32 exec_lo, 0x{lo:x}'); A(f's_mov_b32 exec_hi, 0x{hi:x}')
    def ln_tail(nmean, var):
        rbf(var, var); rbf(nmean, nmean)
        A(f'v_add_f32 v{var}, {f32(1e-5)}, v{var}'); rbf(var, var)
        A(f'v_sqrt_f32 v{var}, v{var}'); rbf(var, var); A(f'v_rcp_f32 v{var}, v{var}')

    def modcalc(x):
        A(f's_waitcnt vmcnt({16+x})')
        unpack(vX, vOwn, 8)
        for i in range(16): A(f'v_mul_f32 v{vX+16+i}, {f32(-LOG2E)}, v{vX+i}')
        for i in range(16): A(f'v_exp_f32 v{vX+16+i}, v{vX+16+i}')
        for i in range(16): A(f'v_add_f32 v{vX+16+i}, 1.0, v{vX+16+i}')
        for i in range(16): A(f'v_rcp_f32 v{vX+16+i}, v{vX+16+i}')
        for i in range(0, 16, 2): pk('mul', vX+i, vX+i, vX+16+i)
        for i in range(8): A(f'v_cvt_pk_bf16_f32 v{vOwn+i}, v{vX+2*i}, v{vX+2*i+1}')
        for t in range(8):
            movdpp(vA0+t, vOwn+t, 'quad_perm:[0,0,2,2]'); movdpp(vA1+t, vOwn+t, 'quad_perm:[1,1,3,3]')
        stamp(1)
        free = vSp
        for t in range(8):
            A(f's_waitcnt vmcnt({14-2*t+x})')
            m = {}
            for j in range(4):
                a, b = vW + 8*t + j, vW + 8*t + 4 + j
                A(f'v_perm_b32 v{free}, v{b}, v{a}, s{PLO}'); m[2*j] = free
                A(f'v_perm_b32 v{b}, v{b}, v{a}, s{PHI}'); m[2*j+1] = b
                free = a
            for e in range(8):
                A(f'v_dot2c_f32_bf16 v{vAc+e}, v{vA0+t}, v{m[e]}')
                A(f'v_dot2c_f32_bf16 v{vAc+8+e}, v{vA1+t}, v{m[e]}')
        stamp(2)

    def guloads():
        srd(A, SW, 16, 512*1792*2); srd(A, SW2, 18, 512*1792*2)
        A(f's_mov_b32 s60, {4*3584}'); A('v_mul_lo_u32 v1, s60, v0'); A(f's_lshl_b32 s61, s{sFB}, 4'); A('v_add_u32 v1, s61, v1')
        for i in range(8 if 'g' not in p.skip else 0):
            A(f's_mov_b32 s60, {(256*(i>>2) + (i&3))*3584}')
            A(f'buffer_load_dwordx4 {V(vX+8*i,4)}, v1, {S(SW)}, s60 offen {wf}')
            A(f's_waitcnt vmcnt({p.gw})')
            A(f'buffer_load_dwordx4 {V(vX+8*i+4,4)}, v1, {S(SW2)}, s60 offen {wf}')
            A(f's_waitcnt vmcnt({p.gw})')

    A('L_helper:')
    A(f's_mov_b32 s{PLO}, 0x05040100'); A(f's_mov_b32 s{PHI}, 0x07060302')
    A('v_and_b32 v11, 1, v0'); A('v_bfe_u32 v12, v0, 4, 1'); A('v_lshrrev_b32 v13, 5, v0')
    A('v_mov_b32 v5, 0'); A('v_mov_b32 v6, 0')
    A(f's_lshr_b32 s60, s{sIdx}, 3'); A('s_lshl_b32 s60, s60, 3'); A(f's_add_u32 s60, s60, s{sX}')
    A(f's_lshl_b32 s{sFB}, s60, 3'); A(f's_add_u32 s{sFB}, s{sFB}, s{sJ}')
    A(f's_sub_u32 s60, s{sIdx}, 8'); A(f's_lshl_b32 s61, s{sX}, 2'); A(f's_add_u32 s{sR}, s60, s61')
    A('s_cmp_lt_u32 s60, 4'); A(f's_cselect_b32 s{sR}, s{sR}, 64')
    A('s_waitcnt lgkmcnt(0)')
    srd(A, SWS, 30, WS_BYTES); srd(A, SDBG, 28, 256)
    A('s_cmp_eq_u32 s3, 5'); A('s_cbranch_scc1 L_taskB')
    A('s_cmp_eq_u32 s3, 6'); A('s_cbranch_scc1 L_clear')
    A('s_cmp_eq_u32 s3, 7'); A(f's_cbranch_scc1 {"L_stage" if p.guearly else "L_bar2"}')
    A('s_cmp_ge_u32 s2, 64'); A('s_cbranch_scc1 L_bar2')
    A('s_and_b32 s62, s2, 15'); A('s_lshr_b32 s63, s2, 4')
    A('s_call_b64 s[42:43], L_modload')
    for i in range(4): A(f'v_mov_b32 v{4+i}, -1')
    A(f's_lshl_b32 s61, s{sX}, 3'); A(f's_add_u32 s64, s61, s{sIdx}')
    A('s_lshl_b32 s61, s64, 12'); A('v_lshl_add_u32 v3, v0, 4, s61'); A(f's_mov_b32 s60, {QP}')
    for i in range(4): A(f'buffer_store_dwordx4 v[4:7], v3, {S(SWS)}, s60 offen offset:{1024*i} {p.cflag}')
    A('s_lshl_b32 s61, s64, 4'); A(f's_add_u32 s61, s61, {CLRF}'); A('v_mov_b32 v3, 0'); A('s_mov_b64 exec, 1')
    A(f'buffer_store_dwordx4 v[4:7], v3, {S(SWS)}, s61 offen sc1')
    A('s_mov_b64 exec, -1')
    zero(vAc, 16)
    modcalc(5)
    fold(vAc, 16, 32); fold(vAc, 8, 16); rors(vAc, 4, (8,))
    A('v_and_b32 v1, 7, v0'); A('v_lshlrev_b32 v1, 5, v1'); A('v_lshl_add_u32 v1, v12, 4, v1'); A('v_lshl_add_u32 v1, v13, 8, v1')
    A('s_lshl_b32 s60, s62, 2'); A('s_add_u32 s60, s60, s63'); A('s_lshl_b32 s60, s60, 9')
    setexec(0x00ff00ff00ff00ff)
    A(f'buffer_store_dwordx4 {V(vAc,4)}, v1, {S(SWS)}, s60 offen sc1')
    stamp(3)
    A('s_waitcnt vmcnt(0)')
    stamp(4)
    if 'x' in p.skip:
        A('s_mov_b64 exec, 1'); A('v_mov_b32 v15, 0'); A('v_mov_b32 v14, 1')
        for i in range(4): A(f'buffer_atomic_add v14, v15, {S(SDBG)}, 0 offen offset:8 sc1'); A('s_waitcnt vmcnt(0)')
    arrive(0, 63, 128)
    stamp(5)
    A('s_branch L_bar2')
    A('L_modload:')
    srd(A, SW2, 22, 2048); srd(A, SW, 24, 512*3072*2)
    A('v_lshrrev_b32 v10, 3, v0')
    A('v_lshlrev_b32 v1, 5, v10'); A('v_lshl_add_u32 v1, v11, 10, v1'); A('s_lshl_b32 s60, s63, 8')
    A(f'buffer_load_dwordx4 {V(vOwn,4)}, v1, {S(SW2)}, s60 offen')
    A(f'buffer_load_dwordx4 {V(vOwn+4,4)}, v1, {S(SW2)}, s60 offen offset:16')
    A(f's_mov_b32 s60, {16*6144}'); A('v_mul_lo_u32 v1, s60, v10'); A('v_and_b32 v2, 7, v0'); A('v_lshl_add_u32 v1, v2, 4, v1')
    A(f's_mul_i32 s60, s63, {128*6144}'); A('s_lshl_b32 s61, s62, 7'); A('s_add_u32 s60, s60, s61')
    for i in range(16):
        A(f'buffer_load_dwordx4 {V(vW+4*i,4)}, v1, {S(SW)}, s60 offen {wf}')
        if i < 15: A('s_add_u32 s60, s60, 6144')
    A('s_setpc_b64 s[42:43]')
    A('L_clear:')
    for i in range(4): A(f'v_mov_b32 v{4+i}, -1')
    if not p.own:
        A('s_mul_i32 s61, s2, 5120'); A('v_lshl_add_u32 v3, v0, 4, s61'); A(f's_mov_b32 s60, {LATE}'); A(f's_mov_b32 s61, {LATE+4096}')
        if 'c' not in p.skip:
            for i in range(4): A(f'buffer_store_dwordx4 v[4:7], v3, {S(SWS)}, s60 offen offset:{1024*i} {p.cflag}')
            A(f'buffer_store_dwordx4 v[4:7], v3, {S(SWS)}, s61 offen {p.cflag}')
    elif 'c' not in p.skip:
        cs = lambda v, so: A(f'buffer_store_dwordx4 v[4:7], v{v}, {S(SWS)}, {so} offen {p.cflag}')
        A('v_lshlrev_b32 v3, 4, v0'); A(f's_mul_i32 s60, s{sP}, 640'); A(f's_add_u32 s60, s60, {OP}')
        A('v_and_b32 v2, 7, v0'); A('v_lshlrev_b32 v2, 4, v2'); A('v_bfe_u32 v8, v0, 3, 1'); A('v_lshl_add_u32 v8, v12, 4, v8'); A('v_lshl_add_u32 v8, v8, 12, v2')
        setexec((1 << 40) - 1); cs(3, 's60')
        A(f's_lshl_b32 s60, s{sJ}, 6'); A(f's_add_u32 s60, s60, s{sH}'); A('s_lshl_b32 s60, s60, 7'); A(f's_add_u32 s60, s60, {YB}')
        setexec(0xffffffff); cs(8, 's60')
        A(f's_cmp_ge_u32 s{sFB}, 224'); A('s_cbranch_scc1 L_clr_b')
        A('s_mov_b64 exec, -1')
        A('v_lshrrev_b32 v8, 3, v0'); A('v_mul_u32_u24 v8, 28672, v8'); A('v_add_u32 v8, v8, v2')
        A(f's_lshl_b32 s60, s{sFB}, 7'); A(f's_add_u32 s60, s60, {Y2}')
        for i in range(4):
            cs(8, 's60'); A(f's_add_u32 s60, s60, {8*28672}')
        A(f's_cmp_ge_u32 s{sR}, 32'); A('s_cbranch_scc1 L_clr_p')
        A(f's_lshl_b32 s60, s{sR}, 7'); A(f's_add_u32 s60, s60, {X2}'); A('s_mov_b64 exec, 0xff'); cs(3, 's60')
        A('s_branch L_clr_p')
        A('L_clr_b:')
        A('v_and_b32 v8, 15, v0'); A('v_lshlrev_b32 v8, 4, v8'); A('v_lshl_add_u32 v8, v12, 13, v8')
        A(f's_lshl_b32 s60, s{sFB}, 8'); A(f's_add_u32 s60, s60, {MODB - 224*256}'); cs(8, 's60')
        A('L_clr_p:')
        if p.ctl:
            A(f's_and_b32 s60, s{sIdx}, {(1 << p.psh) - 1}'); A(f's_cmp_lg_u32 s60, {(1 << p.psh)//2}'); A('s_cbranch_scc1 L_clr_d')
            A(f's_lshr_b32 s60, s{sIdx}, {p.psh}'); A('s_lshl_b32 s60, s60, 3'); A(f's_add_u32 s60, s60, s{sX}'); A('s_lshl_b32 s60, s60, 7'); A(f's_add_u32 s60, s60, {PRG}')
            A('s_mov_b64 exec, 0xff'); cs(3, 's60')
            A('L_clr_d:')
        A('s_mov_b64 exec, -1')
    A('s_waitcnt vmcnt(0)')
    A('s_branch L_bar2')
    A('L_taskB:')
    srd(A, SW2, 4, 2048); srd(A, SW, 10, 512*4096*2)
    A('v_lshrrev_b32 v10, 1, v0'); A('v_lshlrev_b32 v1, 5, v10'); A('v_lshl_add_u32 v1, v11, 10, v1')
    A(f'buffer_load_dwordx4 {V(vOwn,4)}, v1, {S(SW2)}, 0 offen')
    A(f'buffer_load_dwordx4 {V(vOwn+4,4)}, v1, {S(SW2)}, 0 offen offset:16')
    A('v_lshrrev_b32 v9, 4, v0'); A('v_and_b32 v8, 14, v0'); A('v_lshl_add_u32 v8, v9, 4, v8')
    A('v_lshlrev_b32 v1, 1, v8'); A('v_lshl_add_u32 v1, v11, 10, v1'); A(f's_lshl_b32 s60, s{sJ}, 7')
    A(f'buffer_load_dword v7, v1, {S(SW2)}, s60 offen')
    A('v_lshlrev_b32 v1, 17, v9'); A('v_and_b32 v10, 15, v0'); A('v_lshl_add_u32 v1, v10, 4, v1')
    A(f's_lshl_b32 s60, s{sJ}, 19'); A(f's_lshl_b32 s61, s{sH}, 8'); A('s_add_u32 s60, s60, s61')
    def wqloads():
        for i in range(16):
            A(f'buffer_load_dwordx4 {V(vW+4*i,4)}, v1, {S(SW)}, s60 offen {wf}')
            if i < 15: A('s_add_u32 s60, s60, 8192')
    if not p.blate:
        wqloads(); A('s_waitcnt vmcnt(16)')
    else:
        A('s_waitcnt vmcnt(0)')
    unpack(vX, vOwn, 8)
    w = vX + 16
    pk('add', w, vX, vX+2)
    for i in range(4, 16, 2): pk('add', w, w, vX+i)
    A(f'v_add_f32 v2, v{w}, v{w+1}')
    allsum_parity(2, 3)
    A(f'v_mul_f32 v2, {f32(-1.0/512)}, v2')
    for i in range(0, 16, 2): pk('add', w+i, vX+i, 2, True)
    pk('mul', 4, w, w)
    for i in range(2, 16, 2): A(f'v_pk_fma_f32 v[4:5], {V(w+i,2)}, {V(w+i,2)}, v[4:5]')
    A('v_add_f32 v4, v4, v5')
    allsum_parity(4, 5)
    A(f'v_mul_f32 v4, {f32(1.0/512)}, v4')
    if p.blate: wqloads()
    ln_tail(2, 4)
    unpack(vX, 7, 1)
    pk('add', vX, vX, 2, True); rbf(vX, vX); rbf(vX+1, vX+1)
    pk('mul', vX, vX, 4, True); rbf(vX, vX); rbf(vX+1, vX+1)
    zero(vAc, 16)
    A('v_lshlrev_b32 v6, 2, v8'); A('v_lshl_add_u32 v6, v11, 8, v6')
    A('v_lshlrev_b32 v1, 5, v10'); A('v_lshl_add_u32 v1, v12, 4, v1'); A('v_lshl_add_u32 v1, v13, 12, v1')
    A(f's_lshl_b32 s62, s{sJ}, 11'); A('s_add_u32 s63, s62, 16384')
    stamp(1)
    A('s_waitcnt vmcnt(0)')
    stamp(2)
    m = pair_perm(vW, 8, vSp)
    waitflag(128, p.gosleep)
    stamp(3)
    for i in range(4 if 'M' not in p.skip else 0):
        A(f'buffer_load_dwordx2 {V(vX+2+2*i,2)}, v6, {S(SWS)}, s63 offen offset:{512*i} sc1')
    for i in range(4 if 'M' not in p.skip else 0):
        A(f'buffer_load_dwordx2 {V(vX+10+2*i,2)}, v6, {S(SWS)}, s62 offen offset:{512*i} sc1')
    A(f's_lshl_b32 s60, s{sH}, 13'); A(f's_lshl_b32 s61, s{sJ}, 9'); A('s_add_u32 s61, s61, s60'); A(f's_add_u32 s61, s61, {QP}')
    A(f's_lshl_b32 s62, s{sB}, 12'); A('s_add_u32 s60, s60, s62'); A(f's_add_u32 s60, s60, {QP}')
    A('s_waitcnt vmcnt(4)')
    c1, sa = vX+2, vX+10
    pk('add', c1, c1, c1+2); pk('add', c1+4, c1+4, c1+6); pk('add', c1, c1, c1+4)
    rbf(c1, c1); rbf(c1+1, c1+1)
    A(f'v_add_f32 v{c1}, 1.0, v{c1}'); A(f'v_add_f32 v{c1+1}, 1.0, v{c1+1}')
    rbf(c1, c1); rbf(c1+1, c1+1)
    pk('mul', vX, vX, c1); rbf(vX, vX); rbf(vX+1, vX+1)
    A('s_waitcnt vmcnt(0)')
    stamp(4)
    pk('add', sa, sa, sa+2); pk('add', sa+4, sa+4, sa+6); pk('add', sa, sa, sa+4)
    rbf(sa, sa); rbf(sa+1, sa+1)
    pk('add', vX, vX, sa)
    A(f'v_cvt_pk_bf16_f32 v{vOwn}, v{vX}, v{vX+1}')
    for t in range(8):
        movdpp(vA0+t, vOwn, f'row_newbcast:{2*t}'); movdpp(vA1+t, vOwn, f'row_newbcast:{2*t+1}')
    mv_dots(m)
    fold(vAc, 16, 32); fold(vAc, 8, 16)
    if 'W' not in p.skip: A(f'buffer_store_dwordx4 {V(vAc,4)}, v1, {S(SWS)}, s61 offen {p.qflag}')
    stamp(5)
    A('v_lshlrev_b32 v1, 4, v0')
    A('v_and_b32 v2, 31, v0'); A('v_lshlrev_b32 v2, 3, v2'); A('v_lshl_add_u32 v2, v13, 2, v2')
    A('s_waitcnt vmcnt(0)')
    if p.qsleep: A(f's_sleep {p.qsleep}')
    if 'P' not in p.skip: poll([f'buffer_load_dwordx4 {V(vX+4*i,4)}, v1, {S(SWS)}, s60 offen offset:{1024*i} sc1' for i in range(4)],
         range(vX, vX+16), 8, sleep=p.qpsleep)
    for a, b in ((0, 4), (8, 12), (0, 8)):
        pk('add', vX+a, vX+a, vX+b); pk('add', vX+a+2, vX+a+2, vX+b+2)
    fold(vX, 4, 32)
    A(f'v_cvt_pk_bf16_f32 v3, v{vX}, v{vX+1}')
    A(f'ds_write_b32 v2, v3 offset:{L_Q}')
    A('s_waitcnt lgkmcnt(0)')
    stamp(6)
    if p.gub:
        A(f's_cmp_ge_u32 s{sFB}, 224'); A('s_cbranch_scc1 L_bar2')
        guloads()
    A('L_bar2:')
    A('s_barrier')
    A('s_cmp_eq_u32 s3, 5'); A(f's_cbranch_scc1 {"L_stage" if p.gub else "L_wo"}')
    A('s_cmp_eq_u32 s3, 4'); A('s_cbranch_scc1 L_bgA')
    A('s_cmp_eq_u32 s3, 7'); A(f's_cbranch_scc1 {"L_wo" if p.guearly or p.gub else "L_stage"}')
    A('s_mov_b64 exec, 1'); A('v_mov_b32 v15, 0'); A(f's_lshl_b32 s61, s{sX}, 5'); A(f's_add_u32 s61, s61, s{sIdx}')
    A('s_lshl_b32 s61, s61, 2'); A(f's_add_u32 s61, s61, {CLRF}')
    if 'f' not in p.skip: A(f'buffer_store_dword v15, v15, {S(SWS)}, s61 offen sc1')
    A('s_mov_b64 exec, -1')
    waitprog(left, True)
    srd(A, SW, 12, 4096*512*2)
    A('v_lshrrev_b32 v3, 3, v0'); A('v_lshlrev_b32 v1, 13, v3'); A('v_and_b32 v2, 7, v0'); A('v_lshl_add_u32 v1, v2, 4, v1')
    A(f's_lshl_b32 s60, s{sH}, 17'); A(f's_lshl_b32 s61, s{sJ}, 7'); A('s_add_u32 s60, s60, s61')
    for n in range(16 if 'o' not in p.skip else 0):
        A(f's_add_u32 s61, s60, {(n>>3)*65536 + (n&4)*1024}')
        A(f'buffer_load_dwordx4 {V(vX+4*n,4)}, v1, {S(SW)}, s61 offen offset:{(n&3)*1024} {wf}')
        A('s_waitcnt vmcnt(2)')
    A('v_lshlrev_b32 v3, 6, v3'); A('v_and_b32 v4, 3, v0'); A('v_lshl_add_u32 v3, v4, 4, v3'); A('v_bfe_u32 v4, v0, 2, 1'); A('v_lshl_add_u32 v3, v4, 13, v3')
    A('s_waitcnt vmcnt(0)')
    for hf in range(2):
        for t in range(4):
            for j in range(4):
                a_, b_ = vX + 32*hf + 8*t + j, vX + 32*hf + 8*t + 4 + j
                d = 192 + 32*hf + 8*t + 2*j
                A(f'v_perm_b32 v{d}, v{b_}, v{a_}, s{PLO}'); A(f'v_perm_b32 v{d+1}, v{b_}, v{a_}, s{PHI}')
        for q in range(8): A(f'ds_write_b128 v3, {V(192+32*hf+4*q,4)} offset:{L_X + 1024*q + 512*hf}')
    A('s_waitcnt lgkmcnt(0)')
    A('s_branch L_wo')
    A('L_bgA:')
    A(f's_cmp_lt_u32 s{sFB}, 224'); A('s_cbranch_scc1 L_bgA_wait')
    A(f's_sub_u32 s62, s{sFB}, {224 - 16}'); A('s_mov_b32 s63, 0')
    zero(vAc, 16)
    A('L_bgA_loop:')
    if 'b' not in p.skip:
        A('s_call_b64 s[42:43], L_modload')
        modcalc(0)
    A('s_add_u32 s63, s63, 1'); A('s_cmp_lt_u32 s63, 4'); A('s_cbranch_scc1 L_bgA_loop')
    fold(vAc, 16, 32); fold(vAc, 8, 16); rors(vAc, 4, (8,))
    A('s_lshr_b32 s61, s62, 3'); A('s_cmp_eq_u32 s61, 4'); A('s_cselect_b32 s63, 1.0, 0')
    for e in range(4): rbf(vAc+e, vAc+e)
    for e in range(4): A(f'v_add_f32 v{vAc+e}, s63, v{vAc+e}')
    for e in range(4): rbf(vAc+e, vAc+e)
    A('L_bgA_wait:')
    waitprog(left + EL if p.clk else left, False)
    if p.clk: A('s_memrealtime s[64:65]')
    A('v_lshlrev_b32 v10, 4, v0'); A(f's_mov_b32 s60, {CLRF}')
    if 'f' not in p.skip: poll([f'buffer_load_dwordx4 v[4:7], v10, {S(SWS)}, s60 offen sc1'], range(4, 8), 8, sleep=p.csleep)
    A(f's_cmp_lt_u32 s{sFB}, 224'); A('s_cbranch_scc1 L_ctl')
    A('v_and_b32 v1, 7, v0'); A('v_lshlrev_b32 v1, 5, v1'); A('v_lshl_add_u32 v1, v12, 4, v1'); A('v_lshl_add_u32 v1, v13, 13, v1')
    A('s_lshl_b32 s60, s62, 8'); A(f's_add_u32 s60, s60, {MODB - 4096}')
    setexec(0x00ff00ff00ff00ff)
    A(f'buffer_store_dwordx4 {V(vAc,4)}, v1, {S(SWS)}, s60 offen sc1')
    A('s_mov_b64 exec, -1')
    A('L_ctl:')
    A('v_lshlrev_b32 v10, 2, v0'); A(f's_mov_b32 s62, {PRG}'); A('v_lshlrev_b32 v3, 4, v0')
    if p.pcls:
        A('v_and_b32 v2, 7, v0'); A(f'v_mul_u32_u24 v2, {p.pstride}, v2'); A('v_lshrrev_b32 v4, 3, v0'); A('v_lshl_add_u32 v2, v4, 2, v2')
        A(f's_lshr_b32 s60, s{sIdx}, {p.psh}'); A('s_lshl_b32 s60, s60, 2'); A(f's_mul_i32 s61, s{sX}, {p.pstride}'); A('s_add_u32 s60, s60, s61'); A(f's_add_u32 s63, s60, {PRG}')
    else:
        A(f'v_mul_u32_u24 v2, {p.pstride}, v0')
        A(f's_lshr_b32 s60, s{sIdx}, {p.psh}'); A('s_lshl_b32 s60, s60, 3'); A(f's_add_u32 s60, s60, s{sX}'); A(f's_mul_i32 s60, s60, {p.pstride}'); A(f's_add_u32 s63, s60, {PRG}')
    for k, mae in enumerate(p.mae.split(',') if p.clk else []):
        M_, A_, E_ = map(int, mae.split(':'))
        npub = 256 >> p.psh
        assert npub == 16
        if k:
            waitprog(M_, False); A('s_memrealtime s[64:65]')
        A('s_waitcnt lgkmcnt(0)'); A('s_and_b32 s64, s64, -2')
        A(f's_and_b32 s60, s{sIdx}, {(1 << p.psh) - 1}'); A(f's_cmp_lg_u32 s60, {(1 << p.psh)//2}'); A(f's_cbranch_scc1 L_nopub{k}')
        A('s_mov_b64 exec, 0xff')
        for i in range(4): A(f'v_mov_b32 v{4+i}, s64')
        A(f'buffer_store_dwordx4 v[4:7], v3, {S(SWS)}, s63 offen offset:{2048*(k&1)} sc1')
        A('s_mov_b64 exec, -1')
        A(f'L_nopub{k}:')
        waitprog(A_, False)
        A('s_mov_b64 exec, 0xffff')
        A(f'buffer_load_dword v14, v2, {S(SWS)}, s62 offen offset:{2048*(k&1)} sc1')
        if k & 1: A('s_add_u32 s62, s62, 4096'); A('s_add_u32 s63, s63, 4096')
        A('v_mov_b32 v8, 0xfffffed4')
        A('s_waitcnt vmcnt(0)')
        A('v_sub_u32 v9, s64, v14'); A('v_cmp_eq_u32 vcc, -1, v14'); A('v_cndmask_b32 v9, v9, v8, vcc')
        for r in (8, 4, 2, 1): dpp('v_add_u32', 9, 9, 9, f'row_ror:{r}')
        A('v_readfirstlane_b32 s60, v9')
        if p.stamps and k < 6: A('s_ashr_i32 s61, s60, 4'); A(f's_add_u32 s{74+2*k}, s61, s72')
        A('s_cmp_gt_i32 s60, 0'); A(f's_cselect_b32 s61, {p.gf}, {p.gs}'); A('s_cselect_b32 s66, 2, 0')
        A('s_abs_i32 s60, s60'); A('s_mul_i32 s60, s60, s61'); A('s_lshr_b32 s60, s60, 10'); A(f's_min_u32 s60, s60, {A_ - E_}')
        A('s_cmp_eq_u32 s60, 0'); A(f's_cbranch_scc1 L_noact{k}')
        A(f's_sub_u32 s67, {A_}, s60')
        A('s_mov_b64 exec, 15'); A('v_mov_b32 v14, s66'); A(f'ds_write_b32 v10, v14 offset:{L_LV}'); A('s_mov_b64 exec, -1')
        waitprog('s67', False)
        A('s_mov_b64 exec, 15'); A('v_mov_b32 v14, 1'); A(f'ds_write_b32 v10, v14 offset:{L_LV}')
        A(f'L_noact{k}:')
        A('s_mov_b64 exec, -1')
    for k, cp in enumerate(p.cps.split(',') if p.ctl and not p.clk else []):
        waitprog(int(cp), False)
        A('v_mov_b32 v14, -1'); setexec((1 << (256 >> p.psh)) - 1)
        if 'L' not in p.skip: A(f'buffer_load_dword v14, v2, {S(SWS)}, s62 offen {p.plflag}')
        A(f's_and_b32 s60, s{sIdx}, {(1 << p.psh) - 1}'); A(f's_cmp_lg_u32 s60, {(1 << p.psh)//2}'); A(f's_cbranch_scc1 L_nopub{k}')
        A(f's_mov_b64 exec, {(1 << p.pfull) - 1}')
        for i in range(4): A(f'v_mov_b32 v{4+i}, {cp}')
        if p.pcls:
            A('s_mov_b64 exec, 1'); A(f'buffer_store_dword v4, v3, {S(SWS)}, s63 offen {p.pflag}')
        elif 'S' not in p.skip: A(f'buffer_store_dwordx4 v[4:7], v3, {S(SWS)}, s63 offen {p.pflag}')
        A(f'L_nopub{k}:')
        A('s_mov_b64 exec, -1')
        A('s_waitcnt vmcnt(0)'); A(f'v_cmp_ge_u32 vcc, {cp}, v14'); A('s_bcnt1_i32_b64 s60, vcc')
        A('s_mov_b64 exec, 15'); A('s_mov_b32 s61, 0')
        if p.stamps and k < 6: A(f's_add_u32 s{74+2*k}, s60, s72')
        for t in p.thr.split(','):
            A(f's_cmp_ge_u32 s60, {t}'); A('s_addc_u32 s61, s61, 0')
        A('v_mov_b32 v14, s61')
        A(f'ds_write_b32 v10, v14 offset:{L_LV}')
        A('s_mov_b64 exec, -1')
    A('s_branch L_wo')
    A('L_stage:')
    A(f's_cmp_ge_u32 s{sFB}, 224'); A('s_cbranch_scc1 L_stage_done')
    if not p.gub: guloads()
    A('s_waitcnt vmcnt(0)')
    vD = 192
    for t in range(4):
        for j in range(8):
            a, b = vX + 16*t + j, vX + 16*t + 8 + j
            A(f'v_perm_b32 v{vD+16*t+2*j}, v{b}, v{a}, s{PLO}'); A(f'v_perm_b32 v{vD+16*t+2*j+1}, v{b}, v{a}, s{PHI}')
    srd(A, SW, 20, 1792*512*2)
    A(f's_lshl_b32 s60, s{sFB}, 13'); A('s_add_u32 s61, s60, 4096'); A('v_lshlrev_b32 v1, 3, v0')
    for r in range(8 if 'd' not in p.skip else 0):
        for u in range(2):
            A(f'buffer_load_dwordx2 {V(vX+4*r+2*u,2)}, v1, {S(SW)}, s{60+(r>>2)} offen offset:{(r&3)*1024+u*512} {wf}')
    A('v_lshlrev_b32 v2, 4, v0')
    for q in range(16): A(f'ds_write_b128 v2, {V(vD+4*q,4)} offset:{L_GU+1024*q}')
    A('s_waitcnt vmcnt(0) lgkmcnt(0)')
    for t in range(4):
        for j in range(4):
            a, b = vX + 8*t + j, vX + 8*t + 4 + j
            A(f'v_perm_b32 v{vD+8*t+2*j}, v{b}, v{a}, s{PLO}'); A(f'v_perm_b32 v{vD+8*t+2*j+1}, v{b}, v{a}, s{PHI}')
    for q in range(8): A(f'ds_write_b128 v2, {V(vD+4*q,4)} offset:{L_WD+1024*q}')
    A('s_waitcnt lgkmcnt(0)')
    A('L_stage_done:')
    if p.guearly: A('s_branch L_bar2')
    A('L_wo:')
    A('s_and_b32 s64, s3, 1'); A('s_bfe_u32 s65, s3, 0x10001')
    A('v_and_b32 v2, 3, v0')
    A('s_lshl_b32 s60, s64, 13'); A('v_lshl_add_u32 v7, v0, 4, s60')
    def woread():
        for q in range(8): A(f'ds_read_b128 {V(vW+4*q,4)}, v7 offset:{L_X + 1024*q}')
    mO = {(t, e): vW + 8*t + e for t in range(4) for e in range(8)}
    vY = vAc
    zero(vY, 8)
    A('v_lshlrev_b32 v1, 5, v2'); A('v_lshl_add_u32 v1, v13, 4, v1'); A('v_lshl_add_u32 v1, v12, 3, v1')
    A('s_lshl_b32 s66, s65, 4'); A(f's_lshl_b32 s61, s{sJ}, 1'); A('s_add_u32 s66, s66, s61'); A('s_add_u32 s66, s66, s64')
    A('s_lshl_b32 s66, s66, 5'); A(f's_add_u32 s66, s66, s{sH}'); A('s_lshl_b32 s66, s66, 7'); A(f's_add_u32 s66, s66, {YB}')
    A('v_lshlrev_b32 v3, 3, v0'); A('v_mul_u32_u24 v4, 640, v2')
    A('s_lshl_b32 s67, s65, 5'); A(f's_add_u32 s67, s67, s{sH}'); A('s_mul_i32 s67, s67, 2560'); A(f's_add_u32 s67, s67, {OP}')
    A(f's_mul_i32 s62, s{sP}, 640'); A(f's_add_u32 s62, s62, {OP}')
    A('v_mov_b32 v15, 0')
    stamp(7)
    A('s_barrier')
    stamp(8)
    if 'E' in p.skip: A('s_branch L_fin')
    A('s_cmp_lg_u32 s3, 4'); A('s_cbranch_scc1 L_notcomb')
    A(f'ds_read_b128 v[24:27], v15 offset:{L_M}'); A(f'ds_read_b128 v[28:31], v15 offset:{L_L}')
    for w in range(4): A(f'ds_read_b64 {V(16+2*w,2)}, v3 offset:{L_O+512*w}')
    A('s_waitcnt lgkmcnt(4)')
    A('v_min3_f32 v8, v24, v25, v26'); A('v_min_f32 v8, v8, v27')
    for w in range(4): A(f'v_sub_f32 v{24+w}, v8, v{24+w}')
    for w in range(4): A(f'v_exp_f32 v{24+w}, v{24+w}')
    A('s_waitcnt lgkmcnt(0)')
    A('v_mul_f32 v16, v24, v16'); A('v_mul_f32 v17, v24, v17'); A('v_mul_f32 v9, v24, v28')
    for w in range(1, 4):
        A(f'v_fmac_f32 v16, v{24+w}, v{16+2*w}'); A(f'v_fmac_f32 v17, v{24+w}, v{17+2*w}'); A(f'v_fmac_f32 v9, v{24+w}, v{28+w}')
    A(f'buffer_store_dwordx2 v[16:17], v3, {S(SWS)}, s62 offen sc1')
    A('s_mov_b64 exec, 1')
    A(f'buffer_store_dwordx2 v[8:9], v15, {S(SWS)}, s62 offen offset:512 sc1')
    A('s_mov_b64 exec, -1')
    stamp(9)
    woread()
    A('s_waitcnt vmcnt(0) lgkmcnt(0)')
    A('s_branch L_bar3b')
    A('L_notcomb:')
    woread()
    A('s_waitcnt lgkmcnt(0)')
    A('s_cmp_eq_u32 s3, 7'); A('s_cbranch_scc1 L_preR')
    vGU, vWD, vC1, vSB, vX2 = 128, 192, 224, 232, 240
    A(f's_cmp_ge_u32 s{sFB}, 224'); A('s_cbranch_scc1 L_bar3b')
    A('s_sub_u32 s63, s3, 5'); A('s_lshl_b32 s60, s63, 13'); A(f's_add_u32 s60, s60, {MODB + 2048}'); A('s_add_u32 s61, s60, 2048')
    A('v_lshlrev_b32 v5, 4, v0')
    for q in range(16): A(f'ds_read_b128 {V(vGU+4*q,4)}, v5 offset:{L_GU+1024*q}')
    A('s_waitcnt lgkmcnt(8)')
    for q in range(8): A(f'ds_read_b128 {V(vWD+4*q,4)}, v5 offset:{L_WD+1024*q}')
    poll([f'buffer_load_dwordx4 {V(vC1+4*i,4)}, v5, {S(SWS)}, s61 offen offset:{1024*i} sc1' for i in range(2)] +
         [f'buffer_load_dwordx4 {V(vSB+4*i,4)}, v5, {S(SWS)}, s60 offen offset:{1024*i} sc1' for i in range(2)],
         range(vC1, vC1+16), 8)
    A('s_waitcnt lgkmcnt(0)')
    A('s_branch L_bar3b')
    A('L_preR:')
    A(f's_cmp_ge_u32 s{sR}, 32'); A('s_cbranch_scc1 L_bar3b')
    srd(A, SW2, 4, 2048)
    A('v_and_b32 v5, 7, v0'); A('v_lshlrev_b32 v5, 2, v5'); A('v_lshl_add_u32 v5, v13, 1, v5'); A('v_add_u32 v5, v5, v12')
    A('v_lshlrev_b32 v6, 1, v5'); A('v_lshlrev_b32 v5, 2, v5')
    A(f's_lshl_b32 s60, s{sR}, 6')
    A(f'buffer_load_ushort v34, v6, {S(SW2)}, s60 offen')
    A(f's_lshr_b32 s60, s{sR}, 4'); A('s_lshl_b32 s60, s60, 13'); A(f's_and_b32 s61, s{sR}, 15'); A('s_lshl_b32 s61, s61, 7')
    A('s_add_u32 s60, s60, s61'); A(f's_add_u32 s60, s60, {MODB}'); A('s_add_u32 s61, s60, 6144')
    poll([f'buffer_load_dword v32, v5, {S(SWS)}, s60 offen sc1', f'buffer_load_dword v33, v5, {S(SWS)}, s61 offen sc1'], (32, 33), 8)
    A('v_lshlrev_b32 v34, 16, v34')
    A('L_bar3b:')
    A('s_barrier')
    poll([f'buffer_load_dwordx2 {V(16+2*i,2)}, v3, {S(SWS)}, s67 offen offset:{640*i} sc1' for i in range(4)] +
         [f'buffer_load_dwordx2 v[24:25], v4, {S(SWS)}, s67 offen offset:512 sc1'], range(16, 26), 8, sleep=p.h0sleep)
    stamp(10)
    dpp('v_min_f32', 26, 24, 24, 'quad_perm:[1,0,3,2]'); dpp('v_min_f32', 26, 26, 26, 'quad_perm:[2,3,0,1]')
    A('v_sub_f32 v24, v26, v24'); A('v_exp_f32 v24, v24'); A('v_mul_f32 v25, v24, v25')
    dpp('v_add_f32', 25, 25, 25, 'quad_perm:[1,0,3,2]'); dpp('v_add_f32', 25, 25, 25, 'quad_perm:[2,3,0,1]')
    A('v_rcp_f32 v25, v25'); A('v_mul_f32 v24, v24, v25')
    dpp('v_mul_f32', 16, 24, 16, 'quad_perm:[0,0,0,0]'); dpp('v_mul_f32', 17, 24, 17, 'quad_perm:[0,0,0,0]')
    for i in range(1, 4):
        dpp('v_fmac_f32', 16, 24, 16+2*i, f'quad_perm:[{i},{i},{i},{i}]'); dpp('v_fmac_f32', 17, 24, 17+2*i, f'quad_perm:[{i},{i},{i},{i}]')
    A('v_cvt_pk_bf16_f32 v16, v16, v17')
    for t in range(4): movdpp(20+t, 16, f'quad_perm:[{t},{t},{t},{t}]')
    for t in range(4):
        for e in range(8): A(f'v_dot2c_f32_bf16 v{vY+e}, v{20+t}, v{mO[(t,e)]}')
    fold(vY, 8, 32); fold(vY, 4, 16); rors(vY, 2, (8, 4))
    setexec(0x000f000f000f000f)
    A(f'buffer_store_dwordx2 {V(vY,2)}, v1, {S(SWS)}, s66 offen sc1')
    stamp(11)
    A('s_mov_b64 exec, -1')
    if 'Y' in p.skip: A('s_branch L_fin')
    A('s_cmp_eq_u32 s3, 7'); A('s_cbranch_scc1 L_taskR')
    A('s_cmp_eq_u32 s3, 4'); A('s_cbranch_scc1 L_toG')
    A(f's_cmp_ge_u32 s{sFB}, 224'); A('s_cbranch_scc1 L_fin')
    zero(vAc, 16); zero(16, 8)
    A('v_lshrrev_b32 v1, 3, v0'); A('v_mul_u32_u24 v1, 28672, v1'); A('v_and_b32 v2, 7, v0'); A('v_lshl_add_u32 v1, v2, 4, v1')
    A(f's_mul_i32 s66, s63, {16*28672}'); A(f's_lshl_b32 s61, s{sFB}, 7'); A('s_add_u32 s66, s66, s61'); A(f's_add_u32 s66, s66, {Y2}')
    A(f's_add_u32 s67, s66, {8*28672}')
    A('s_lshl_b32 s60, s63, 11'); A(f's_add_u32 s60, s60, {X2}')
    poll([f'buffer_load_dwordx4 {V(vX2+4*i,4)}, v5, {S(SWS)}, s60 offen offset:{1024*i} sc1' for i in range(2)],
         range(vX2, vX2+8), 8, sleep=p.xsleep)
    stamp(12)
    A(f'v_readfirstlane_b32 s60, v{vX2}')
    w = 24
    for i in range(0, 8, 2): A(f'v_pk_add_f32 {V(w+i,2)}, {V(vX2+i,2)}, s[60:61] op_sel_hi:[1,0] neg_lo:[0,1] neg_hi:[0,1]')
    pk('mul', 8, w, w); pk('add', 6, w, w+2)
    A(f'v_pk_fma_f32 v[8:9], {V(w+2,2)}, {V(w+2,2)}, v[8:9]'); pk('add', 6, 6, w+4)
    A(f'v_pk_fma_f32 v[8:9], {V(w+4,2)}, {V(w+4,2)}, v[8:9]'); pk('add', 6, 6, w+6)
    A(f'v_pk_fma_f32 v[8:9], {V(w+6,2)}, {V(w+6,2)}, v[8:9]')
    A('v_add_f32 v6, v6, v7'); A('v_add_f32 v7, v8, v9')
    rors(6, 2, (8, 4, 2, 1))
    for r in (6, 7): dpp('v_add_f32', r, r, r, 'row_bcast:15', '0xa')
    for r in (6, 7): dpp('v_add_f32', r, r, r, 'row_bcast:31', '0xc')
    A('v_readlane_b32 s61, v6, 63'); A('v_readlane_b32 s62, v7, 63')
    A(f'v_mov_b32 v8, {f32(1.0/512)}')
    A('v_mul_f32 v6, s61, v8'); A('v_mul_f32 v8, s62, v8')
    A('v_fma_f32 v8, -v6, v6, v8'); A('v_add_f32 v6, s60, v6'); A('v_max_f32 v8, 0, v8'); A('v_sub_f32 v6, 0, v6')
    ln_tail(6, 8)
    for i in range(0, 8, 2): pk('add', vX2+i, vX2+i, 6, True)
    for i in range(8): rbf(vX2+i, vX2+i)
    for i in range(0, 8, 2): pk('mul', vX2+i, vX2+i, 8, True)
    for i in range(8): rbf(vX2+i, vX2+i)
    for i in range(0, 8, 2): pk('mul', vX2+i, vX2+i, vC1+i)
    for i in range(8): rbf(vX2+i, vX2+i)
    for i in range(0, 8, 2): pk('add', vX2+i, vX2+i, vSB+i)
    for i in range(4): A(f'v_cvt_pk_bf16_f32 v{w+i}, v{vX2+2*i}, v{vX2+2*i+1}')
    for t in range(4):
        for c in range(16): A(f'v_dot2c_f32_bf16 v{vAc+c}, v{w+t}, v{vGU+16*t+c}')
    fold(vAc, 16, 32); fold(vAc, 8, 16); rors(vAc, 4, (8, 4, 2, 1))
    for e in range(4): rbf(vAc+e, vAc+e)
    for e in range(4): A(f'v_mov_b32 v{vAc+4+e}, v{vAc+e}')
    for e in range(4): A(f'v_permlane32_swap_b32 v{vAc+e}, v{vAc+4+e}')
    pk('mul', vAc, vAc, vAc+4); pk('mul', vAc+2, vAc+2, vAc+6)
    A(f'v_cvt_pk_bf16_f32 v6, v{vAc}, v{vAc+1}'); A(f'v_cvt_pk_bf16_f32 v7, v{vAc+2}, v{vAc+3}')
    A('v_readlane_b32 s60, v6, 0'); A('v_readlane_b32 s61, v7, 0'); A('v_readlane_b32 s62, v6, 16'); A('v_readlane_b32 s63, v7, 16')
    for t in range(4):
        for c in range(8): A(f'v_dot2c_f32_bf16 v{16+c}, s{60+t}, v{vWD+8*t+c}')
    A(f'buffer_store_dwordx4 v[16:19], v1, {S(SWS)}, s66 offen sc1')
    A(f'buffer_store_dwordx4 v[20:23], v1, {S(SWS)}, s67 offen sc1')
    stamp(13)
    A(f's_cmp_ge_u32 s{sR}, 32'); A('s_cbranch_scc1 L_fin')
    A('s_waitcnt vmcnt(0)')
    A('s_branch L_taskG')
    A('L_taskR:')
    A(f's_cmp_ge_u32 s{sR}, 32'); A('s_cbranch_scc1 L_fin')
    A('v_lshlrev_b32 v1, 4, v0'); A(f's_lshl_b32 s60, s{sR}, 12'); A(f's_add_u32 s60, s60, {YB}')
    A(f's_lshl_b32 s61, s{sR}, 7'); A(f's_add_u32 s61, s61, {X2}')
    poll([f'buffer_load_dwordx4 {V(16+4*i,4)}, v1, {S(SWS)}, s60 offen offset:{1024*i} sc1' for i in range(4)], range(16, 32), 8)
    stamp(12)
    for a, b in ((16, 20), (24, 28), (16, 24)):
        pk('add', a, a, b); pk('add', a+2, a+2, b+2)
    fold(16, 4, 32); fold(16, 2, 16); rors(16, 1, (8,))
    rbf(16, 16); A('v_mul_f32 v16, v32, v16'); rbf(16, 16); A('v_add_f32 v16, v34, v16'); rbf(34, 16)
    setexec(0x00ff00ff00ff00ff)
    A(f'buffer_store_dword v34, v5, {S(SWS)}, s61 offen sc1')
    stamp(13)
    A('s_mov_b64 exec, -1')
    A('L_toG:')
    A(f's_cmp_ge_u32 s{sR}, 32'); A('s_cbranch_scc1 L_fin')
    A('L_taskG:')
    srd(A, SW2, 26, 2048)
    A('v_lshlrev_b32 v1, 4, v0')
    A(f's_mul_i32 s60, s{sR}, 28672'); A('s_sub_u32 s61, s3, 4'); A('s_mul_i32 s62, s61, 7168'); A('s_add_u32 s60, s60, s62')
    A(f's_add_u32 s60, s60, {Y2}'); A('s_add_u32 s62, s60, 4096')
    A('v_and_b32 v2, 7, v0'); A('v_lshlrev_b32 v2, 2, v2'); A('v_lshl_add_u32 v2, v13, 1, v2'); A('v_add_lshl_u32 v2, v2, v12, 2')
    A('s_lshl_b32 s61, s61, 7'); A('v_add_u32 v3, s61, v2')
    A('s_barrier')
    poll([f'buffer_load_dwordx4 {V(vX+4*i,4)}, v1, {S(SWS)}, s{60 if i < 4 else 62} offen offset:{1024*(i&3)} sc1' for i in range(7)],
         range(vX, vX+28), 8)
    if p.stamps: A('s_memrealtime s[74:75]')
    for a, b in ((0, 4), (8, 12), (16, 20), (0, 8), (16, 24), (0, 16)):
        pk('add', vX+a, vX+a, vX+b); pk('add', vX+a+2, vX+a+2, vX+b+2)
    fold(vX, 4, 32); fold(vX, 2, 16); rors(vX, 1, (8,))
    A(f'ds_write_b32 v3, v{vX} offset:{L_G}')
    A('s_waitcnt lgkmcnt(0)')
    A('s_barrier')
    A('s_cmp_lg_u32 s3, 7'); A('s_cbranch_scc1 L_fin')
    for w in range(4): A(f'ds_read_b32 v{16+w}, v2 offset:{L_G+128*w}')
    A(f's_lshl_b32 s60, s{sR}, 6')
    A('s_waitcnt lgkmcnt(0)')
    pk('add', 16, 16, 18); A('v_add_f32 v16, v16, v17')
    rbf(16, 16); A('v_mul_f32 v16, v33, v16'); rbf(16, 16); A('v_add_f32 v16, v34, v16')
    A('v_cvt_pk_bf16_f32 v16, v16, v16')
    setexec(0x00ff00ff00ff00ff)
    A(f'buffer_store_short v16, v6, {S(SW2)}, s60 offen sc1')
    stamp(14)
    A('L_fin:')
    if p.hold:
        A('s_cmp_lg_u32 s3, 7'); A('s_cbranch_scc1 L_fin2')
        A('L_hold:'); A('s_memrealtime s[60:61]'); A('s_waitcnt lgkmcnt(0)'); A('s_sub_u32 s60, s60, s100'); A('s_sleep 1')
        A(f's_cmp_lt_u32 s60, {p.hold*100}'); A('s_cbranch_scc1 L_hold')
        A('L_fin2:')
    finish()

    A('.section .rodata,"a"'); A('.p2align 6'); A(f'.amdhsa_kernel {NAME}_kernel')
    for l in ['.amdhsa_next_free_vgpr 256', '.amdhsa_next_free_sgpr 102', '.amdhsa_accum_offset 256',
              '.amdhsa_group_segment_fixed_size 0', '.amdhsa_kernarg_size 112', '.amdhsa_user_sgpr_count 2',
              '.amdhsa_user_sgpr_kernarg_segment_ptr 1', '.amdhsa_system_sgpr_workgroup_id_x 1']: A(l)
    A('.end_amdhsa_kernel')
    return '\n'.join(head) + '\n' + A.text()

if __name__ == '__main__':
    p = P()
    out = sys.argv[1]
    for a in sys.argv[2:]:
        k, v = a.split('=')
        cur = getattr(p, k)
        setattr(p, k, (v == '1') if isinstance(cur, bool) else type(cur)(v))
    open(out, 'w').write(gen(p))
```

```python
import sys, struct
from asmlib import Asm

NAME = 'adaLN_cond__mha_block_cached__glu_gated_bilinear__decode'

def f32(x): return '0x%08x' % struct.unpack('<I', struct.pack('<f', x))[0]
LOG2E = 1.4426950408889634
SCALE = 128 ** -0.5

MODP = 0x00000
CLRF = 0x08000
QP   = 0x10000
LATE = 0x50000
OP   = 0x50000
YB   = 0x78000
Y2   = 0x98000
X2   = 0x178000
MODB = 0x179000
PRG  = 0x17e000
STMP = 0x200000
WS_BYTES = 0x300000
L_Q = 0; L_O = 256; L_M = 2304; L_L = 2320; L_G = 2560; L_PR = 3072; L_LV = 3088; L_GU = 4096; L_WD = 4096 + 16384; L_X = 4096 + 24576

class P:
    N = 5
    Nf = 5
    Nc = 5
    E = 24
    EL = 16
    blate = True
    own = False
    clk = True
    mae = '94:78:44,42:36:16,16:11:2'
    gf = 5
    gs = 4
    pe = '55555555'
    po = '55555555'
    pb = '77777765'
    Tb = 0
    qsleep = 0
    qpsleep = 1
    qflag = 'sc1'
    pcls = False
    pstride = 128
    plflag = 'sc1'
    gub = False
    hold = 0
    psh = 4
    pfull = 8
    pflag = 'sc1'
    psleep = 6
    ctl = True
    cps = '76,56,36,18'
    thr = '3,7,11,14'
    lv = '44444445,55555555,66666665'
    lv0 = 1
    lvc = '55555555'
    gw = 1
    csleep = 16
    up = 0
    upc = 0
    prio = 0
    Ne = 5
    Te = 0
    stamps = False
    wflag = 'nt'
    cflag = 'sc1 nt'
    limit = 1 << 17
    guearly = False
    gosleep = 2
    h0sleep = 1
    xsleep = 2
    skip = ''

def srd(A, d, ptr, nbytes, add=None):
    if add is None:
        A(f's_mov_b32 s{d}, s{ptr}'); A(f's_mov_b32 s{d+1}, s{ptr+1}')
    else:
        A(f's_add_u32 s{d}, s{ptr}, {add}'); A(f's_addc_u32 s{d+1}, s{ptr+1}, 0')
    A(f's_mov_b32 s{d+2}, {nbytes}'); A(f's_mov_b32 s{d+3}, 0x20000')

def S(d): return f's[{d}:{d+3}]'
def V(a, n): return f'v[{a}:{a+n-1}]'

SK, SV = 44, 48
SWS, SDBG, SW, SW2 = 44, 48, 52, 56
PLO, PHI = 69, 70
sX, sIdx, sH, sB, sJ, sP, sFB, sR = 32, 33, 34, 35, 36, 37, 38, 39

def gen(p):
    A = Asm()
    def stamp(k):
        if p.stamps: A(f's_memrealtime s[{72+2*k}:{73+2*k}]')
    def finish(n=15):
        if p.stamps:
            A('s_branch L_flush')
        else:
            A('s_endpgm')

    hdr = open('cdna_kernels/' + NAME + '.s.ref').read().split('\n')
    head = []
    for l in hdr:
        if l.startswith('; @launch'):
            head.append(f'; @launch grid=(256,1,1) block=(512,1,1) lds={L_X + 8192*p.EL}')
            break
        head.append(l)
    A('.amdgcn_target "amdgcn-amd-amdhsa--gfx950"')
    A('.text'); A(f'.globl {NAME}_kernel'); A('.p2align 8'); A(f'.type {NAME}_kernel,@function')
    A(f'{NAME}_kernel:')
    A('s_cmp_ge_u32 s2, 256'); A('s_cbranch_scc1 L_exit')
    A('s_load_dwordx16 s[4:19], s[0:1], 0')
    A('s_load_dwordx8 s[20:27], s[0:1], 64')
    A('s_load_dwordx4 s[28:31], s[0:1], 96')
    if p.stamps:
        for k in range(1, 15): A(f's_mov_b32 s{72+2*k}, 0')
    stamp(0)
    if p.hold: A('s_memrealtime s[100:101]')
    A('v_lshrrev_b32 v1, 6, v0'); A('v_and_b32 v0, 63, v0'); A('v_readfirstlane_b32 s3, v1')
    A(f's_and_b32 s{sX}, s2, 7'); A(f's_lshr_b32 s{sIdx}, s2, 3')
    A(f's_lshr_b32 s61, s{sIdx}, 3'); A(f's_lshl_b32 s60, s{sX}, 2'); A(f's_add_u32 s{sH}, s61, s60')
    A(f's_and_b32 s{sJ}, s{sIdx}, 7'); A(f's_lshr_b32 s{sB}, s{sJ}, 2')
    A(f's_and_b32 s60, s{sJ}, 3'); A(f's_lshl_b32 s{sP}, s{sH}, 2'); A(f's_add_u32 s{sP}, s{sP}, s60')
    A(f's_lshl_b32 s60, s{sB}, 7'); A(f's_add_u32 s{sP}, s{sP}, s60')
    A('s_cmp_ge_u32 s3, 4'); A('s_cbranch_scc1 L_helper')

    vOff, vS, vP, vLo, vHi, vM, vNM, vL, vT, vU, vA = 1, 2, 3, 4, 5, 6, 7, 8, 9, 10, 11
    vQ, vAcc, vRing, vExt = 12, 16, 24, 56
    N, E, EL, Nf, Nc = p.N, p.E, p.EL, p.Nf, p.Nc
    vTmp = vExt + 8*E
    assert vTmp + 8 <= 256 and (E + EL) % 4 == 0 and max(N, Nc) <= 7
    A(f's_lshl_b32 s60, s{sP}, 21')
    A('s_lshl_b32 s61, s3, 10'); A('v_lshlrev_b32 v1, 4, v0'); A('v_add_u32 v1, s61, v1')
    A(f's_mul_i32 s62, s3, {2048*EL}'); A(f's_add_u32 s62, s62, {L_X}'); A('s_mov_b32 m0, s62')
    A('s_waitcnt lgkmcnt(0)')
    srd(A, SK, 6, 1 << 21, 's60'); srd(A, SV, 8, 1 << 21, 's60')
    def issue(n, reg):
        if reg is None:
            A(f'buffer_load_dwordx4 v{vOff}, {S(SV if n & 1 else SK)}, 0 offen nt lds')
            A('s_add_u32 m0, m0, 0x400')
        else:
            A(f'buffer_load_dwordx4 {V(reg,4)}, v{vOff}, {S(SV if n & 1 else SK)}, 0 offen nt')
        if n & 1: A(f'v_add_u32 v{vOff}, 0x1000, v{vOff}')
        elif reg is None and n < Nf: A('s_nop 0')
    NX = 2*(E + EL)
    if p.prio: A(f's_setprio {p.prio}')
    for n in range(NX + Nc):
        if n >= Nf: A(f's_waitcnt vmcnt({Nf-1})')
        if n == 0: stamp(6)
        if n == Nf: stamp(7)
        if n == 12: stamp(8)
        if n == 36: stamp(9)
        if n == 56: stamp(10)
        issue(n, None if n < 2*EL else vExt + 4*(n - 2*EL) if n < NX else vRing + 4*(n - NX))
        if n == Nf - 1:
            A(f'v_mov_b32 v{vM}, {f32(-1e38)}'); A(f'v_mov_b32 v{vNM}, {f32(1e38*LOG2E)}'); A(f'v_mov_b32 v{vL}, 0')
            for e in range(8): A(f'v_mov_b32 v{vAcc+e}, 0')
            A(f'v_and_b32 v{vT}, 15, v0'); A(f'v_lshlrev_b32 v{vT}, 4, v{vT}')
            A(f'v_lshl_add_u32 v0, v0, 4, s62')
    A(f's_lshl_b32 s61, s3, 2'); A(f'v_mov_b32 v{vU}, s61'); A(f'v_mov_b32 v{vA}, 0x7fff'); A(f'v_mov_b32 v{vS}, {p.lv0}')
    A(f'ds_write_b32 v{vU}, v{vA} offset:{L_PR}'); A(f'ds_write_b32 v{vU}, v{vS} offset:{L_LV}')
    A('s_waitcnt lgkmcnt(0)')
    stamp(1)
    A('s_barrier')
    A(f'ds_read_b128 {V(vQ,4)}, v{vT} offset:{L_Q}')
    stamp(2)
    A('s_waitcnt lgkmcnt(0)')
    stubs = []
    def kwork(r):
        A(f'v_dot2_f32_bf16 v{vS}, v{r}, v{vQ}, 0')
        for i in (1, 2, 3): A(f'v_dot2_f32_bf16 v{vS}, v{r+i}, v{vQ+i}, v{vS}')
        for k in (8, 4, 2, 1): A(f'v_add_f32_dpp v{vS}, v{vS}, v{vS} row_ror:{k} row_mask:0xf bank_mask:0xf')
        A(f'v_cvt_pk_bf16_f32 v{vS}, 0, v{vS}')
        A(f'v_mul_f32 v{vS}, {f32(SCALE)}, v{vS}')
        A(f'v_cvt_pk_bf16_f32 v{vS}, 0, v{vS}')
        A(f'v_cmp_gt_f32 vcc, v{vS}, v{vM}')
        st = A.label('rs'); stubs.append(st)
        A(f's_cbranch_vccnz {st}'); A(f'{st}_b:')
        A(f'v_fmamk_f32 v{vP}, v{vS}, {f32(LOG2E)}, v{vNM}')
        A(f'v_exp_f32 v{vP}, v{vP}')
        A(f'v_cvt_pk_bf16_f32 v{vLo}, v{vP}, 0')
        A(f'v_cvt_pk_bf16_f32 v{vHi}, 0, v{vP}')
        A(f'v_add_f32 v{vL}, v{vL}, v{vP}')
    def vwork(r):
        for i in range(4):
            A(f'v_dot2c_f32_bf16 v{vAcc+2*i}, v{r+i}, v{vLo}')
            A(f'v_dot2c_f32_bf16 v{vAcc+2*i+1}, v{r+i}, v{vHi}')
    issued = [Nc]
    def step(j, W):
        A(f's_waitcnt vmcnt({issued[0] - j - 1})')
        while issued[0] < j + 1 + W:
            issue(issued[0], vRing + 4*(issued[0] % 8)); issued[0] += 1
        (vwork if j & 1 else kwork)(vRing + 4*(j % 8))
    def loop(name, trips, W, pre, post, up=0):
        if trips == 0: return
        A(f's_movk_i32 s60, {trips}')
        A('.p2align 4')
        A(f'{name}:')
        pre()
        for j in range(8): step(j, int(p.lvc[j]))
        assert int(p.lvc[7]) == W
        issued[0] -= 8
        post()
        A('s_sub_u32 s60, s60, 1'); A('s_cmp_lg_u32 s60, 0'); A(f's_cbranch_scc1 {name}')
    def pre1():
        A('s_set_gpr_idx_on s61, gpr_idx(SRC0)')
        for i in range(8): A(f'v_mov_b32 v{vTmp+i}, v{vExt+i}')
        A('s_set_gpr_idx_off'); A('s_add_u32 s61, s61, 8')
    def pre2():
        A(f'ds_read_b128 {V(vTmp,4)}, v0'); A(f'ds_read_b128 {V(vTmp+4,4)}, v0 offset:1024')
        A('v_add_u32 v0, 0x800, v0')
    def post1():
        kwork(vTmp); vwork(vTmp+4)
    def post2():
        A('s_waitcnt lgkmcnt(0)'); post1()
    A('s_mov_b32 s61, 0')
    A(f's_waitcnt vmcnt({Nc})')
    loop('L_cu1', E, Nc, pre1, post1, p.upc)
    left = (512 - E - EL)//4 - E - EL
    if p.clk:
        A(f's_lshl_b32 s61, s3, 2'); A(f'v_mov_b32 v{vExt}, s61'); A(f'v_mov_b32 v{vExt+1}, {left + EL}')
        A(f'ds_write_b32 v{vExt}, v{vExt+1} offset:{L_PR}')
    loop('L_cu2', EL, Nc, pre2, post2, p.upc)
    if Nc != N:
        for j in range(8): step(j, N)
        issued[0] -= 8; left -= 1
    assert issued[0] == N
    stamp(3)
    vPa, vPv, vLv = vExt, vExt+1, vExt+2
    if not p.ctl:
        A(f's_lshl_b32 s61, s3, 2'); A(f'v_mov_b32 v{vPa}, s61'); A(f'v_mov_b32 v{vPv}, 0')
        A(f'ds_write_b32 v{vPa}, v{vPv} offset:{L_PR}')
        def sloop(name, pat, trips, nxt):
            assert int(pat[7]) == N
            A(f's_movk_i32 s60, {trips}')
            A('.p2align 4'); A(f'{name}:')
            for j in range(8): step(j, int(pat[j]))
            issued[0] -= 8
            assert issued[0] == N
            A('s_sub_u32 s60, s60, 1'); A('s_cmp_lg_u32 s60, 0'); A(f's_cbranch_scc1 {name}')
            if nxt: A(f's_branch {nxt}')
        if p.pe != p.po:
            A('s_getreg_b32 s61, hwreg(HW_REG_XCC_ID, 0, 1)'); A('s_cmp_eq_u32 s61, 0'); A('s_cbranch_scc1 L_even')
            sloop('L_so', p.po, left - p.Tb, 'L_boost')
            A('L_even:')
        sloop('L_se', p.pe, left - p.Tb, None)
        A('L_boost:')
        if p.Tb: sloop('L_sb', p.pb, p.Tb, None)
    else:
        levels = p.lv.split(',')
        A(f's_lshl_b32 s61, s3, 2'); A(f'v_mov_b32 v{vPa}, s61')
        A(f's_movk_i32 s60, {left}')
        A(f's_branch L_lv{p.lv0}')
        for k, pat in enumerate(levels):
            assert len(pat) == 8 and int(pat[7]) == N
            A('.p2align 4')
            A(f'L_lv{k}:')
            A(f'v_mov_b32 v{vPv}, s60')
            A(f'ds_write_b32 v{vPa}, v{vPv} offset:{L_PR}'); A(f'ds_read_b32 v{vLv}, v{vPa} offset:{L_LV}')
            for j in range(8): step(j, int(pat[j]))
            issued[0] -= 8
            assert issued[0] == N
            A('s_sub_u32 s60, s60, 1'); A('s_cbranch_scc1 L_never') if False else None
            A('s_waitcnt lgkmcnt(0)'); A(f'v_readfirstlane_b32 s61, v{vLv}')
            A('s_cmp_eq_u32 s60, 0'); A('s_cbranch_scc1 L_sdone')
            order = [k] + [x for x in range(len(levels)) if x != k]
            for x in order[:-1]:
                A(f's_cmp_eq_u32 s61, {x}'); A(f's_cbranch_scc1 L_lv{x}')
            A(f's_branch L_lv{order[-1]}')
    A('L_sdone:')
    A('v_mbcnt_lo_u32_b32 v0, -1, 0'); A('v_mbcnt_hi_u32_b32 v0, -1, v0')
    stamp(4)
    A(f'v_mov_b32 v{vT}, v{vL}')
    A(f'v_and_b32 v{vU}, 15, v0'); A(f'v_lshlrev_b32 v{vU}, 5, v{vU}')
    A(f'v_permlane32_swap_b32 v{vT}, v{vL}')
    A(f'v_lshrrev_b32 v{vA}, 4, v0')
    for e in range(4): A(f'v_permlane32_swap_b32 v{vAcc+e}, v{vAcc+e+4}')
    A(f'v_add_f32 v{vL}, v{vL}, v{vT}')
    for e in range(4): A(f'v_add_f32 v{vAcc+e}, v{vAcc+e}, v{vAcc+e+4}')
    A(f'v_mov_b32 v{vT}, v{vL}')
    A(f'v_lshl_add_u32 v{vU}, v{vA}, 3, v{vU}')
    for e in range(2): A(f'v_permlane16_swap_b32 v{vAcc+e}, v{vAcc+e+2}')
    A(f'v_permlane16_swap_b32 v{vT}, v{vL}')
    A(f's_lshl_b32 s61, s3, 9'); A(f'v_add_u32 v{vU}, s61, v{vU}')
    for e in range(2): A(f'v_add_f32 v{vAcc+e}, v{vAcc+e}, v{vAcc+e+2}')
    A(f'v_add_f32 v{vL}, v{vL}, v{vT}')
    A(f'ds_write_b64 v{vU}, {V(vAcc,2)} offset:{L_O}')
    A('s_lshl_b32 s61, s3, 2'); A(f'v_mov_b32 v{vA}, s61')
    A('s_mov_b64 exec, 1')
    A(f'ds_write_b32 v{vA}, v{vNM} offset:{L_M}'); A(f'ds_write_b32 v{vA}, v{vL} offset:{L_L}')
    A('s_waitcnt lgkmcnt(0)')
    A('s_barrier')
    stamp(5)
    if p.stamps:
        A('L_flush:')
        A('s_mov_b64 exec, 1')
        A('s_waitcnt lgkmcnt(0)')
        srd(A, SW2, 30, WS_BYTES)
        A('s_lshl_b32 s60, s2, 10'); A('s_lshl_b32 s61, s3, 7'); A('s_add_u32 s60, s60, s61'); A(f's_add_u32 s60, s60, {STMP}')
        A('v_mov_b32 v1, s60')
        for k in range(15):
            A(f'v_mov_b32 v2, s{72+2*k}')
            A(f'buffer_store_dword v2, v1, {S(SW2)}, 0 offen offset:{4*k} sc1')
        A('s_waitcnt vmcnt(0)')
    A('L_exit:')
    A('s_endpgm')
    for st in stubs:
        A(f'{st}:'); A('s_call_b64 s[40:41], L_rescale'); A(f's_branch {st}_b')
    A('L_rescale:')
    A(f'v_mov_b32 v{vT}, v{vS}'); A(f'v_mov_b32 v{vU}, v{vS}')
    A(f'v_permlane32_swap_b32 v{vT}, v{vU}')
    A(f'v_max_f32 v{vT}, v{vT}, v{vU}'); A(f'v_mov_b32 v{vU}, v{vT}')
    A(f'v_permlane16_swap_b32 v{vT}, v{vU}')
    A(f'v_max3_f32 v{vM}, v{vT}, v{vU}, v{vM}')
    A(f'v_mul_f32 v{vT}, {f32(-LOG2E)}, v{vM}')
    A(f'v_sub_f32 v{vA}, v{vT}, v{vNM}')
    A(f'v_exp_f32 v{vA}, v{vA}')
    A(f'v_mov_b32 v{vNM}, v{vT}')
    A(f'v_mul_f32 v{vL}, v{vL}, v{vA}')
    for e in range(8): A(f'v_mul_f32 v{vAcc+e}, v{vAcc+e}, v{vA}')
    A('s_setpc_b64 s[40:41]')

    vOwn, vA0, vA1, vW, vSp, vAc, vX = 16, 24, 32, 40, 104, 106, 128
    wf = p.wflag
    def dpp(op, d, a, b, ctl, rm='0xf'): A(f'{op}_dpp v{d}, v{a}, v{b} {ctl} row_mask:{rm} bank_mask:0xf')
    def movdpp(d, a, ctl): A(f'v_mov_b32_dpp v{d}, v{a} {ctl} row_mask:0xf bank_mask:0xf')
    def rbf(d, s): A(f'v_cvt_pk_bf16_f32 v{d}, 0, v{s}')
    def pk(op, d, a, b, bc=False): A(f'v_pk_{op}_f32 {V(d,2)}, {V(a,2)}, {V(b,2)}' + (' op_sel_hi:[1,0]' if bc else ''))
    def bail(back):
        A('s_add_u32 s68, s68, 1'); A(f's_cmp_lt_u32 s68, {p.limit}'); A(f's_cbranch_scc1 {back}')
    def maxall(d, regs):
        regs = list(regs)
        if len(regs) == 1: return regs[0]
        if len(regs) == 2: A(f'v_max_u32 v{d}, v{regs[0]}, v{regs[1]}'); return d
        A(f'v_max3_u32 v{d}, v{regs[0]}, v{regs[1]}, v{regs[2]}'); regs = regs[3:]
        while len(regs) >= 2:
            A(f'v_max3_u32 v{d}, v{d}, v{regs[0]}, v{regs[1]}'); regs = regs[2:]
        if regs: A(f'v_max_u32 v{d}, v{d}, v{regs[0]}')
        return d
    def poll(loads, regs, tmp, sleep=0):
        L = A.label('poll'); D = L + '_d'
        A('s_mov_b32 s68, 0')
        A(f'{L}:')
        for l in loads: A(l)
        A('s_waitcnt vmcnt(0)')
        t = maxall(tmp, regs)
        A(f'v_cmpx_eq_u32 vcc, -1, v{t}')
        A(f's_cbranch_execz {D}')
        if sleep: A(f's_sleep {sleep}')
        bail(L)
        A(f'{D}:')
        A('s_mov_b64 exec, -1')
    def waitprog(lim, all4):
        L = A.label('prog'); D = L + '_d'
        A('s_mov_b32 s68, 0'); A('v_mov_b32 v15, 0')
        A(f'{L}:')
        if all4:
            A(f'ds_read_b128 v[8:11], v15 offset:{L_PR}') if False else None
            A(f'ds_read_b64 v[8:9], v15 offset:{L_PR}'); A(f'ds_read_b64 v[6:7], v15 offset:{L_PR+8}')
            A('s_waitcnt lgkmcnt(0)'); A('v_max3_u32 v14, v8, v9, v6'); A('v_max_u32 v14, v14, v7')
        else:
            A(f'ds_read_b32 v14, v15 offset:{L_PR}'); A('s_waitcnt lgkmcnt(0)')
        A(f'v_cmp_lt_u32 vcc, {lim}, v14'); A(f's_cbranch_vccz {D}')
        A(f's_sleep {p.psleep}')
        bail(L)
        A(f'{D}:')
    def waitflag(off, sleep, want=None):
        L = A.label('flag'); D = L + '_d'
        A('s_mov_b32 s68, 0'); A('s_mov_b64 exec, 1'); A('v_mov_b32 v15, 0')
        A(f'{L}:')
        A(f'buffer_load_dword v14, v15, {S(SDBG)}, 0 offen offset:{off} sc1')
        A('s_waitcnt vmcnt(0)')
        A('v_cmp_eq_u32 vcc, 0, v14' if want is None else f'v_cmp_ne_u32 vcc, {want}, v14'); A(f's_cbranch_vccz {D}')
        A(f's_sleep {sleep}')
        bail(L)
        A(f'{D}:')
        A('s_mov_b64 exec, -1')
    def arrive(off, last, flagoff):
        D = A.label('arr')
        A('s_mov_b64 exec, 1'); A('v_mov_b32 v15, 0'); A('v_mov_b32 v14, 1')
        A(f'buffer_atomic_add v14, v15, {S(SDBG)}, 0 offen offset:{off} sc0 sc1')
        A('s_waitcnt vmcnt(0)')
        A(f'v_cmp_ne_u32 vcc, {last}, v14'); A(f's_cbranch_vccnz {D}')
        A(f'buffer_store_dword v14, v15, {S(SDBG)}, 0 offen offset:{flagoff} sc1')
        A(f'{D}:')
        A('s_mov_b64 exec, -1')
    def pair_perm(base, npairs, spare, w=4):
        m = {}; free = spare
        for t in range(npairs):
            for j in range(w):
                a, b = base + 2*w*t + j, base + 2*w*t + w + j
                A(f'v_perm_b32 v{free}, v{b}, v{a}, s{PLO}'); m[(t, 2*j)] = free
                A(f'v_perm_b32 v{b}, v{b}, v{a}, s{PHI}'); m[(t, 2*j+1)] = b
                free = a
        return m
    def zero(r, n):
        for e in range(n): A(f'v_mov_b32 v{r+e}, 0')
    def mv_dots(m):
        for t in range(8):
            for e in range(8):
                A(f'v_dot2c_f32_bf16 v{vAc+e}, v{vA0+t}, v{m[(t,e)]}')
                A(f'v_dot2c_f32_bf16 v{vAc+8+e}, v{vA1+t}, v{m[(t,e)]}')
    def fold(r, n, which):
        h = n // 2
        for e in range(h): A(f'v_permlane{which}_swap_b32 v{r+e}, v{r+h+e}')
        for e in range(h): A(f'v_add_f32 v{r+e}, v{r+e}, v{r+h+e}')
    def rors(r, n, ks):
        for k in ks:
            for e in range(n): dpp('v_add_f32', r+e, r+e, r+e, f'row_ror:{k}')
    def allsum_parity(r, t):
        rors(r, 1, (2, 4, 8))
        A(f'v_mov_b32 v{t}, v{r}'); A(f'v_permlane16_swap_b32 v{t}, v{r}'); A(f'v_add_f32 v{r}, v{r}, v{t}')
        A(f'v_mov_b32 v{t}, v{r}'); A(f'v_permlane32_swap_b32 v{t}, v{r}'); A(f'v_add_f32 v{r}, v{r}, v{t}')
    def unpack(dst, src, n):
        for i in range(n):
            A(f'v_lshlrev_b32 v{dst+2*i}, 16, v{src+i}'); A(f'v_and_b32 v{dst+2*i+1}, 0xffff0000, v{src+i}')
    def setexec(mask):
        lo, hi = mask & 0xffffffff, mask >> 32
        A(f's_mov_b32 exec_lo, 0x{lo:x}'); A(f's_mov_b32 exec_hi, 0x{hi:x}')
    def ln_tail(nmean, var):
        rbf(var, var); rbf(nmean, nmean)
        A(f'v_add_f32 v{var}, {f32(1e-5)}, v{var}'); rbf(var, var)
        A(f'v_sqrt_f32 v{var}, v{var}'); rbf(var, var); A(f'v_rcp_f32 v{var}, v{var}')

    def modcalc(x):
        A(f's_waitcnt vmcnt({16+x})')
        unpack(vX, vOwn, 8)
        for i in range(16): A(f'v_mul_f32 v{vX+16+i}, {f32(-LOG2E)}, v{vX+i}')
        for i in range(16): A(f'v_exp_f32 v{vX+16+i}, v{vX+16+i}')
        for i in range(16): A(f'v_add_f32 v{vX+16+i}, 1.0, v{vX+16+i}')
        for i in range(16): A(f'v_rcp_f32 v{vX+16+i}, v{vX+16+i}')
        for i in range(0, 16, 2): pk('mul', vX+i, vX+i, vX+16+i)
        for i in range(8): A(f'v_cvt_pk_bf16_f32 v{vOwn+i}, v{vX+2*i}, v{vX+2*i+1}')
        for t in range(8):
            movdpp(vA0+t, vOwn+t, 'quad_perm:[0,0,2,2]'); movdpp(vA1+t, vOwn+t, 'quad_perm:[1,1,3,3]')
        stamp(1)
        free = vSp
        for t in range(8):
            A(f's_waitcnt vmcnt({14-2*t+x})')
            m = {}
            for j in range(4):
                a, b = vW + 8*t + j, vW + 8*t + 4 + j
                A(f'v_perm_b32 v{free}, v{b}, v{a}, s{PLO}'); m[2*j] = free
                A(f'v_perm_b32 v{b}, v{b}, v{a}, s{PHI}'); m[2*j+1] = b
                free = a
            for e in range(8):
                A(f'v_dot2c_f32_bf16 v{vAc+e}, v{vA0+t}, v{m[e]}')
                A(f'v_dot2c_f32_bf16 v{vAc+8+e}, v{vA1+t}, v{m[e]}')
        stamp(2)

    def guloads():
        srd(A, SW, 16, 512*1792*2); srd(A, SW2, 18, 512*1792*2)
        A(f's_mov_b32 s60, {4*3584}'); A('v_mul_lo_u32 v1, s60, v0'); A(f's_lshl_b32 s61, s{sFB}, 4'); A('v_add_u32 v1, s61, v1')
        for i in range(8 if 'g' not in p.skip else 0):
            A(f's_mov_b32 s60, {(256*(i>>2) + (i&3))*3584}')
            A(f'buffer_load_dwordx4 {V(vX+8*i,4)}, v1, {S(SW)}, s60 offen {wf}')
            A(f's_waitcnt vmcnt({p.gw})')
            A(f'buffer_load_dwordx4 {V(vX+8*i+4,4)}, v1, {S(SW2)}, s60 offen {wf}')
            A(f's_waitcnt vmcnt({p.gw})')

    A('L_helper:')
    A(f's_mov_b32 s{PLO}, 0x05040100'); A(f's_mov_b32 s{PHI}, 0x07060302')
    A('v_and_b32 v11, 1, v0'); A('v_bfe_u32 v12, v0, 4, 1'); A('v_lshrrev_b32 v13, 5, v0')
    A('v_mov_b32 v5, 0'); A('v_mov_b32 v6, 0')
    A(f's_lshr_b32 s60, s{sIdx}, 3'); A('s_lshl_b32 s60, s60, 3'); A(f's_add_u32 s60, s60, s{sX}')
    A(f's_lshl_b32 s{sFB}, s60, 3'); A(f's_add_u32 s{sFB}, s{sFB}, s{sJ}')
    A(f's_sub_u32 s60, s{sIdx}, 8'); A(f's_lshl_b32 s61, s{sX}, 2'); A(f's_add_u32 s{sR}, s60, s61')
    A('s_cmp_lt_u32 s60, 4'); A(f's_cselect_b32 s{sR}, s{sR}, 64')
    A('s_waitcnt lgkmcnt(0)')
    srd(A, SWS, 30, WS_BYTES); srd(A, SDBG, 28, 256)
    A('s_cmp_eq_u32 s3, 5'); A('s_cbranch_scc1 L_taskB')
    A('s_cmp_eq_u32 s3, 6'); A('s_cbranch_scc1 L_clear')
    A('s_cmp_eq_u32 s3, 7'); A(f's_cbranch_scc1 {"L_stage" if p.guearly else "L_bar2"}')
    A('s_cmp_ge_u32 s2, 64'); A('s_cbranch_scc1 L_bar2')
    A('s_and_b32 s62, s2, 15'); A('s_lshr_b32 s63, s2, 4')
    A('s_call_b64 s[42:43], L_modload')
    for i in range(4): A(f'v_mov_b32 v{4+i}, -1')
    A(f's_lshl_b32 s61, s{sX}, 3'); A(f's_add_u32 s64, s61, s{sIdx}')
    A('s_lshl_b32 s61, s64, 12'); A('v_lshl_add_u32 v3, v0, 4, s61'); A(f's_mov_b32 s60, {QP}')
    for i in range(4): A(f'buffer_store_dwordx4 v[4:7], v3, {S(SWS)}, s60 offen offset:{1024*i} {p.cflag}')
    A('s_lshl_b32 s61, s64, 4'); A(f's_add_u32 s61, s61, {CLRF}'); A('v_mov_b32 v3, 0'); A('s_mov_b64 exec, 1')
    A(f'buffer_store_dwordx4 v[4:7], v3, {S(SWS)}, s61 offen sc1')
    A('s_mov_b64 exec, -1')
    zero(vAc, 16)
    modcalc(5)
    fold(vAc, 16, 32); fold(vAc, 8, 16); rors(vAc, 4, (8,))
    A('v_and_b32 v1, 7, v0'); A('v_lshlrev_b32 v1, 5, v1'); A('v_lshl_add_u32 v1, v12, 4, v1'); A('v_lshl_add_u32 v1, v13, 8, v1')
    A('s_lshl_b32 s60, s62, 2'); A('s_add_u32 s60, s60, s63'); A('s_lshl_b32 s60, s60, 9')
    setexec(0x00ff00ff00ff00ff)
    A(f'buffer_store_dwordx4 {V(vAc,4)}, v1, {S(SWS)}, s60 offen sc1')
    stamp(3)
    A('s_waitcnt vmcnt(0)')
    stamp(4)
    if 'x' in p.skip:
        A('s_mov_b64 exec, 1'); A('v_mov_b32 v15, 0'); A('v_mov_b32 v14, 1')
        for i in range(4): A(f'buffer_atomic_add v14, v15, {S(SDBG)}, 0 offen offset:8 sc1'); A('s_waitcnt vmcnt(0)')
    arrive(0, 63, 128)
    stamp(5)
    A('s_branch L_bar2')
    A('L_modload:')
    srd(A, SW2, 22, 2048); srd(A, SW, 24, 512*3072*2)
    A('v_lshrrev_b32 v10, 3, v0')
    A('v_lshlrev_b32 v1, 5, v10'); A('v_lshl_add_u32 v1, v11, 10, v1'); A('s_lshl_b32 s60, s63, 8')
    A(f'buffer_load_dwordx4 {V(vOwn,4)}, v1, {S(SW2)}, s60 offen')
    A(f'buffer_load_dwordx4 {V(vOwn+4,4)}, v1, {S(SW2)}, s60 offen offset:16')
    A(f's_mov_b32 s60, {16*6144}'); A('v_mul_lo_u32 v1, s60, v10'); A('v_and_b32 v2, 7, v0'); A('v_lshl_add_u32 v1, v2, 4, v1')
    A(f's_mul_i32 s60, s63, {128*6144}'); A('s_lshl_b32 s61, s62, 7'); A('s_add_u32 s60, s60, s61')
    for i in range(16):
        A(f'buffer_load_dwordx4 {V(vW+4*i,4)}, v1, {S(SW)}, s60 offen {wf}')
        if i < 15: A('s_add_u32 s60, s60, 6144')
    A('s_setpc_b64 s[42:43]')
    A('L_clear:')
    for i in range(4): A(f'v_mov_b32 v{4+i}, -1')
    if not p.own:
        A('s_mul_i32 s61, s2, 5120'); A('v_lshl_add_u32 v3, v0, 4, s61'); A(f's_mov_b32 s60, {LATE}'); A(f's_mov_b32 s61, {LATE+4096}')
        if 'c' not in p.skip:
            for i in range(4): A(f'buffer_store_dwordx4 v[4:7], v3, {S(SWS)}, s60 offen offset:{1024*i} {p.cflag}')
            A(f'buffer_store_dwordx4 v[4:7], v3, {S(SWS)}, s61 offen {p.cflag}')
    elif 'c' not in p.skip:
        cs = lambda v, so: A(f'buffer_store_dwordx4 v[4:7], v{v}, {S(SWS)}, {so} offen {p.cflag}')
        A('v_lshlrev_b32 v3, 4, v0'); A(f's_mul_i32 s60, s{sP}, 640'); A(f's_add_u32 s60, s60, {OP}')
        A('v_and_b32 v2, 7, v0'); A('v_lshlrev_b32 v2, 4, v2'); A('v_bfe_u32 v8, v0, 3, 1'); A('v_lshl_add_u32 v8, v12, 4, v8'); A('v_lshl_add_u32 v8, v8, 12, v2')
        setexec((1 << 40) - 1); cs(3, 's60')
        A(f's_lshl_b32 s60, s{sJ}, 6'); A(f's_add_u32 s60, s60, s{sH}'); A('s_lshl_b32 s60, s60, 7'); A(f's_add_u32 s60, s60, {YB}')
        setexec(0xffffffff); cs(8, 's60')
        A(f's_cmp_ge_u32 s{sFB}, 224'); A('s_cbranch_scc1 L_clr_b')
        A('s_mov_b64 exec, -1')
        A('v_lshrrev_b32 v8, 3, v0'); A('v_mul_u32_u24 v8, 28672, v8'); A('v_add_u32 v8, v8, v2')
        A(f's_lshl_b32 s60, s{sFB}, 7'); A(f's_add_u32 s60, s60, {Y2}')
        for i in range(4):
            cs(8, 's60'); A(f's_add_u32 s60, s60, {8*28672}')
        A(f's_cmp_ge_u32 s{sR}, 32'); A('s_cbranch_scc1 L_clr_p')
        A(f's_lshl_b32 s60, s{sR}, 7'); A(f's_add_u32 s60, s60, {X2}'); A('s_mov_b64 exec, 0xff'); cs(3, 's60')
        A('s_branch L_clr_p')
        A('L_clr_b:')
        A('v_and_b32 v8, 15, v0'); A('v_lshlrev_b32 v8, 4, v8'); A('v_lshl_add_u32 v8, v12, 13, v8')
        A(f's_lshl_b32 s60, s{sFB}, 8'); A(f's_add_u32 s60, s60, {MODB - 224*256}'); cs(8, 's60')
        A('L_clr_p:')
        if p.ctl:
            A(f's_and_b32 s60, s{sIdx}, {(1 << p.psh) - 1}'); A(f's_cmp_lg_u32 s60, {(1 << p.psh)//2}'); A('s_cbranch_scc1 L_clr_d')
            A(f's_lshr_b32 s60, s{sIdx}, {p.psh}'); A('s_lshl_b32 s60, s60, 3'); A(f's_add_u32 s60, s60, s{sX}'); A('s_lshl_b32 s60, s60, 7'); A(f's_add_u32 s60, s60, {PRG}')
            A('s_mov_b64 exec, 0xff'); cs(3, 's60')
            A('L_clr_d:')
        A('s_mov_b64 exec, -1')
    A('s_waitcnt vmcnt(0)')
    A('s_branch L_bar2')
    A('L_taskB:')
    srd(A, SW2, 4, 2048); srd(A, SW, 10, 512*4096*2)
    A('v_lshrrev_b32 v10, 1, v0'); A('v_lshlrev_b32 v1, 5, v10'); A('v_lshl_add_u32 v1, v11, 10, v1')
    A(f'buffer_load_dwordx4 {V(vOwn,4)}, v1, {S(SW2)}, 0 offen')
    A(f'buffer_load_dwordx4 {V(vOwn+4,4)}, v1, {S(SW2)}, 0 offen offset:16')
    A('v_lshrrev_b32 v9, 4, v0'); A('v_and_b32 v8, 14, v0'); A('v_lshl_add_u32 v8, v9, 4, v8')
    A('v_lshlrev_b32 v1, 1, v8'); A('v_lshl_add_u32 v1, v11, 10, v1'); A(f's_lshl_b32 s60, s{sJ}, 7')
    A(f'buffer_load_dword v7, v1, {S(SW2)}, s60 offen')
    A('v_lshlrev_b32 v1, 17, v9'); A('v_and_b32 v10, 15, v0'); A('v_lshl_add_u32 v1, v10, 4, v1')
    A(f's_lshl_b32 s60, s{sJ}, 19'); A(f's_lshl_b32 s61, s{sH}, 8'); A('s_add_u32 s60, s60, s61')
    def wqloads():
        for i in range(16):
            A(f'buffer_load_dwordx4 {V(vW+4*i,4)}, v1, {S(SW)}, s60 offen {wf}')
            if i < 15: A('s_add_u32 s60, s60, 8192')
    if not p.blate:
        wqloads(); A('s_waitcnt vmcnt(16)')
    else:
        A('s_waitcnt vmcnt(0)')
    unpack(vX, vOwn, 8)
    w = vX + 16
    pk('add', w, vX, vX+2)
    for i in range(4, 16, 2): pk('add', w, w, vX+i)
    A(f'v_add_f32 v2, v{w}, v{w+1}')
    allsum_parity(2, 3)
    A(f'v_mul_f32 v2, {f32(-1.0/512)}, v2')
    for i in range(0, 16, 2): pk('add', w+i, vX+i, 2, True)
    pk('mul', 4, w, w)
    for i in range(2, 16, 2): A(f'v_pk_fma_f32 v[4:5], {V(w+i,2)}, {V(w+i,2)}, v[4:5]')
    A('v_add_f32 v4, v4, v5')
    allsum_parity(4, 5)
    A(f'v_mul_f32 v4, {f32(1.0/512)}, v4')
    if p.blate: wqloads()
    ln_tail(2, 4)
    unpack(vX, 7, 1)
    pk('add', vX, vX, 2, True); rbf(vX, vX); rbf(vX+1, vX+1)
    pk('mul', vX, vX, 4, True); rbf(vX, vX); rbf(vX+1, vX+1)
    zero(vAc, 16)
    A('v_lshlrev_b32 v6, 2, v8'); A('v_lshl_add_u32 v6, v11, 8, v6')
    A('v_lshlrev_b32 v1, 5, v10'); A('v_lshl_add_u32 v1, v12, 4, v1'); A('v_lshl_add_u32 v1, v13, 12, v1')
    A(f's_lshl_b32 s62, s{sJ}, 11'); A('s_add_u32 s63, s62, 16384')
    stamp(1)
    A('s_waitcnt vmcnt(0)')
    stamp(2)
    m = pair_perm(vW, 8, vSp)
    waitflag(128, p.gosleep)
    stamp(3)
    for i in range(4 if 'M' not in p.skip else 0):
        A(f'buffer_load_dwordx2 {V(vX+2+2*i,2)}, v6, {S(SWS)}, s63 offen offset:{512*i} sc1')
    for i in range(4 if 'M' not in p.skip else 0):
        A(f'buffer_load_dwordx2 {V(vX+10+2*i,2)}, v6, {S(SWS)}, s62 offen offset:{512*i} sc1')
    A(f's_lshl_b32 s60, s{sH}, 13'); A(f's_lshl_b32 s61, s{sJ}, 9'); A('s_add_u32 s61, s61, s60'); A(f's_add_u32 s61, s61, {QP}')
    A(f's_lshl_b32 s62, s{sB}, 12'); A('s_add_u32 s60, s60, s62'); A(f's_add_u32 s60, s60, {QP}')
    A('s_waitcnt vmcnt(4)')
    c1, sa = vX+2, vX+10
    pk('add', c1, c1, c1+2); pk('add', c1+4, c1+4, c1+6); pk('add', c1, c1, c1+4)
    rbf(c1, c1); rbf(c1+1, c1+1)
    A(f'v_add_f32 v{c1}, 1.0, v{c1}'); A(f'v_add_f32 v{c1+1}, 1.0, v{c1+1}')
    rbf(c1, c1); rbf(c1+1, c1+1)
    pk('mul', vX, vX, c1); rbf(vX, vX); rbf(vX+1, vX+1)
    A('s_waitcnt vmcnt(0)')
    stamp(4)
    pk('add', sa, sa, sa+2); pk('add', sa+4, sa+4, sa+6); pk('add', sa, sa, sa+4)
    rbf(sa, sa); rbf(sa+1, sa+1)
    pk('add', vX, vX, sa)
    A(f'v_cvt_pk_bf16_f32 v{vOwn}, v{vX}, v{vX+1}')
    for t in range(8):
        movdpp(vA0+t, vOwn, f'row_newbcast:{2*t}'); movdpp(vA1+t, vOwn, f'row_newbcast:{2*t+1}')
    mv_dots(m)
    fold(vAc, 16, 32); fold(vAc, 8, 16)
    if 'W' not in p.skip: A(f'buffer_store_dwordx4 {V(vAc,4)}, v1, {S(SWS)}, s61 offen {p.qflag}')
    stamp(5)
    A('v_lshlrev_b32 v1, 4, v0')
    A('v_and_b32 v2, 31, v0'); A('v_lshlrev_b32 v2, 3, v2'); A('v_lshl_add_u32 v2, v13, 2, v2')
    A('s_waitcnt vmcnt(0)')
    if p.qsleep: A(f's_sleep {p.qsleep}')
    if 'P' not in p.skip: poll([f'buffer_load_dwordx4 {V(vX+4*i,4)}, v1, {S(SWS)}, s60 offen offset:{1024*i} sc1' for i in range(4)],
         range(vX, vX+16), 8, sleep=p.qpsleep)
    for a, b in ((0, 4), (8, 12), (0, 8)):
        pk('add', vX+a, vX+a, vX+b); pk('add', vX+a+2, vX+a+2, vX+b+2)
    fold(vX, 4, 32)
    A(f'v_cvt_pk_bf16_f32 v3, v{vX}, v{vX+1}')
    A(f'ds_write_b32 v2, v3 offset:{L_Q}')
    A('s_waitcnt lgkmcnt(0)')
    stamp(6)
    if p.gub:
        A(f's_cmp_ge_u32 s{sFB}, 224'); A('s_cbranch_scc1 L_bar2')
        guloads()
    A('L_bar2:')
    A('s_barrier')
    A('s_cmp_eq_u32 s3, 5'); A(f's_cbranch_scc1 {"L_stage" if p.gub else "L_wo"}')
    A('s_cmp_eq_u32 s3, 4'); A('s_cbranch_scc1 L_bgA')
    A('s_cmp_eq_u32 s3, 7'); A(f's_cbranch_scc1 {"L_wo" if p.guearly or p.gub else "L_stage"}')
    A('s_mov_b64 exec, 1'); A('v_mov_b32 v15, 0'); A(f's_lshl_b32 s61, s{sX}, 5'); A(f's_add_u32 s61, s61, s{sIdx}')
    A('s_lshl_b32 s61, s61, 2'); A(f's_add_u32 s61, s61, {CLRF}')
    if 'f' not in p.skip: A(f'buffer_store_dword v15, v15, {S(SWS)}, s61 offen sc1')
    A('s_mov_b64 exec, -1')
    waitprog(left, True)
    srd(A, SW, 12, 4096*512*2)
    A('v_lshrrev_b32 v3, 3, v0'); A('v_lshlrev_b32 v1, 13, v3'); A('v_and_b32 v2, 7, v0'); A('v_lshl_add_u32 v1, v2, 4, v1')
    A(f's_lshl_b32 s60, s{sH}, 17'); A(f's_lshl_b32 s61, s{sJ}, 7'); A('s_add_u32 s60, s60, s61')
    for n in range(16 if 'o' not in p.skip else 0):
        A(f's_add_u32 s61, s60, {(n>>3)*65536 + (n&4)*1024}')
        A(f'buffer_load_dwordx4 {V(vX+4*n,4)}, v1, {S(SW)}, s61 offen offset:{(n&3)*1024} {wf}')
        A('s_waitcnt vmcnt(2)')
    A('v_lshlrev_b32 v3, 6, v3'); A('v_and_b32 v4, 3, v0'); A('v_lshl_add_u32 v3, v4, 4, v3'); A('v_bfe_u32 v4, v0, 2, 1'); A('v_lshl_add_u32 v3, v4, 13, v3')
    A('s_waitcnt vmcnt(0)')
    for hf in range(2):
        for t in range(4):
            for j in range(4):
                a_, b_ = vX + 32*hf + 8*t + j, vX + 32*hf + 8*t + 4 + j
                d = 192 + 32*hf + 8*t + 2*j
                A(f'v_perm_b32 v{d}, v{b_}, v{a_}, s{PLO}'); A(f'v_perm_b32 v{d+1}, v{b_}, v{a_}, s{PHI}')
        for q in range(8): A(f'ds_write_b128 v3, {V(192+32*hf+4*q,4)} offset:{L_X + 1024*q + 512*hf}')
    A('s_waitcnt lgkmcnt(0)')
    A('s_branch L_wo')
    A('L_bgA:')
    A(f's_cmp_lt_u32 s{sFB}, 224'); A('s_cbranch_scc1 L_bgA_wait')
    A(f's_sub_u32 s62, s{sFB}, {224 - 16}'); A('s_mov_b32 s63, 0')
    zero(vAc, 16)
    A('L_bgA_loop:')
    if 'b' not in p.skip:
        A('s_call_b64 s[42:43], L_modload')
        modcalc(0)
    A('s_add_u32 s63, s63, 1'); A('s_cmp_lt_u32 s63, 4'); A('s_cbranch_scc1 L_bgA_loop')
    fold(vAc, 16, 32); fold(vAc, 8, 16); rors(vAc, 4, (8,))
    A('s_lshr_b32 s61, s62, 3'); A('s_cmp_eq_u32 s61, 4'); A('s_cselect_b32 s63, 1.0, 0')
    for e in range(4): rbf(vAc+e, vAc+e)
    for e in range(4): A(f'v_add_f32 v{vAc+e}, s63, v{vAc+e}')
    for e in range(4): rbf(vAc+e, vAc+e)
    A('L_bgA_wait:')
    waitprog(left + EL if p.clk else left, False)
    if p.clk: A('s_memrealtime s[64:65]')
    A('v_lshlrev_b32 v10, 4, v0'); A(f's_mov_b32 s60, {CLRF}')
    if 'f' not in p.skip: poll([f'buffer_load_dwordx4 v[4:7], v10, {S(SWS)}, s60 offen sc1'], range(4, 8), 8, sleep=p.csleep)
    A(f's_cmp_lt_u32 s{sFB}, 224'); A('s_cbranch_scc1 L_ctl')
    A('v_and_b32 v1, 7, v0'); A('v_lshlrev_b32 v1, 5, v1'); A('v_lshl_add_u32 v1, v12, 4, v1'); A('v_lshl_add_u32 v1, v13, 13, v1')
    A('s_lshl_b32 s60, s62, 8'); A(f's_add_u32 s60, s60, {MODB - 4096}')
    setexec(0x00ff00ff00ff00ff)
    A(f'buffer_store_dwordx4 {V(vAc,4)}, v1, {S(SWS)}, s60 offen sc1')
    A('s_mov_b64 exec, -1')
    A('L_ctl:')
    A('v_lshlrev_b32 v10, 2, v0'); A(f's_mov_b32 s62, {PRG}'); A('v_lshlrev_b32 v3, 4, v0')
    if p.pcls:
        A('v_and_b32 v2, 7, v0'); A(f'v_mul_u32_u24 v2, {p.pstride}, v2'); A('v_lshrrev_b32 v4, 3, v0'); A('v_lshl_add_u32 v2, v4, 2, v2')
        A(f's_lshr_b32 s60, s{sIdx}, {p.psh}'); A('s_lshl_b32 s60, s60, 2'); A(f's_mul_i32 s61, s{sX}, {p.pstride}'); A('s_add_u32 s60, s60, s61'); A(f's_add_u32 s63, s60, {PRG}')
    else:
        A(f'v_mul_u32_u24 v2, {p.pstride}, v0')
        A(f's_lshr_b32 s60, s{sIdx}, {p.psh}'); A('s_lshl_b32 s60, s60, 3'); A(f's_add_u32 s60, s60, s{sX}'); A(f's_mul_i32 s60, s60, {p.pstride}'); A(f's_add_u32 s63, s60, {PRG}')
    for k, mae in enumerate(p.mae.split(',') if p.clk else []):
        M_, A_, E_ = map(int, mae.split(':'))
        npub = 256 >> p.psh
        assert npub == 16
        if k:
            waitprog(M_, False); A('s_memrealtime s[64:65]')
        A('s_waitcnt lgkmcnt(0)'); A('s_and_b32 s64, s64, -2')
        A(f's_and_b32 s60, s{sIdx}, {(1 << p.psh) - 1}'); A(f's_cmp_lg_u32 s60, {(1 << p.psh)//2}'); A(f's_cbranch_scc1 L_nopub{k}')
        A('s_mov_b64 exec, 0xff')
        for i in range(4): A(f'v_mov_b32 v{4+i}, s64')
        A(f'buffer_store_dwordx4 v[4:7], v3, {S(SWS)}, s63 offen offset:{2048*(k&1)} sc1')
        A('s_mov_b64 exec, -1')
        A(f'L_nopub{k}:')
        waitprog(A_, False)
        A('s_mov_b64 exec, 0xffff')
        A(f'buffer_load_dword v14, v2, {S(SWS)}, s62 offen offset:{2048*(k&1)} sc1')
        if k & 1: A('s_add_u32 s62, s62, 4096'); A('s_add_u32 s63, s63, 4096')
        A('v_mov_b32 v8, 0xfffffed4')
        A('s_waitcnt vmcnt(0)')
        A('v_sub_u32 v9, s64, v14'); A('v_cmp_eq_u32 vcc, -1, v14'); A('v_cndmask_b32 v9, v9, v8, vcc')
        for r in (8, 4, 2, 1): dpp('v_add_u32', 9, 9, 9, f'row_ror:{r}')
        A('v_readfirstlane_b32 s60, v9')
        if p.stamps and k < 6: A('s_ashr_i32 s61, s60, 4'); A(f's_add_u32 s{74+2*k}, s61, s72')
        A('s_cmp_gt_i32 s60, 0'); A(f's_cselect_b32 s61, {p.gf}, {p.gs}'); A('s_cselect_b32 s66, 2, 0')
        A('s_abs_i32 s60, s60'); A('s_mul_i32 s60, s60, s61'); A('s_lshr_b32 s60, s60, 10'); A(f's_min_u32 s60, s60, {A_ - E_}')
        A('s_cmp_eq_u32 s60, 0'); A(f's_cbranch_scc1 L_noact{k}')
        A(f's_sub_u32 s67, {A_}, s60')
        A('s_mov_b64 exec, 15'); A('v_mov_b32 v14, s66'); A(f'ds_write_b32 v10, v14 offset:{L_LV}'); A('s_mov_b64 exec, -1')
        waitprog('s67', False)
        A('s_mov_b64 exec, 15'); A('v_mov_b32 v14, 1'); A(f'ds_write_b32 v10, v14 offset:{L_LV}')
        A(f'L_noact{k}:')
        A('s_mov_b64 exec, -1')
    for k, cp in enumerate(p.cps.split(',') if p.ctl and not p.clk else []):
        waitprog(int(cp), False)
        A('v_mov_b32 v14, -1'); setexec((1 << (256 >> p.psh)) - 1)
        if 'L' not in p.skip: A(f'buffer_load_dword v14, v2, {S(SWS)}, s62 offen {p.plflag}')
        A(f's_and_b32 s60, s{sIdx}, {(1 << p.psh) - 1}'); A(f's_cmp_lg_u32 s60, {(1 << p.psh)//2}'); A(f's_cbranch_scc1 L_nopub{k}')
        A(f's_mov_b64 exec, {(1 << p.pfull) - 1}')
        for i in range(4): A(f'v_mov_b32 v{4+i}, {cp}')
        if p.pcls:
            A('s_mov_b64 exec, 1'); A(f'buffer_store_dword v4, v3, {S(SWS)}, s63 offen {p.pflag}')
        elif 'S' not in p.skip: A(f'buffer_store_dwordx4 v[4:7], v3, {S(SWS)}, s63 offen {p.pflag}')
        A(f'L_nopub{k}:')
        A('s_mov_b64 exec, -1')
        A('s_waitcnt vmcnt(0)'); A(f'v_cmp_ge_u32 vcc, {cp}, v14'); A('s_bcnt1_i32_b64 s60, vcc')
        A('s_mov_b64 exec, 15'); A('s_mov_b32 s61, 0')
        if p.stamps and k < 6: A(f's_add_u32 s{74+2*k}, s60, s72')
        for t in p.thr.split(','):
            A(f's_cmp_ge_u32 s60, {t}'); A('s_addc_u32 s61, s61, 0')
        A('v_mov_b32 v14, s61')
        A(f'ds_write_b32 v10, v14 offset:{L_LV}')
        A('s_mov_b64 exec, -1')
    A('s_branch L_wo')
    A('L_stage:')
    A(f's_cmp_ge_u32 s{sFB}, 224'); A('s_cbranch_scc1 L_stage_done')
    if not p.gub: guloads()
    A('s_waitcnt vmcnt(0)')
    vD = 192
    for t in range(4):
        for j in range(8):
            a, b = vX + 16*t + j, vX + 16*t + 8 + j
            A(f'v_perm_b32 v{vD+16*t+2*j}, v{b}, v{a}, s{PLO}'); A(f'v_perm_b32 v{vD+16*t+2*j+1}, v{b}, v{a}, s{PHI}')
    srd(A, SW, 20, 1792*512*2)
    A(f's_lshl_b32 s60, s{sFB}, 13'); A('s_add_u32 s61, s60, 4096'); A('v_lshlrev_b32 v1, 3, v0')
    for r in range(8 if 'd' not in p.skip else 0):
        for u in range(2):
            A(f'buffer_load_dwordx2 {V(vX+4*r+2*u,2)}, v1, {S(SW)}, s{60+(r>>2)} offen offset:{(r&3)*1024+u*512} {wf}')
    A('v_lshlrev_b32 v2, 4, v0')
    for q in range(16): A(f'ds_write_b128 v2, {V(vD+4*q,4)} offset:{L_GU+1024*q}')
    A('s_waitcnt vmcnt(0) lgkmcnt(0)')
    for t in range(4):
        for j in range(4):
            a, b = vX + 8*t + j, vX + 8*t + 4 + j
            A(f'v_perm_b32 v{vD+8*t+2*j}, v{b}, v{a}, s{PLO}'); A(f'v_perm_b32 v{vD+8*t+2*j+1}, v{b}, v{a}, s{PHI}')
    for q in range(8): A(f'ds_write_b128 v2, {V(vD+4*q,4)} offset:{L_WD+1024*q}')
    A('s_waitcnt lgkmcnt(0)')
    A('L_stage_done:')
    if p.guearly: A('s_branch L_bar2')
    A('L_wo:')
    A('s_and_b32 s64, s3, 1'); A('s_bfe_u32 s65, s3, 0x10001')
    A('v_and_b32 v2, 3, v0')
    A('s_lshl_b32 s60, s64, 13'); A('v_lshl_add_u32 v7, v0, 4, s60')
    def woread():
        for q in range(8): A(f'ds_read_b128 {V(vW+4*q,4)}, v7 offset:{L_X + 1024*q}')
    mO = {(t, e): vW + 8*t + e for t in range(4) for e in range(8)}
    vY = vAc
    zero(vY, 8)
    A('v_lshlrev_b32 v1, 5, v2'); A('v_lshl_add_u32 v1, v13, 4, v1'); A('v_lshl_add_u32 v1, v12, 3, v1')
    A('s_lshl_b32 s66, s65, 4'); A(f's_lshl_b32 s61, s{sJ}, 1'); A('s_add_u32 s66, s66, s61'); A('s_add_u32 s66, s66, s64')
    A('s_lshl_b32 s66, s66, 5'); A(f's_add_u32 s66, s66, s{sH}'); A('s_lshl_b32 s66, s66, 7'); A(f's_add_u32 s66, s66, {YB}')
    A('v_lshlrev_b32 v3, 3, v0'); A('v_mul_u32_u24 v4, 640, v2')
    A('s_lshl_b32 s67, s65, 5'); A(f's_add_u32 s67, s67, s{sH}'); A('s_mul_i32 s67, s67, 2560'); A(f's_add_u32 s67, s67, {OP}')
    A(f's_mul_i32 s62, s{sP}, 640'); A(f's_add_u32 s62, s62, {OP}')
    A('v_mov_b32 v15, 0')
    stamp(7)
    A('s_barrier')
    stamp(8)
    if 'E' in p.skip: A('s_branch L_fin')
    A('s_cmp_lg_u32 s3, 4'); A('s_cbranch_scc1 L_notcomb')
    A(f'ds_read_b128 v[24:27], v15 offset:{L_M}'); A(f'ds_read_b128 v[28:31], v15 offset:{L_L}')
    for w in range(4): A(f'ds_read_b64 {V(16+2*w,2)}, v3 offset:{L_O+512*w}')
    A('s_waitcnt lgkmcnt(4)')
    A('v_min3_f32 v8, v24, v25, v26'); A('v_min_f32 v8, v8, v27')
    for w in range(4): A(f'v_sub_f32 v{24+w}, v8, v{24+w}')
    for w in range(4): A(f'v_exp_f32 v{24+w}, v{24+w}')
    A('s_waitcnt lgkmcnt(0)')
    A('v_mul_f32 v16, v24, v16'); A('v_mul_f32 v17, v24, v17'); A('v_mul_f32 v9, v24, v28')
    for w in range(1, 4):
        A(f'v_fmac_f32 v16, v{24+w}, v{16+2*w}'); A(f'v_fmac_f32 v17, v{24+w}, v{17+2*w}'); A(f'v_fmac_f32 v9, v{24+w}, v{28+w}')
    A(f'buffer_store_dwordx2 v[16:17], v3, {S(SWS)}, s62 offen sc1')
    A('s_mov_b64 exec, 1')
    A(f'buffer_store_dwordx2 v[8:9], v15, {S(SWS)}, s62 offen offset:512 sc1')
    A('s_mov_b64 exec, -1')
    stamp(9)
    woread()
    A('s_waitcnt vmcnt(0) lgkmcnt(0)')
    A('s_branch L_bar3b')
    A('L_notcomb:')
    woread()
    A('s_waitcnt lgkmcnt(0)')
    A('s_cmp_eq_u32 s3, 7'); A('s_cbranch_scc1 L_preR')
    vGU, vWD, vC1, vSB, vX2 = 128, 192, 224, 232, 240
    A(f's_cmp_ge_u32 s{sFB}, 224'); A('s_cbranch_scc1 L_bar3b')
    A('s_sub_u32 s63, s3, 5'); A('s_lshl_b32 s60, s63, 13'); A(f's_add_u32 s60, s60, {MODB + 2048}'); A('s_add_u32 s61, s60, 2048')
    A('v_lshlrev_b32 v5, 4, v0')
    for q in range(16): A(f'ds_read_b128 {V(vGU+4*q,4)}, v5 offset:{L_GU+1024*q}')
    A('s_waitcnt lgkmcnt(8)')
    for q in range(8): A(f'ds_read_b128 {V(vWD+4*q,4)}, v5 offset:{L_WD+1024*q}')
    poll([f'buffer_load_dwordx4 {V(vC1+4*i,4)}, v5, {S(SWS)}, s61 offen offset:{1024*i} sc1' for i in range(2)] +
         [f'buffer_load_dwordx4 {V(vSB+4*i,4)}, v5, {S(SWS)}, s60 offen offset:{1024*i} sc1' for i in range(2)],
         range(vC1, vC1+16), 8)
    A('s_waitcnt lgkmcnt(0)')
    A('s_branch L_bar3b')
    A('L_preR:')
    A(f's_cmp_ge_u32 s{sR}, 32'); A('s_cbranch_scc1 L_bar3b')
    srd(A, SW2, 4, 2048)
    A('v_and_b32 v5, 7, v0'); A('v_lshlrev_b32 v5, 2, v5'); A('v_lshl_add_u32 v5, v13, 1, v5'); A('v_add_u32 v5, v5, v12')
    A('v_lshlrev_b32 v6, 1, v5'); A('v_lshlrev_b32 v5, 2, v5')
    A(f's_lshl_b32 s60, s{sR}, 6')
    A(f'buffer_load_ushort v34, v6, {S(SW2)}, s60 offen')
    A(f's_lshr_b32 s60, s{sR}, 4'); A('s_lshl_b32 s60, s60, 13'); A(f's_and_b32 s61, s{sR}, 15'); A('s_lshl_b32 s61, s61, 7')
    A('s_add_u32 s60, s60, s61'); A(f's_add_u32 s60, s60, {MODB}'); A('s_add_u32 s61, s60, 6144')
    poll([f'buffer_load_dword v32, v5, {S(SWS)}, s60 offen sc1', f'buffer_load_dword v33, v5, {S(SWS)}, s61 offen sc1'], (32, 33), 8)
    A('v_lshlrev_b32 v34, 16, v34')
    A('L_bar3b:')
    A('s_barrier')
    poll([f'buffer_load_dwordx2 {V(16+2*i,2)}, v3, {S(SWS)}, s67 offen offset:{640*i} sc1' for i in range(4)] +
         [f'buffer_load_dwordx2 v[24:25], v4, {S(SWS)}, s67 offen offset:512 sc1'], range(16, 26), 8, sleep=p.h0sleep)
    stamp(10)
    dpp('v_min_f32', 26, 24, 24, 'quad_perm:[1,0,3,2]'); dpp('v_min_f32', 26, 26, 26, 'quad_perm:[2,3,0,1]')
    A('v_sub_f32 v24, v26, v24'); A('v_exp_f32 v24, v24'); A('v_mul_f32 v25, v24, v25')
    dpp('v_add_f32', 25, 25, 25, 'quad_perm:[1,0,3,2]'); dpp('v_add_f32', 25, 25, 25, 'quad_perm:[2,3,0,1]')
    A('v_rcp_f32 v25, v25'); A('v_mul_f32 v24, v24, v25')
    dpp('v_mul_f32', 16, 24, 16, 'quad_perm:[0,0,0,0]'); dpp('v_mul_f32', 17, 24, 17, 'quad_perm:[0,0,0,0]')
    for i in range(1, 4):
        dpp('v_fmac_f32', 16, 24, 16+2*i, f'quad_perm:[{i},{i},{i},{i}]'); dpp('v_fmac_f32', 17, 24, 17+2*i, f'quad_perm:[{i},{i},{i},{i}]')
    A('v_cvt_pk_bf16_f32 v16, v16, v17')
    for t in range(4): movdpp(20+t, 16, f'quad_perm:[{t},{t},{t},{t}]')
    for t in range(4):
        for e in range(8): A(f'v_dot2c_f32_bf16 v{vY+e}, v{20+t}, v{mO[(t,e)]}')
    fold(vY, 8, 32); fold(vY, 4, 16); rors(vY, 2, (8, 4))
    setexec(0x000f000f000f000f)
    A(f'buffer_store_dwordx2 {V(vY,2)}, v1, {S(SWS)}, s66 offen sc1')
    stamp(11)
    A('s_mov_b64 exec, -1')
    if 'Y' in p.skip: A('s_branch L_fin')
    A('s_cmp_eq_u32 s3, 7'); A('s_cbranch_scc1 L_taskR')
    A('s_cmp_eq_u32 s3, 4'); A('s_cbranch_scc1 L_toG')
    A(f's_cmp_ge_u32 s{sFB}, 224'); A('s_cbranch_scc1 L_fin')
    zero(vAc, 16); zero(16, 8)
    A('v_lshrrev_b32 v1, 3, v0'); A('v_mul_u32_u24 v1, 28672, v1'); A('v_and_b32 v2, 7, v0'); A('v_lshl_add_u32 v1, v2, 4, v1')
    A(f's_mul_i32 s66, s63, {16*28672}'); A(f's_lshl_b32 s61, s{sFB}, 7'); A('s_add_u32 s66, s66, s61'); A(f's_add_u32 s66, s66, {Y2}')
    A(f's_add_u32 s67, s66, {8*28672}')
    A('s_lshl_b32 s60, s63, 11'); A(f's_add_u32 s60, s60, {X2}')
    poll([f'buffer_load_dwordx4 {V(vX2+4*i,4)}, v5, {S(SWS)}, s60 offen offset:{1024*i} sc1' for i in range(2)],
         range(vX2, vX2+8), 8, sleep=p.xsleep)
    stamp(12)
    A(f'v_readfirstlane_b32 s60, v{vX2}')
    w = 24
    for i in range(0, 8, 2): A(f'v_pk_add_f32 {V(w+i,2)}, {V(vX2+i,2)}, s[60:61] op_sel_hi:[1,0] neg_lo:[0,1] neg_hi:[0,1]')
    pk('mul', 8, w, w); pk('add', 6, w, w+2)
    A(f'v_pk_fma_f32 v[8:9], {V(w+2,2)}, {V(w+2,2)}, v[8:9]'); pk('add', 6, 6, w+4)
    A(f'v_pk_fma_f32 v[8:9], {V(w+4,2)}, {V(w+4,2)}, v[8:9]'); pk('add', 6, 6, w+6)
    A(f'v_pk_fma_f32 v[8:9], {V(w+6,2)}, {V(w+6,2)}, v[8:9]')
    A('v_add_f32 v6, v6, v7'); A('v_add_f32 v7, v8, v9')
    rors(6, 2, (8, 4, 2, 1))
    for r in (6, 7): dpp('v_add_f32', r, r, r, 'row_bcast:15', '0xa')
    for r in (6, 7): dpp('v_add_f32', r, r, r, 'row_bcast:31', '0xc')
    A('v_readlane_b32 s61, v6, 63'); A('v_readlane_b32 s62, v7, 63')
    A(f'v_mov_b32 v8, {f32(1.0/512)}')
    A('v_mul_f32 v6, s61, v8'); A('v_mul_f32 v8, s62, v8')
    A('v_fma_f32 v8, -v6, v6, v8'); A('v_add_f32 v6, s60, v6'); A('v_max_f32 v8, 0, v8'); A('v_sub_f32 v6, 0, v6')
    ln_tail(6, 8)
    for i in range(0, 8, 2): pk('add', vX2+i, vX2+i, 6, True)
    for i in range(8): rbf(vX2+i, vX2+i)
    for i in range(0, 8, 2): pk('mul', vX2+i, vX2+i, 8, True)
    for i in range(8): rbf(vX2+i, vX2+i)
    for i in range(0, 8, 2): pk('mul', vX2+i, vX2+i, vC1+i)
    for i in range(8): rbf(vX2+i, vX2+i)
    for i in range(0, 8, 2): pk('add', vX2+i, vX2+i, vSB+i)
    for i in range(4): A(f'v_cvt_pk_bf16_f32 v{w+i}, v{vX2+2*i}, v{vX2+2*i+1}')
    for t in range(4):
        for c in range(16): A(f'v_dot2c_f32_bf16 v{vAc+c}, v{w+t}, v{vGU+16*t+c}')
    fold(vAc, 16, 32); fold(vAc, 8, 16); rors(vAc, 4, (8, 4, 2, 1))
    for e in range(4): rbf(vAc+e, vAc+e)
    for e in range(4): A(f'v_mov_b32 v{vAc+4+e}, v{vAc+e}')
    for e in range(4): A(f'v_permlane32_swap_b32 v{vAc+e}, v{vAc+4+e}')
    pk('mul', vAc, vAc, vAc+4); pk('mul', vAc+2, vAc+2, vAc+6)
    A(f'v_cvt_pk_bf16_f32 v6, v{vAc}, v{vAc+1}'); A(f'v_cvt_pk_bf16_f32 v7, v{vAc+2}, v{vAc+3}')
    A('v_readlane_b32 s60, v6, 0'); A('v_readlane_b32 s61, v7, 0'); A('v_readlane_b32 s62, v6, 16'); A('v_readlane_b32 s63, v7, 16')
    for t in range(4):
        for c in range(8): A(f'v_dot2c_f32_bf16 v{16+c}, s{60+t}, v{vWD+8*t+c}')
    A(f'buffer_store_dwordx4 v[16:19], v1, {S(SWS)}, s66 offen sc1')
    A(f'buffer_store_dwordx4 v[20:23], v1, {S(SWS)}, s67 offen sc1')
    stamp(13)
    A(f's_cmp_ge_u32 s{sR}, 32'); A('s_cbranch_scc1 L_fin')
    A('s_waitcnt vmcnt(0)')
    A('s_branch L_taskG')
    A('L_taskR:')
    A(f's_cmp_ge_u32 s{sR}, 32'); A('s_cbranch_scc1 L_fin')
    A('v_lshlrev_b32 v1, 4, v0'); A(f's_lshl_b32 s60, s{sR}, 12'); A(f's_add_u32 s60, s60, {YB}')
    A(f's_lshl_b32 s61, s{sR}, 7'); A(f's_add_u32 s61, s61, {X2}')
    poll([f'buffer_load_dwordx4 {V(16+4*i,4)}, v1, {S(SWS)}, s60 offen offset:{1024*i} sc1' for i in range(4)], range(16, 32), 8)
    stamp(12)
    for a, b in ((16, 20), (24, 28), (16, 24)):
        pk('add', a, a, b); pk('add', a+2, a+2, b+2)
    fold(16, 4, 32); fold(16, 2, 16); rors(16, 1, (8,))
    rbf(16, 16); A('v_mul_f32 v16, v32, v16'); rbf(16, 16); A('v_add_f32 v16, v34, v16'); rbf(34, 16)
    setexec(0x00ff00ff00ff00ff)
    A(f'buffer_store_dword v34, v5, {S(SWS)}, s61 offen sc1')
    stamp(13)
    A('s_mov_b64 exec, -1')
    A('L_toG:')
    A(f's_cmp_ge_u32 s{sR}, 32'); A('s_cbranch_scc1 L_fin')
    A('L_taskG:')
    srd(A, SW2, 26, 2048)
    A('v_lshlrev_b32 v1, 4, v0')
    A(f's_mul_i32 s60, s{sR}, 28672'); A('s_sub_u32 s61, s3, 4'); A('s_mul_i32 s62, s61, 7168'); A('s_add_u32 s60, s60, s62')
    A(f's_add_u32 s60, s60, {Y2}'); A('s_add_u32 s62, s60, 4096')
    A('v_and_b32 v2, 7, v0'); A('v_lshlrev_b32 v2, 2, v2'); A('v_lshl_add_u32 v2, v13, 1, v2'); A('v_add_lshl_u32 v2, v2, v12, 2')
    A('s_lshl_b32 s61, s61, 7'); A('v_add_u32 v3, s61, v2')
    A('s_barrier')
    poll([f'buffer_load_dwordx4 {V(vX+4*i,4)}, v1, {S(SWS)}, s{60 if i < 4 else 62} offen offset:{1024*(i&3)} sc1' for i in range(7)],
         range(vX, vX+28), 8)
    if p.stamps: A('s_memrealtime s[74:75]')
    for a, b in ((0, 4), (8, 12), (16, 20), (0, 8), (16, 24), (0, 16)):
        pk('add', vX+a, vX+a, vX+b); pk('add', vX+a+2, vX+a+2, vX+b+2)
    fold(vX, 4, 32); fold(vX, 2, 16); rors(vX, 1, (8,))
    A(f'ds_write_b32 v3, v{vX} offset:{L_G}')
    A('s_waitcnt lgkmcnt(0)')
    A('s_barrier')
    A('s_cmp_lg_u32 s3, 7'); A('s_cbranch_scc1 L_fin')
    for w in range(4): A(f'ds_read_b32 v{16+w}, v2 offset:{L_G+128*w}')
    A(f's_lshl_b32 s60, s{sR}, 6')
    A('s_waitcnt lgkmcnt(0)')
    pk('add', 16, 16, 18); A('v_add_f32 v16, v16, v17')
    rbf(16, 16); A('v_mul_f32 v16, v33, v16'); rbf(16, 16); A('v_add_f32 v16, v34, v16')
    A('v_cvt_pk_bf16_f32 v16, v16, v16')
    setexec(0x00ff00ff00ff00ff)
    A(f'buffer_store_short v16, v6, {S(SW2)}, s60 offen sc1')
    stamp(14)
    A('L_fin:')
    if p.hold:
        A('s_cmp_lg_u32 s3, 7'); A('s_cbranch_scc1 L_fin2')
        A('L_hold:'); A('s_memrealtime s[60:61]'); A('s_waitcnt lgkmcnt(0)'); A('s_sub_u32 s60, s60, s100'); A('s_sleep 1')
        A(f's_cmp_lt_u32 s60, {p.hold*100}'); A('s_cbranch_scc1 L_hold')
        A('L_fin2:')
    finish()

    A('.section .rodata,"a"'); A('.p2align 6'); A(f'.amdhsa_kernel {NAME}_kernel')
    for l in ['.amdhsa_next_free_vgpr 256', '.amdhsa_next_free_sgpr 102', '.amdhsa_accum_offset 256',
              '.amdhsa_group_segment_fixed_size 0', '.amdhsa_kernarg_size 112', '.amdhsa_user_sgpr_count 2',
              '.amdhsa_user_sgpr_kernarg_segment_ptr 1', '.amdhsa_system_sgpr_workgroup_id_x 1']: A(l)
    A('.end_amdhsa_kernel')
    return '\n'.join(head) + '\n' + A.text()

if __name__ == '__main__':
    p = P()
    out = sys.argv[1]
    for a in sys.argv[2:]:
        k, v = a.split('=')
        cur = getattr(p, k)
        setattr(p, k, (v == '1') if isinstance(cur, bool) else type(cur)(v))
    open(out, 'w').write(gen(p))
```

```python
import sys, struct
from asmlib import Asm

NAME = 'adaLN_cond__mha_block_cached__glu_gated_bilinear__decode'

def f32(x): return '0x%08x' % struct.unpack('<I', struct.pack('<f', x))[0]
LOG2E = 1.4426950408889634
SCALE = 128 ** -0.5

MODP = 0x00000
CLRF = 0x08000
QP   = 0x10000
LATE = 0x50000
OP   = 0x50000
YB   = 0x78000
Y2   = 0x98000
X2   = 0x178000
MODB = 0x179000
TICK = 0x17e000
LT   = 0x188000
PS   = 0x17f000
STMP = 0x200000
WS_BYTES = 0x300000
L_Q = 0; L_O = 256; L_M = 2304; L_L = 2320; L_G = 2560; L_PR = 3072; L_LV = 3088; L_GU = 4096; L_WD = 4096 + 16384; L_X = 4096 + 24576

class P:
    N = 5
    Nf = 6
    E = 24
    EL = 16
    G = 8
    fph = True
    lv = '44444555,66555555,77666665'
    cu = ''
    ctl = True
    t0 = 5
    Pd = 8
    tl = 111
    lead = 3
    alpha = 16
    beta = 0
    trace = False
    relay = True
    tsleep = 2
    psleep = 4
    gw = 1
    stamps = False
    hold = 0
    wflag = 'nt'
    cflag = 'sc1 nt'
    limit = 1 << 17
    gosleep = 2
    h0sleep = 1
    xsleep = 2
    skip = ''

def srd(A, d, ptr, nbytes, add=None):
    if add is None:
        A(f's_mov_b32 s{d}, s{ptr}'); A(f's_mov_b32 s{d+1}, s{ptr+1}')
    else:
        A(f's_add_u32 s{d}, s{ptr}, {add}'); A(f's_addc_u32 s{d+1}, s{ptr+1}, 0')
    A(f's_mov_b32 s{d+2}, {nbytes}'); A(f's_mov_b32 s{d+3}, 0x20000')

def S(d): return f's[{d}:{d+3}]'
def V(a, n): return f'v[{a}:{a+n-1}]'

SK, SV = 44, 48
SWS, SDBG, SW, SW2 = 44, 48, 52, 56
PLO, PHI = 69, 70
sX, sIdx, sH, sB, sJ, sP, sFB, sR = 32, 33, 34, 35, 36, 37, 38, 39

def gen(p):
    A = Asm()
    def stamp(k):
        if p.stamps: A(f's_memrealtime s[{72+2*k}:{73+2*k}]')
    def finish(n=15):
        if p.stamps:
            A('s_branch L_flush')
        else:
            A('s_endpgm')

    hdr = open('cdna_kernels/' + NAME + '.s.ref').read().split('\n')
    head = []
    for l in hdr:
        if l.startswith('; @launch'):
            head.append(f'; @launch grid=(256,1,1) block=(512,1,1) lds={L_X + 8192*p.EL + 4096}')
            break
        head.append(l)
    A('.amdgcn_target "amdgcn-amd-amdhsa--gfx950"')
    A('.text'); A(f'.globl {NAME}_kernel'); A('.p2align 8'); A(f'.type {NAME}_kernel,@function')
    A(f'{NAME}_kernel:')
    A('s_cmp_ge_u32 s2, 256'); A('s_cbranch_scc1 L_exit')
    A('s_load_dwordx16 s[4:19], s[0:1], 0')
    A('s_load_dwordx8 s[20:27], s[0:1], 64')
    A('s_load_dwordx4 s[28:31], s[0:1], 96')
    if p.stamps:
        for k in range(1, 15): A(f's_mov_b32 s{72+2*k}, 0')
    stamp(0)
    if p.hold: A('s_memrealtime s[100:101]')
    A('v_lshrrev_b32 v1, 6, v0'); A('v_and_b32 v0, 63, v0'); A('v_readfirstlane_b32 s3, v1')
    A(f's_and_b32 s{sX}, s2, 7'); A(f's_lshr_b32 s{sIdx}, s2, 3')
    A(f's_lshr_b32 s61, s{sIdx}, 3'); A(f's_lshl_b32 s60, s{sX}, 2'); A(f's_add_u32 s{sH}, s61, s60')
    A(f's_and_b32 s{sJ}, s{sIdx}, 7'); A(f's_lshr_b32 s{sB}, s{sJ}, 2')
    A(f's_and_b32 s60, s{sJ}, 3'); A(f's_lshl_b32 s{sP}, s{sH}, 2'); A(f's_add_u32 s{sP}, s{sP}, s60')
    A(f's_lshl_b32 s60, s{sB}, 7'); A(f's_add_u32 s{sP}, s{sP}, s60')
    A('s_cmp_ge_u32 s3, 4'); A('s_cbranch_scc1 L_helper')

    vOff, vSa, vP, vLo, vHi, vM, vNM, vL, vT, vU, vG = 1, 2, 3, 4, 5, 6, 7, 8, 9, 10, 11
    vA = vG
    vQ, vAcc, vRing, vExt = 12, 16, 24, 56
    N, E, EL, Nf, G = p.N, p.E, p.EL, p.Nf, p.G
    levels = p.lv.split(','); mid = len(levels)//2
    XP = E + EL; TRIPS = (512 - XP)//4
    vST = vExt + 8*E
    assert vST + 8 <= 256 and XP % 8 == 0 and N <= 5 and G <= 16
    G0 = (TRIPS//2) % G or G
    L_S = L_X + 8192*EL
    SC = 52
    sIB, sIP, sIG, sCB, sCG, sPr = 62, 63, 64, 65, 66, 67
    A(f's_lshl_b32 s60, s{sP}, 21')
    A('s_lshl_b32 s61, s3, 10'); A('v_lshlrev_b32 v1, 4, v0'); A('v_add_u32 v1, s61, v1')
    A(f's_mul_i32 s62, s3, {2048*EL}'); A(f's_add_u32 s62, s62, {L_X}'); A('s_mov_b32 m0, s62')
    A('s_waitcnt lgkmcnt(0)')
    srd(A, SK, 6, 1 << 21, 's60'); srd(A, SV, 8, 1 << 21, 's60')
    if p.fph:
        seq = [('l', 0, i) for i in range(EL)] + [('l', 1, i) for i in range(EL)] + [('r', 0, i) for i in range(E)] + [('r', 1, i) for i in range(E)]
    else:
        seq = [('l', i & 1, i >> 1) for i in range(2*EL)] + [('r', i & 1, i >> 1) for i in range(2*E)]
    seq += [('g', 0, i) for i in range(N)]
    cur = 0; m0 = 0
    for n, (kind, t, i) in enumerate(seq):
        want = i + (EL if kind == 'r' else XP if kind == 'g' else 0)
        if want != cur: A(f'v_add_u32 v{vOff}, {hex(((want - cur) << 12) & 0xffffffff)}, v{vOff}'); cur = want
        if kind == 'l' and 2048*i + 1024*t != m0:
            A(f's_add_u32 m0, s62, {2048*i + 1024*t}'); m0 = 2048*i + 1024*t
            if n < Nf: A('s_nop 0')
        if n >= Nf: A(f's_waitcnt vmcnt({Nf-1})')
        if n == 0: stamp(6)
        if n == Nf: stamp(7)
        if n == 12: stamp(8)
        if n == 36: stamp(9)
        if n == 56: stamp(10)
        if kind == 'l': A(f'buffer_load_dwordx4 v{vOff}, {S(SV if t else SK)}, 0 offen nt lds')
        else: A(f'buffer_load_dwordx4 {V(vExt + 8*i + 4*t if kind == "r" else vRing + 4*i, 4)}, v{vOff}, {S(SV if t else SK)}, 0 offen nt')
        if n == Nf - 1:
            A(f'v_mov_b32 v{vM}, {f32(-1e38)}'); A(f'v_mov_b32 v{vG}, {f32(-1e38)}'); A(f'v_mov_b32 v{vNM}, {f32(1e38*LOG2E)}'); A(f'v_mov_b32 v{vL}, 0')
            for e in range(8): A(f'v_mov_b32 v{vAcc+e}, 0')
            A(f'v_and_b32 v{vT}, 15, v0'); A(f'v_lshlrev_b32 v{vT}, 4, v{vT}')
            A(f'v_lshrrev_b32 v{vSa}, 4, v0'); A(f'v_lshlrev_b32 v{vSa}, 4, v{vSa}'); A('s_lshl_b32 s61, s3, 10'); A(f's_add_u32 s61, s61, {L_S}'); A(f'v_add_u32 v{vSa}, s61, v{vSa}')
            A(f'v_lshl_add_u32 v0, v0, 4, s62')
    A(f'v_add_u32 v{vOff}, 0x1000, v{vOff}')
    srd(A, SC, SK, 1 << 21)
    A(f's_mov_b32 s{sPr}, {(XP + 2) << 12}')
    A(f's_lshl_b32 s61, s3, 2'); A(f'v_mov_b32 v{vU}, s61'); A(f'v_mov_b32 v{vP}, {mid}'); A(f'v_mov_b32 v{vLo}, s{sPr}')
    A(f'ds_write_b32 v{vU}, v{vLo} offset:{L_PR}'); A(f'ds_write_b32 v{vU}, v{vP} offset:{L_LV}')
    A(f's_mov_b32 s{sIB}, {G0-1}'); A(f's_mov_b32 s{sIP}, 0'); A(f's_mov_b32 s{sIG}, {G0}'); A(f's_mov_b32 s{sCB}, {G0-1}'); A(f's_mov_b32 s{sCG}, {G0}')
    A('s_mov_b32 s60, 0')
    A('s_waitcnt lgkmcnt(0)')
    stamp(1)
    A('s_barrier')
    A(f'ds_read_b128 {V(vQ,4)}, v{vT} offset:{L_Q}')
    stamp(2)
    A(f's_waitcnt vmcnt({N}) lgkmcnt(0)')
    A(f's_branch L_k{mid}')
    stubs = []
    def score(r, d, last=True):
        A(f'v_dot2_f32_bf16 v{d}, v{r}, v{vQ}, 0')
        for i in (1, 2, 3): A(f'v_dot2_f32_bf16 v{d}, v{r+i}, v{vQ+i}, v{d}')
        for k in (8, 4, 2, 1): A(f'v_add_f32_dpp v{d}, v{d}, v{d} row_ror:{k} row_mask:0xf bank_mask:0xf')
        A(f'v_cvt_pk_bf16_f32 v{d}, 0, v{d}')
        A(f'v_mul_f32 v{d}, {f32(SCALE)}, v{d}')
        if last: A(f'v_cvt_pk_bf16_f32 v{d}, 0, v{d}')
    def prob(s_, half=None):
        if half is not None:
            A(f'v_and_b32 v{vP}, 0xffff0000, v{s_}' if half else f'v_lshlrev_b32 v{vP}, 16, v{s_}'); s_ = vP
        A(f'v_fmamk_f32 v{vP}, v{s_}, {f32(LOG2E)}, v{vNM}')
        A(f'v_exp_f32 v{vP}, v{vP}')
        A(f'v_cvt_pk_bf16_f32 v{vLo}, v{vP}, 0')
        A(f'v_cvt_pk_bf16_f32 v{vHi}, 0, v{vP}')
        A(f'v_add_f32 v{vL}, v{vL}, v{vP}')
    def vwork(r):
        for i in range(4):
            A(f'v_dot2c_f32_bf16 v{vAcc+2*i}, v{r+i}, v{vLo}')
            A(f'v_dot2c_f32_bf16 v{vAcc+2*i+1}, v{r+i}, v{vHi}')
    def call(target, link):
        st = A.label('c'); stubs.append((st, target, link)); A(f'{st}_b:'); return st
    def chain(pre, k):
        if not p.ctl:
            A(f's_branch L_{pre}{k}'); return
        order = [k] + sorted((x for x in range(len(levels)) if x != k), key=lambda x: abs(x - mid))
        for x in order[:-1]:
            A(f's_cmp_eq_u32 s61, {x}'); A(f's_cbranch_scc1 L_{pre}{x}')
        A(f's_branch L_{pre}{order[-1]}')
    def block(kind, k, pat):
        issued = N
        A('.p2align 4')
        A(f'L_{kind}{k}:')
        if kind == 'v':
            A(f'ds_read_b128 {V(vST,4)}, v{vSa}')
            A(f'v_add_u32 v{vSa}, 64, v{vSa}')
        for j in range(8):
            if kind == 'v' and j: prob(vST + j//2, j & 1)
            A(f's_waitcnt vmcnt({issued - j - 1})')
            while issued < j + 1 + int(pat[j]):
                if issued == 8:
                    A(f's_sub_u32 s{sIB}, s{sIB}, 1')
                    st = A.label('c'); stubs.append((st, 'L_swap', 42)); A(f's_cbranch_scc1 {st}'); A(f'{st}_b:')
                A(f'buffer_load_dwordx4 {V(vRing + 4*(issued % 8), 4)}, v{vOff}, {S(SC)}, 0 offen nt')
                A(f'v_add_u32 v{vOff}, 0x1000, v{vOff}')
                issued += 1
            assert issued <= 13
            if kind == 'v' and j == 0:
                A('s_waitcnt lgkmcnt(0)'); prob(vST, 0)
            if j & 1 and p.ctl or j == 7:
                A(f's_add_u32 s{sPr}, s{sPr}, {0x1000 if p.ctl else 0x4000}'); A(f'v_mov_b32 v{vP}, s{sPr}')
                A(f'ds_write_b32 v{vU}, v{vP} offset:{L_PR}')
            if j == 7:
                if p.ctl: A(f'ds_read_b32 v{vT}, v{vU} offset:{L_LV}')
                A(f's_sub_u32 s61, s60, {E}'); A(f's_cmp_lt_u32 s61, {EL}'); A(f's_cbranch_scc0 L_{kind}{k}_nl')
                A(f'ds_read_b128 {V(vRing+20,4)}, v0'); A(f'ds_read_b128 {V(vRing+24,4)}, v0 offset:1024')
                A('v_add_u32 v0, 0x800, v0')
                A(f'L_{kind}{k}_nl:')
            if kind == 'v': vwork(vRing + 4*j)
            else:
                score(vRing + 4*j, vST + 4 + (j & 1), False)
                if j & 1:
                    A(f'v_max3_f32 v{vG}, v{vG}, v{vST+4}, v{vST+5}')
                    A(f'v_cvt_pk_bf16_f32 v{vST+j//2}, v{vST+4}, v{vST+5}')
        assert issued == 8 + N
        if kind == 'k':
            A('s_mov_b32 exec_lo, 0x10001'); A('s_mov_b32 exec_hi, 0x10001')
            A(f'ds_write_b128 v{vSa}, {V(vST,4)}')
            A('s_mov_b64 exec, -1')
            A(f'v_add_u32 v{vSa}, 64, v{vSa}')
            A('s_waitcnt lgkmcnt(1)')
        else:
            A('s_waitcnt lgkmcnt(0)')
        if p.ctl: A(f'v_readfirstlane_b32 s61, v{vT}')
        A(f's_cmp_lt_u32 s60, {XP}')
        st = A.label('c'); stubs.append((st, 'L_extra', 42)); A(f's_cbranch_scc1 {st}'); A(f'{st}_b:')
        A('s_add_u32 s60, s60, 1')
        A(f's_sub_u32 s{sCB}, s{sCB}, 1'); A(f's_cbranch_scc1 L_{kind}{k}_sw')
        chain(kind, k)
        A(f'L_{kind}{k}_sw:')
        A(f's_lshl_b32 s68, s{sCG}, 6'); A(f'v_subrev_u32 v{vSa}, s68, v{vSa}')
        if kind == 'k':
            A(f's_sub_u32 s{sCB}, s{sCG}, 1')
            A(f'v_cvt_pk_bf16_f32 v{vP}, 0, v{vG}'); A(f'v_cmp_gt_f32 vcc, v{vP}, v{vM}')
            st = A.label('c'); stubs.append((st, 'L_rescale', 40)); A(f's_cbranch_vccnz {st}'); A(f'{st}_b:')
            chain('v', k)
        else:
            A(f's_mov_b32 s{sCG}, {G}'); A(f's_mov_b32 s{sCB}, {G-1}')
            A(f's_cmp_eq_u32 s60, {TRIPS}'); A('s_cbranch_scc1 L_sdone')
            chain('k', k)
    for k, pat in enumerate(levels):
        if p.ctl or k == mid:
            block('k', k, pat); block('v', k, pat)
    A('L_sdone:')
    A('v_mbcnt_lo_u32_b32 v0, -1, 0'); A('v_mbcnt_hi_u32_b32 v0, -1, v0')
    stamp(4)
    A(f'v_mov_b32 v{vT}, v{vL}')
    A(f'v_and_b32 v{vU}, 15, v0'); A(f'v_lshlrev_b32 v{vU}, 5, v{vU}')
    A(f'v_permlane32_swap_b32 v{vT}, v{vL}')
    A(f'v_lshrrev_b32 v{vA}, 4, v0')
    for e in range(4): A(f'v_permlane32_swap_b32 v{vAcc+e}, v{vAcc+e+4}')
    A(f'v_add_f32 v{vL}, v{vL}, v{vT}')
    for e in range(4): A(f'v_add_f32 v{vAcc+e}, v{vAcc+e}, v{vAcc+e+4}')
    A(f'v_mov_b32 v{vT}, v{vL}')
    A(f'v_lshl_add_u32 v{vU}, v{vA}, 3, v{vU}')
    for e in range(2): A(f'v_permlane16_swap_b32 v{vAcc+e}, v{vAcc+e+2}')
    A(f'v_permlane16_swap_b32 v{vT}, v{vL}')
    A(f's_lshl_b32 s61, s3, 9'); A(f'v_add_u32 v{vU}, s61, v{vU}')
    for e in range(2): A(f'v_add_f32 v{vAcc+e}, v{vAcc+e}, v{vAcc+e+2}')
    A(f'v_add_f32 v{vL}, v{vL}, v{vT}')
    A(f'ds_write_b64 v{vU}, {V(vAcc,2)} offset:{L_O}')
    A('s_lshl_b32 s61, s3, 2'); A(f'v_mov_b32 v{vA}, s61')
    A('s_mov_b64 exec, 1')
    A(f'ds_write_b32 v{vA}, v{vNM} offset:{L_M}'); A(f'ds_write_b32 v{vA}, v{vL} offset:{L_L}')
    A('s_waitcnt lgkmcnt(0)')
    A('s_barrier')
    stamp(5)
    if p.stamps:
        A('L_flush:')
        A('s_mov_b64 exec, 1')
        A('s_waitcnt lgkmcnt(0)')
        srd(A, SW2, 30, WS_BYTES)
        A('s_lshl_b32 s60, s2, 10'); A('s_lshl_b32 s61, s3, 7'); A('s_add_u32 s60, s60, s61'); A(f's_add_u32 s60, s60, {STMP}')
        A('v_mov_b32 v1, s60')
        for k in range(15):
            A(f'v_mov_b32 v2, s{72+2*k}')
            A(f'buffer_store_dword v2, v1, {S(SW2)}, 0 offen offset:{4*k} sc1')
        A('s_waitcnt vmcnt(0)')
    A('L_exit:')
    A('s_endpgm')
    for st, target, link in stubs:
        A(f'{st}:'); A(f's_call_b64 s[{link}:{link+1}], {target}'); A(f's_branch {st}_b')
    A('L_swap:')
    A(f's_cmp_lg_u32 s{sIP}, 0'); A('s_cbranch_scc1 L_swap_k')
    A(f's_mov_b32 s{SC}, s{SV}'); A(f's_mov_b32 s{SC+1}, s{SV+1}'); A(f's_mov_b32 s{sIP}, 1'); A(f's_sub_u32 s{sIB}, s{sIG}, 1')
    A(f's_lshl_b32 s68, s{sIG}, 15'); A(f'v_subrev_u32 v{vOff}, s68, v{vOff}')
    A('s_setpc_b64 s[42:43]')
    A('L_swap_k:')
    A(f's_mov_b32 s{SC}, s{SK}'); A(f's_mov_b32 s{SC+1}, s{SK+1}'); A(f's_mov_b32 s{sIP}, 0'); A(f's_mov_b32 s{sIG}, {G}'); A(f's_mov_b32 s{sIB}, {G-1}')
    A('s_setpc_b64 s[42:43]')
    A('L_extra:')
    A(f's_cmp_ge_u32 s60, {E}'); A('s_cbranch_scc1 L_extra_go')
    A('s_lshl_b32 s68, s60, 3')
    A('s_set_gpr_idx_on s68, gpr_idx(SRC0)')
    for i in range(8): A(f'v_mov_b32 v{vRing+20+i}, v{vExt+i}')
    A('s_set_gpr_idx_off')
    A('L_extra_go:')
    score(vRing+20, vP)
    A(f'v_cmp_gt_f32 vcc, v{vP}, v{vM}'); A('s_cbranch_vccz L_extra_p')
    A('s_call_b64 s[40:41], L_rescale')
    A('L_extra_p:')
    prob(vP); vwork(vRing+24)
    if p.stamps:
        A(f's_cmp_lg_u32 s60, {XP-1}'); A('s_cbranch_scc1 L_extra_r'); stamp(3); A('L_extra_r:')
    A('s_setpc_b64 s[42:43]')
    A('L_rescale:')
    A(f'v_mov_b32 v{vLo}, v{vP}'); A(f'v_mov_b32 v{vHi}, v{vP}')
    A(f'v_permlane32_swap_b32 v{vLo}, v{vHi}')
    A(f'v_max_f32 v{vLo}, v{vLo}, v{vHi}'); A(f'v_mov_b32 v{vHi}, v{vLo}')
    A(f'v_permlane16_swap_b32 v{vLo}, v{vHi}')
    A(f'v_max3_f32 v{vM}, v{vLo}, v{vHi}, v{vM}')
    A(f'v_mul_f32 v{vLo}, {f32(-LOG2E)}, v{vM}')
    A(f'v_sub_f32 v{vT}, v{vLo}, v{vNM}')
    A(f'v_exp_f32 v{vT}, v{vT}')
    A(f'v_mov_b32 v{vNM}, v{vLo}')
    A(f'v_mul_f32 v{vL}, v{vL}, v{vT}')
    for e in range(8): A(f'v_mul_f32 v{vAcc+e}, v{vAcc+e}, v{vT}')
    A('s_setpc_b64 s[40:41]')

    vOwn, vA0, vA1, vW, vSp, vAc, vX = 16, 24, 32, 40, 104, 106, 128
    wf = p.wflag
    def dpp(op, d, a, b, ctl, rm='0xf'): A(f'{op}_dpp v{d}, v{a}, v{b} {ctl} row_mask:{rm} bank_mask:0xf')
    def movdpp(d, a, ctl): A(f'v_mov_b32_dpp v{d}, v{a} {ctl} row_mask:0xf bank_mask:0xf')
    def rbf(d, s): A(f'v_cvt_pk_bf16_f32 v{d}, 0, v{s}')
    def pk(op, d, a, b, bc=False): A(f'v_pk_{op}_f32 {V(d,2)}, {V(a,2)}, {V(b,2)}' + (' op_sel_hi:[1,0]' if bc else ''))
    def bail(back):
        A('s_add_u32 s68, s68, 1'); A(f's_cmp_lt_u32 s68, {p.limit}'); A(f's_cbranch_scc1 {back}')
    def maxall(d, regs):
        regs = list(regs)
        if len(regs) == 1: return regs[0]
        if len(regs) == 2: A(f'v_max_u32 v{d}, v{regs[0]}, v{regs[1]}'); return d
        A(f'v_max3_u32 v{d}, v{regs[0]}, v{regs[1]}, v{regs[2]}'); regs = regs[3:]
        while len(regs) >= 2:
            A(f'v_max3_u32 v{d}, v{d}, v{regs[0]}, v{regs[1]}'); regs = regs[2:]
        if regs: A(f'v_max_u32 v{d}, v{d}, v{regs[0]}')
        return d
    def poll(loads, regs, tmp, sleep=0):
        L = A.label('poll'); D = L + '_d'
        A('s_mov_b32 s68, 0')
        A(f'{L}:')
        for l in loads: A(l)
        A('s_waitcnt vmcnt(0)')
        t = maxall(tmp, regs)
        A(f'v_cmpx_eq_u32 vcc, -1, v{t}')
        A(f's_cbranch_execz {D}')
        if sleep: A(f's_sleep {sleep}')
        bail(L)
        A(f'{D}:')
        A('s_mov_b64 exec, -1')
    def readprog(op):
        A(f'ds_read_b32 v14, v10 offset:{L_PR}'); A('s_waitcnt lgkmcnt(0)')
        A('v_lshrrev_b32 v14, 12, v14')
        dpp(f'v_{op}_u32', 14, 14, 14, 'quad_perm:[1,0,3,2]'); dpp(f'v_{op}_u32', 14, 14, 14, 'quad_perm:[2,3,0,1]')
        A('v_readfirstlane_b32 s64, v14')
    def waitprog(lim, op):
        L = A.label('prog'); D = L + '_d'
        A('s_mov_b32 s68, 0')
        A(f'{L}:')
        readprog(op)
        A(f's_cmp_ge_u32 s64, {lim}'); A(f's_cbranch_scc1 {D}')
        A(f's_sleep {p.psleep}')
        bail(L)
        A(f'{D}:')
    def waitmarks():
        A('v_lshlrev_b32 v9, 4, v0'); A(f's_mov_b32 s60, {CLRF}')
        poll([f'buffer_load_dwordx4 v[4:7], v9, {S(SWS)}, s60 offen sc1'], range(4, 8), 8, sleep=16)
    def waitflag(off, sleep, want=None):
        L = A.label('flag'); D = L + '_d'
        A('s_mov_b32 s68, 0'); A('s_mov_b64 exec, 1'); A('v_mov_b32 v15, 0')
        A(f'{L}:')
        A(f'buffer_load_dword v14, v15, {S(SDBG)}, 0 offen offset:{off} sc1')
        A('s_waitcnt vmcnt(0)')
        A('v_cmp_eq_u32 vcc, 0, v14' if want is None else f'v_cmp_ne_u32 vcc, {want}, v14'); A(f's_cbranch_vccz {D}')
        A(f's_sleep {sleep}')
        bail(L)
        A(f'{D}:')
        A('s_mov_b64 exec, -1')
    def arrive(off, last, flagoff):
        D = A.label('arr')
        A('s_mov_b64 exec, 1'); A('v_mov_b32 v15, 0'); A('v_mov_b32 v14, 1')
        A(f'buffer_atomic_add v14, v15, {S(SDBG)}, 0 offen offset:{off} sc0 sc1')
        A('s_waitcnt vmcnt(0)')
        A(f'v_cmp_ne_u32 vcc, {last}, v14'); A(f's_cbranch_vccnz {D}')
        A(f'buffer_store_dword v14, v15, {S(SDBG)}, 0 offen offset:{flagoff} sc1')
        A(f'{D}:')
        A('s_mov_b64 exec, -1')
    def pair_perm(base, npairs, spare, w=4):
        m = {}; free = spare
        for t in range(npairs):
            for j in range(w):
                a, b = base + 2*w*t + j, base + 2*w*t + w + j
                A(f'v_perm_b32 v{free}, v{b}, v{a}, s{PLO}'); m[(t, 2*j)] = free
                A(f'v_perm_b32 v{b}, v{b}, v{a}, s{PHI}'); m[(t, 2*j+1)] = b
                free = a
        return m
    def zero(r, n):
        for e in range(n): A(f'v_mov_b32 v{r+e}, 0')
    def mv_dots(m):
        for t in range(8):
            for e in range(8):
                A(f'v_dot2c_f32_bf16 v{vAc+e}, v{vA0+t}, v{m[(t,e)]}')
                A(f'v_dot2c_f32_bf16 v{vAc+8+e}, v{vA1+t}, v{m[(t,e)]}')
    def fold(r, n, which):
        h = n // 2
        for e in range(h): A(f'v_permlane{which}_swap_b32 v{r+e}, v{r+h+e}')
        for e in range(h): A(f'v_add_f32 v{r+e}, v{r+e}, v{r+h+e}')
    def rors(r, n, ks):
        for k in ks:
            for e in range(n): dpp('v_add_f32', r+e, r+e, r+e, f'row_ror:{k}')
    def allsum_parity(r, t):
        rors(r, 1, (2, 4, 8))
        A(f'v_mov_b32 v{t}, v{r}'); A(f'v_permlane16_swap_b32 v{t}, v{r}'); A(f'v_add_f32 v{r}, v{r}, v{t}')
        A(f'v_mov_b32 v{t}, v{r}'); A(f'v_permlane32_swap_b32 v{t}, v{r}'); A(f'v_add_f32 v{r}, v{r}, v{t}')
    def unpack(dst, src, n):
        for i in range(n):
            A(f'v_lshlrev_b32 v{dst+2*i}, 16, v{src+i}'); A(f'v_and_b32 v{dst+2*i+1}, 0xffff0000, v{src+i}')
    def setexec(mask):
        lo, hi = mask & 0xffffffff, mask >> 32
        A(f's_mov_b32 exec_lo, 0x{lo:x}'); A(f's_mov_b32 exec_hi, 0x{hi:x}')
    def ln_tail(nmean, var):
        rbf(var, var); rbf(nmean, nmean)
        A(f'v_add_f32 v{var}, {f32(1e-5)}, v{var}'); rbf(var, var)
        A(f'v_sqrt_f32 v{var}, v{var}'); rbf(var, var); A(f'v_rcp_f32 v{var}, v{var}')

    def modcalc(x, st=True):
        A(f's_waitcnt vmcnt({16+x})')
        unpack(vX, vOwn, 8)
        for i in range(16): A(f'v_mul_f32 v{vX+16+i}, {f32(-LOG2E)}, v{vX+i}')
        for i in range(16): A(f'v_exp_f32 v{vX+16+i}, v{vX+16+i}')
        for i in range(16): A(f'v_add_f32 v{vX+16+i}, 1.0, v{vX+16+i}')
        for i in range(16): A(f'v_rcp_f32 v{vX+16+i}, v{vX+16+i}')
        for i in range(0, 16, 2): pk('mul', vX+i, vX+i, vX+16+i)
        for i in range(8): A(f'v_cvt_pk_bf16_f32 v{vOwn+i}, v{vX+2*i}, v{vX+2*i+1}')
        for t in range(8):
            movdpp(vA0+t, vOwn+t, 'quad_perm:[0,0,2,2]'); movdpp(vA1+t, vOwn+t, 'quad_perm:[1,1,3,3]')
        if st: stamp(1)
        free = vSp
        for t in range(8):
            A(f's_waitcnt vmcnt({14-2*t+x})')
            m = {}
            for j in range(4):
                a, b = vW + 8*t + j, vW + 8*t + 4 + j
                A(f'v_perm_b32 v{free}, v{b}, v{a}, s{PLO}'); m[2*j] = free
                A(f'v_perm_b32 v{b}, v{b}, v{a}, s{PHI}'); m[2*j+1] = b
                free = a
            for e in range(8):
                A(f'v_dot2c_f32_bf16 v{vAc+e}, v{vA0+t}, v{m[e]}')
                A(f'v_dot2c_f32_bf16 v{vAc+8+e}, v{vA1+t}, v{m[e]}')
        if st: stamp(2)

    def guloads():
        srd(A, SW, 16, 512*1792*2); srd(A, SW2, 18, 512*1792*2)
        A(f's_mov_b32 s60, {4*3584}'); A('v_mul_lo_u32 v1, s60, v0'); A(f's_lshl_b32 s61, s{sFB}, 4'); A('v_add_u32 v1, s61, v1')
        for i in range(8 if 'g' not in p.skip else 0):
            A(f's_mov_b32 s60, {(256*(i>>2) + (i&3))*3584}')
            A(f'buffer_load_dwordx4 {V(vX+8*i,4)}, v1, {S(SW)}, s60 offen {wf}')
            A(f's_waitcnt vmcnt({p.gw})')
            A(f'buffer_load_dwordx4 {V(vX+8*i+4,4)}, v1, {S(SW2)}, s60 offen {wf}')
            A(f's_waitcnt vmcnt({p.gw})')

    A('L_helper:')
    A(f's_mov_b32 s{PLO}, 0x05040100'); A(f's_mov_b32 s{PHI}, 0x07060302')
    A('v_and_b32 v11, 1, v0'); A('v_bfe_u32 v12, v0, 4, 1'); A('v_lshrrev_b32 v13, 5, v0')
    A('v_mov_b32 v5, 0'); A('v_mov_b32 v6, 0')
    A(f's_lshr_b32 s60, s{sIdx}, 3'); A('s_lshl_b32 s60, s60, 3'); A(f's_add_u32 s60, s60, s{sX}')
    A(f's_lshl_b32 s{sFB}, s60, 3'); A(f's_add_u32 s{sFB}, s{sFB}, s{sJ}')
    A(f's_sub_u32 s60, s{sIdx}, 8'); A(f's_lshl_b32 s61, s{sX}, 2'); A(f's_add_u32 s{sR}, s60, s61')
    A('s_cmp_lt_u32 s60, 4'); A(f's_cselect_b32 s{sR}, s{sR}, 64')
    A('s_waitcnt lgkmcnt(0)')
    srd(A, SWS, 30, WS_BYTES); srd(A, SDBG, 28, 256)
    A('s_cmp_eq_u32 s3, 5'); A('s_cbranch_scc1 L_taskB')
    A('s_cmp_lg_u32 s3, 4'); A('s_cbranch_scc1 L_bar2')
    A('s_cmp_ge_u32 s2, 64'); A('s_cbranch_scc1 L_bar2')
    A('s_and_b32 s62, s2, 15'); A('s_lshr_b32 s63, s2, 4')
    A('s_call_b64 s[42:43], L_modload')
    for i in range(4): A(f'v_mov_b32 v{4+i}, -1')
    A(f's_lshl_b32 s61, s{sX}, 3'); A(f's_add_u32 s64, s61, s{sIdx}')
    A('s_lshl_b32 s61, s64, 12'); A('v_lshl_add_u32 v3, v0, 4, s61'); A(f's_mov_b32 s60, {QP}')
    for i in range(4): A(f'buffer_store_dwordx4 v[4:7], v3, {S(SWS)}, s60 offen offset:{1024*i} {p.cflag}')
    A('s_lshl_b32 s61, s64, 4'); A(f's_add_u32 s61, s61, {CLRF}'); A('v_mov_b32 v3, 0'); A('s_mov_b64 exec, 1')
    A(f'buffer_store_dwordx4 v[4:7], v3, {S(SWS)}, s61 offen sc1')
    A('s_mov_b64 exec, -1')
    zero(vAc, 16)
    modcalc(5)
    fold(vAc, 16, 32); fold(vAc, 8, 16); rors(vAc, 4, (8,))
    A('v_and_b32 v1, 7, v0'); A('v_lshlrev_b32 v1, 5, v1'); A('v_lshl_add_u32 v1, v12, 4, v1'); A('v_lshl_add_u32 v1, v13, 8, v1')
    A('s_lshl_b32 s60, s62, 2'); A('s_add_u32 s60, s60, s63'); A('s_lshl_b32 s60, s60, 9')
    setexec(0x00ff00ff00ff00ff)
    A(f'buffer_store_dwordx4 {V(vAc,4)}, v1, {S(SWS)}, s60 offen sc1')
    stamp(3)
    A('s_waitcnt vmcnt(0)')
    stamp(4)
    arrive(0, 63, 128)
    stamp(5)
    A('s_branch L_bar2')
    A('L_modload:')
    srd(A, SW2, 22, 2048); srd(A, SW, 24, 512*3072*2)
    A('v_lshrrev_b32 v10, 3, v0')
    A('v_lshlrev_b32 v1, 5, v10'); A('v_lshl_add_u32 v1, v11, 10, v1'); A('s_lshl_b32 s60, s63, 8')
    A(f'buffer_load_dwordx4 {V(vOwn,4)}, v1, {S(SW2)}, s60 offen')
    A(f'buffer_load_dwordx4 {V(vOwn+4,4)}, v1, {S(SW2)}, s60 offen offset:16')
    A(f's_mov_b32 s60, {16*6144}'); A('v_mul_lo_u32 v1, s60, v10'); A('v_and_b32 v2, 7, v0'); A('v_lshl_add_u32 v1, v2, 4, v1')
    A(f's_mul_i32 s60, s63, {128*6144}'); A('s_lshl_b32 s61, s62, 7'); A('s_add_u32 s60, s60, s61')
    for i in range(16):
        A(f'buffer_load_dwordx4 {V(vW+4*i,4)}, v1, {S(SW)}, s60 offen {wf}')
        if i < 15: A('s_add_u32 s60, s60, 6144')
    A('s_setpc_b64 s[42:43]')
    A('L_taskB:')
    srd(A, SW2, 4, 2048); srd(A, SW, 10, 512*4096*2)
    A('v_lshrrev_b32 v10, 1, v0'); A('v_lshlrev_b32 v1, 5, v10'); A('v_lshl_add_u32 v1, v11, 10, v1')
    A(f'buffer_load_dwordx4 {V(vOwn,4)}, v1, {S(SW2)}, 0 offen')
    A(f'buffer_load_dwordx4 {V(vOwn+4,4)}, v1, {S(SW2)}, 0 offen offset:16')
    A('v_lshrrev_b32 v9, 4, v0'); A('v_and_b32 v8, 14, v0'); A('v_lshl_add_u32 v8, v9, 4, v8')
    A('v_lshlrev_b32 v1, 1, v8'); A('v_lshl_add_u32 v1, v11, 10, v1'); A(f's_lshl_b32 s60, s{sJ}, 7')
    A(f'buffer_load_dword v7, v1, {S(SW2)}, s60 offen')
    A('v_lshlrev_b32 v1, 17, v9'); A('v_and_b32 v10, 15, v0'); A('v_lshl_add_u32 v1, v10, 4, v1')
    A(f's_lshl_b32 s60, s{sJ}, 19'); A(f's_lshl_b32 s61, s{sH}, 8'); A('s_add_u32 s60, s60, s61')
    def wqloads():
        for i in range(16):
            A(f'buffer_load_dwordx4 {V(vW+4*i,4)}, v1, {S(SW)}, s60 offen {wf}')
            if i < 15: A('s_add_u32 s60, s60, 8192')
    A('s_waitcnt vmcnt(0)')
    unpack(vX, vOwn, 8)
    w = vX + 16
    pk('add', w, vX, vX+2)
    for i in range(4, 16, 2): pk('add', w, w, vX+i)
    A(f'v_add_f32 v2, v{w}, v{w+1}')
    allsum_parity(2, 3)
    A(f'v_mul_f32 v2, {f32(-1.0/512)}, v2')
    for i in range(0, 16, 2): pk('add', w+i, vX+i, 2, True)
    pk('mul', 4, w, w)
    for i in range(2, 16, 2): A(f'v_pk_fma_f32 v[4:5], {V(w+i,2)}, {V(w+i,2)}, v[4:5]')
    A('v_add_f32 v4, v4, v5')
    allsum_parity(4, 5)
    A(f'v_mul_f32 v4, {f32(1.0/512)}, v4')
    wqloads()
    for i in range(4): A(f'v_mov_b32 v{vX+16+i}, -1')
    A('s_mul_i32 s61, s2, 5120'); A('v_lshl_add_u32 v3, v0, 4, s61'); A(f's_mov_b32 s60, {LATE}'); A(f's_mov_b32 s61, {LATE+4096}')
    for i in range(5 if 'c' not in p.skip else 0):
        A(f'buffer_store_dwordx4 {V(vX+16,4)}, v3, {S(SWS)}, s{60+(i>>2)} offen offset:{1024*(i&3)} {p.cflag}')
    ln_tail(2, 4)
    unpack(vX, 7, 1)
    pk('add', vX, vX, 2, True); rbf(vX, vX); rbf(vX+1, vX+1)
    pk('mul', vX, vX, 4, True); rbf(vX, vX); rbf(vX+1, vX+1)
    zero(vAc, 16)
    A('v_lshlrev_b32 v6, 2, v8'); A('v_lshl_add_u32 v6, v11, 8, v6')
    A('v_lshlrev_b32 v1, 5, v10'); A('v_lshl_add_u32 v1, v12, 4, v1'); A('v_lshl_add_u32 v1, v13, 12, v1')
    A(f's_lshl_b32 s62, s{sJ}, 11'); A('s_add_u32 s63, s62, 16384')
    stamp(1)
    A('s_waitcnt vmcnt(0)')
    stamp(2)
    m = pair_perm(vW, 8, vSp)
    waitflag(128, p.gosleep)
    stamp(3)
    for i in range(4 if 'M' not in p.skip else 0):
        A(f'buffer_load_dwordx2 {V(vX+2+2*i,2)}, v6, {S(SWS)}, s63 offen offset:{512*i} sc1')
    for i in range(4 if 'M' not in p.skip else 0):
        A(f'buffer_load_dwordx2 {V(vX+10+2*i,2)}, v6, {S(SWS)}, s62 offen offset:{512*i} sc1')
    A('s_mov_b64 exec, 1'); A(f's_lshl_b32 s61, s{sX}, 5'); A(f's_add_u32 s61, s61, s{sIdx}')
    A('s_lshl_b32 s61, s61, 2'); A(f's_add_u32 s61, s61, {CLRF}')
    A(f'buffer_store_dword v15, v15, {S(SWS)}, s61 offen sc1')
    A('s_mov_b64 exec, -1')
    A(f's_lshl_b32 s60, s{sH}, 13'); A(f's_lshl_b32 s61, s{sJ}, 9'); A('s_add_u32 s61, s61, s60'); A(f's_add_u32 s61, s61, {QP}')
    A(f's_lshl_b32 s62, s{sB}, 12'); A('s_add_u32 s60, s60, s62'); A(f's_add_u32 s60, s60, {QP}')
    A('s_waitcnt vmcnt(5)')
    c1, sa = vX+2, vX+10
    pk('add', c1, c1, c1+2); pk('add', c1+4, c1+4, c1+6); pk('add', c1, c1, c1+4)
    rbf(c1, c1); rbf(c1+1, c1+1)
    A(f'v_add_f32 v{c1}, 1.0, v{c1}'); A(f'v_add_f32 v{c1+1}, 1.0, v{c1+1}')
    rbf(c1, c1); rbf(c1+1, c1+1)
    pk('mul', vX, vX, c1); rbf(vX, vX); rbf(vX+1, vX+1)
    A('s_waitcnt vmcnt(1)')
    stamp(4)
    pk('add', sa, sa, sa+2); pk('add', sa+4, sa+4, sa+6); pk('add', sa, sa, sa+4)
    rbf(sa, sa); rbf(sa+1, sa+1)
    pk('add', vX, vX, sa)
    A(f'v_cvt_pk_bf16_f32 v{vOwn}, v{vX}, v{vX+1}')
    for t in range(8):
        movdpp(vA0+t, vOwn, f'row_newbcast:{2*t}'); movdpp(vA1+t, vOwn, f'row_newbcast:{2*t+1}')
    mv_dots(m)
    fold(vAc, 16, 32); fold(vAc, 8, 16)
    if 'W' not in p.skip: A(f'buffer_store_dwordx4 {V(vAc,4)}, v1, {S(SWS)}, s61 offen sc1')
    stamp(5)
    A('v_lshlrev_b32 v1, 4, v0')
    A('v_and_b32 v2, 31, v0'); A('v_lshlrev_b32 v2, 3, v2'); A('v_lshl_add_u32 v2, v13, 2, v2')
    A('s_waitcnt vmcnt(0)')
    if 'P' not in p.skip: poll([f'buffer_load_dwordx4 {V(vX+4*i,4)}, v1, {S(SWS)}, s60 offen offset:{1024*i} sc1' for i in range(4)],
         range(vX, vX+16), 8, sleep=1)
    for a, b in ((0, 4), (8, 12), (0, 8)):
        pk('add', vX+a, vX+a, vX+b); pk('add', vX+a+2, vX+a+2, vX+b+2)
    fold(vX, 4, 32)
    A(f'v_cvt_pk_bf16_f32 v3, v{vX}, v{vX+1}')
    A(f'ds_write_b32 v2, v3 offset:{L_Q}')
    A('s_waitcnt lgkmcnt(0)')
    stamp(6)
    A('L_bar2:')
    A('s_barrier')
    A('v_and_b32 v10, 3, v0'); A('v_lshlrev_b32 v10, 2, v10')
    A('s_cmp_eq_u32 s3, 5'); A('s_cbranch_scc1 L_bgA')
    A('s_cmp_eq_u32 s3, 4'); A('s_cbranch_scc1 L_ctl')
    A('s_cmp_eq_u32 s3, 7'); A('s_cbranch_scc1 L_stage')
    waitprog(XP + 4*XP + 8, 'min')
    srd(A, SW, 12, 4096*512*2)
    A('v_lshrrev_b32 v3, 3, v0'); A('v_lshlrev_b32 v1, 13, v3'); A('v_and_b32 v2, 7, v0'); A('v_lshl_add_u32 v1, v2, 4, v1')
    A(f's_lshl_b32 s60, s{sH}, 17'); A(f's_lshl_b32 s61, s{sJ}, 7'); A('s_add_u32 s60, s60, s61')
    for n in range(16 if 'o' not in p.skip else 0):
        A(f's_add_u32 s61, s60, {(n>>3)*65536 + (n&4)*1024}')
        A(f'buffer_load_dwordx4 {V(vX+4*n,4)}, v1, {S(SW)}, s61 offen offset:{(n&3)*1024} {wf}')
        A('s_waitcnt vmcnt(2)')
    A('v_lshlrev_b32 v3, 6, v3'); A('v_and_b32 v4, 3, v0'); A('v_lshl_add_u32 v3, v4, 4, v3'); A('v_bfe_u32 v4, v0, 2, 1'); A('v_lshl_add_u32 v3, v4, 13, v3')
    A('s_waitcnt vmcnt(0)')
    for hf in range(2):
        for t in range(4):
            for j in range(4):
                a_, b_ = vX + 32*hf + 8*t + j, vX + 32*hf + 8*t + 4 + j
                d = 192 + 32*hf + 8*t + 2*j
                A(f'v_perm_b32 v{d}, v{b_}, v{a_}, s{PLO}'); A(f'v_perm_b32 v{d+1}, v{b_}, v{a_}, s{PHI}')
        for q in range(8): A(f'ds_write_b128 v3, {V(192+32*hf+4*q,4)} offset:{L_X + 1024*q + 512*hf}')
    A('s_waitcnt lgkmcnt(0)')
    A('s_branch L_wo')
    A('L_bgA:')
    A(f's_cmp_lt_u32 s{sFB}, 224'); A('s_cbranch_scc1 L_wo')
    A(f's_sub_u32 s62, s{sFB}, {224 - 16}'); A('s_mov_b32 s63, 0')
    zero(vAc, 16)
    A('L_bgA_loop:')
    if 'b' not in p.skip:
        A('s_call_b64 s[42:43], L_modload')
        modcalc(0, False)
    A('s_add_u32 s63, s63, 1'); A('s_cmp_lt_u32 s63, 4'); A('s_cbranch_scc1 L_bgA_loop')
    fold(vAc, 16, 32); fold(vAc, 8, 16); rors(vAc, 4, (8,))
    A('s_lshr_b32 s61, s62, 3'); A('s_cmp_eq_u32 s61, 4'); A('s_cselect_b32 s63, 1.0, 0')
    for e in range(4): rbf(vAc+e, vAc+e)
    for e in range(4): A(f'v_add_f32 v{vAc+e}, s63, v{vAc+e}')
    for e in range(4): rbf(vAc+e, vAc+e)
    waitmarks()
    A('v_and_b32 v1, 7, v0'); A('v_lshlrev_b32 v1, 5, v1'); A('v_lshl_add_u32 v1, v12, 4, v1'); A('v_lshl_add_u32 v1, v13, 13, v1')
    A('s_lshl_b32 s60, s62, 8'); A(f's_add_u32 s60, s60, {MODB - 4096}')
    setexec(0x00ff00ff00ff00ff)
    A(f'buffer_store_dwordx4 {V(vAc,4)}, v1, {S(SWS)}, s60 offen sc1')
    A('s_mov_b64 exec, -1')
    A('s_waitcnt vmcnt(0)')
    A('s_branch L_wo')
    A('L_ctl:')
    waitmarks()
    if p.ctl:
        K = (p.tl - p.t0)//p.Pd + 1
        assert K <= 18
        w = [sum(map(int, x))/8 for x in levels]
        cu = [int(x) for x in p.cu.split(',')] if p.cu else [max(1, round(256*(0.8 if x > w[mid] else 0.7)*abs(x - w[mid])/x)) for x in w]
        C0 = 4*(XP + 2) + 16*p.t0; END = 4*(XP + 2) + 16*(TRIPS - 2); NMAX = p.Pd - p.lead
        sTk, sPs, sPrev, sU, sThr, sC, sMy, sLt, sPd, sD = 90, 91, 92, 93, 94, 95, 96, 97, 98, 99
        if p.stamps: sTk, sPs, sPrev, sU, sThr, sC, sMy, sLt, sPd, sD = 4, 5, 6, 7, 8, 9, 10, 11, 12, 13
        A('v_lshlrev_b32 v2, 7, v0'); A('v_lshlrev_b32 v3, 4, v0'); A('v_mov_b32 v15, 0')
        A(f's_mov_b32 s{sTk}, {TICK}'); A(f's_mov_b32 s{sPs}, {PS - 2048}'); A(f's_mov_b32 s{sU}, 0'); A(f's_mov_b32 s{sPrev}, 0'); A(f's_mov_b32 s{sPd}, 0'); A(f's_mov_b32 s{sD}, 0')
        A(f's_mov_b32 s{sC}, {C0}'); A(f's_mov_b32 s{sThr}, {C0 - 16*p.t0}')
        A(f's_lshr_b32 s60, s{sIdx}, 4'); A('s_lshl_b32 s60, s60, 3'); A(f's_add_u32 s60, s60, s{sX}'); A('s_lshl_b32 s60, s60, 7'); A(f's_add_u32 s{sMy}, s60, 2048')
        A('s_getreg_b32 s60, hwreg(HW_REG_XCC_ID, 0, 3)'); A('s_lshl_b32 s60, s60, 12'); A(f's_add_u32 s{sLt}, s60, {LT}')
        A('L_tick:')
        A('s_cmp_eq_u32 s2, 0'); A(f's_cselect_b32 s{sThr}, s{sC}, s{sThr}')
        waitprog(f's{sThr}', 'add')
        A('s_cmp_lg_u32 s2, 0'); A('s_cbranch_scc1 L_tk_poll')
        A('s_mov_b64 exec, 0xff')
        for i in range(4): A(f'v_mov_b32 v{4+i}, 0')
        A(f'buffer_store_dwordx4 v[4:7], v3, {S(SWS)}, s{sTk} offen sc1')
        A('s_mov_b64 exec, -1')
        A('L_tk_poll:')
        def tickpoll(name, reg, seen, sleep):
            A('s_mov_b32 s68, 0')
            A(f'{name}:')
            A(f'buffer_load_dword v9, v15, {S(SWS)}, s{reg} offen sc1')
            A('s_waitcnt vmcnt(0)')
            readprog('add')
            A('v_cmp_eq_u32 vcc, -1, v9'); A(f's_cbranch_vccz {seen}')
            A(f's_cmp_ge_u32 s64, {END}'); A('s_cbranch_scc1 L_wo')
            A(f's_sleep {sleep}')
            bail(name)
        if p.relay:
            A(f's_cmp_lg_u32 s{sIdx}, 1'); A('s_cbranch_scc1 L_tk_local')
            tickpoll('L_tk_far', sTk, 'L_tk_pass', 1)
            A('L_tk_pass:')
            A('s_mov_b64 exec, 0xff')
            for i in range(4): A(f'v_mov_b32 v{4+i}, 0')
            A(f'buffer_store_dwordx4 v[4:7], v3, {S(SWS)}, s{sLt} offen')
            A('s_mov_b64 exec, -1')
            A('L_tk_local:')
            tickpoll('L_tk_again', sLt, 'L_tk_seen', p.tsleep)
        else:
            tickpoll('L_tk_again', sTk, 'L_tk_seen', p.tsleep)
        A('L_tk_seen:')
        A(f'v_mov_b32 v9, s{sPrev}'); A(f'v_mov_b32 v8, s{sPrev}')
        A('s_mov_b64 exec, 0xffff')
        A(f's_cmp_eq_u32 s{sPrev}, 0'); A('s_cbranch_scc1 L_tk_first')
        A(f'buffer_load_dword v9, v2, {S(SWS)}, s{sPs} offen sc1')
        A('L_tk_first:')
        A(f's_and_b32 s60, s{sIdx}, 15'); A('s_cmp_lg_u32 s60, 8'); A('s_cbranch_scc1 L_tk_nopub')
        A('s_mov_b64 exec, 0xff'); A(f's_add_u32 s60, s{sPs}, s{sMy}')
        for i in range(4): A(f'v_mov_b32 v{4+i}, s64')
        A(f'buffer_store_dwordx4 v[4:7], v3, {S(SWS)}, s60 offen sc1')
        A('L_tk_nopub:')
        A('s_mov_b64 exec, 0xffff')
        A('s_waitcnt vmcnt(0)')
        A('v_cmp_eq_u32 vcc, -1, v9'); A('v_cndmask_b32 v9, v9, v8, vcc'); A('v_sub_u32 v9, v9, v8')
        for r in (8, 4, 2, 1): dpp('v_add_u32', 9, 9, 9, f'row_ror:{r}')
        A('v_readfirstlane_b32 s60, v9')
        if p.trace:
            A(f's_sub_u32 s61, s{sTk}, {TICK}'); A('s_lshr_b32 s61, s61, 4'); A('s_lshl_b32 s62, s2, 8'); A('s_add_u32 s61, s61, s62'); A(f's_add_u32 s61, s61, {STMP + 0x80000}')
            A('v_mov_b32 v4, s60'); A(f'v_mov_b32 v5, s{sU}'); A('s_mov_b64 exec, 1')
            A(f'buffer_store_dwordx2 v[4:5], v15, {S(SWS)}, s61 offen sc1')
        A(f's_mov_b32 s{sPrev}, s64'); A(f's_add_u32 s{sThr}, s64, {16*NMAX}')
        A(f's_add_u32 s{sTk}, s{sTk}, 128'); A(f's_add_u32 s{sLt}, s{sLt}, 128'); A(f's_add_u32 s{sPs}, s{sPs}, 2048'); A(f's_add_u32 s{sC}, s{sC}, {16*p.Pd}')
        if p.alpha == 16 and p.beta == 0:
            A(f's_sub_u32 s60, s60, s{sU}')
        else:
            A(f's_sub_u32 s60, s60, s{sPd}')
            A(f's_cmp_gt_u32 s{sTk}, {TICK + 256}'); A(f's_cselect_b32 s61, {p.beta}, 0')
            A('s_mul_i32 s61, s61, s60'); A('s_ashr_i32 s61, s61, 4'); A(f's_add_u32 s{sD}, s{sD}, s61')
            A(f's_mul_i32 s60, s60, {p.alpha}'); A('s_ashr_i32 s60, s60, 4'); A(f's_add_u32 s60, s60, s{sPd}')
            A(f's_sub_u32 s60, s60, s{sU}'); A(f's_add_u32 s{sPd}, s60, s{sD}')
            A(f's_add_u32 s60, s{sPd}, s{sD}')
        A('s_abs_i32 s61, s60')
        A('s_cmp_gt_i32 s60, 0')
        A(f's_cselect_b32 s62, {cu[mid+1]}, {cu[mid-1]}'); A(f's_cselect_b32 s63, {1024//cu[mid+1]}, {1024//cu[mid-1]}'); A(f's_cselect_b32 s65, {mid+1}, {mid-1}')
        if len(levels) == 5:
            A(f's_mul_i32 s66, s62, {NMAX}'); A('s_cmp_le_u32 s61, s66'); A('s_cbranch_scc1 L_tk_weak')
            A('s_cmp_gt_i32 s60, 0')
            A(f's_cselect_b32 s62, {cu[4]}, {cu[0]}'); A(f's_cselect_b32 s63, {1024//cu[4]}, {1024//cu[0]}'); A('s_cselect_b32 s65, 4, 0')
            A('L_tk_weak:')
        A('s_mul_i32 s61, s61, s63'); A('s_add_u32 s61, s61, 512'); A('s_lshr_b32 s61, s61, 10'); A(f's_min_u32 s61, s61, {NMAX}')
        A(f's_mul_i32 s{sU}, s61, s62'); A(f's_sub_u32 s62, 0, s{sU}'); A('s_cmp_gt_i32 s60, 0'); A(f's_cselect_b32 s{sU}, s{sU}, s62')
        A('s_cmp_eq_u32 s61, 0'); A('s_cbranch_scc1 L_tk_next')
        A('s_lshl_b32 s61, s61, 4'); A('s_add_u32 s67, s61, s64'); A(f's_min_u32 s67, s67, {END}')
        A('s_mov_b64 exec, 15'); A('v_mov_b32 v9, s65'); A(f'ds_write_b32 v10, v9 offset:{L_LV}'); A('s_mov_b64 exec, -1')
        waitprog('s67', 'add')
        A('s_mov_b64 exec, 15'); A(f'v_mov_b32 v9, {mid}'); A(f'ds_write_b32 v10, v9 offset:{L_LV}')
        A('L_tk_next:')
        A('s_mov_b64 exec, -1')
        A(f's_min_u32 s{sThr}, s{sThr}, {END}')
        A(f's_cmp_lt_u32 s{sTk}, {TICK + 128*K}'); A('s_cbranch_scc1 L_tick')
    A('s_branch L_wo')
    A('L_stage:')
    A(f's_cmp_ge_u32 s{sFB}, 224'); A('s_cbranch_scc1 L_stage_done')
    guloads()
    A('s_waitcnt vmcnt(0)')
    vD = 192
    for t in range(4):
        for j in range(8):
            a, b = vX + 16*t + j, vX + 16*t + 8 + j
            A(f'v_perm_b32 v{vD+16*t+2*j}, v{b}, v{a}, s{PLO}'); A(f'v_perm_b32 v{vD+16*t+2*j+1}, v{b}, v{a}, s{PHI}')
    srd(A, SW, 20, 1792*512*2)
    A(f's_lshl_b32 s60, s{sFB}, 13'); A('s_add_u32 s61, s60, 4096'); A('v_lshlrev_b32 v1, 3, v0')
    for r in range(8 if 'd' not in p.skip else 0):
        for u in range(2):
            A(f'buffer_load_dwordx2 {V(vX+4*r+2*u,2)}, v1, {S(SW)}, s{60+(r>>2)} offen offset:{(r&3)*1024+u*512} {wf}')
    A('v_lshlrev_b32 v2, 4, v0')
    for q in range(16): A(f'ds_write_b128 v2, {V(vD+4*q,4)} offset:{L_GU+1024*q}')
    A('s_waitcnt vmcnt(0) lgkmcnt(0)')
    for t in range(4):
        for j in range(4):
            a, b = vX + 8*t + j, vX + 8*t + 4 + j
            A(f'v_perm_b32 v{vD+8*t+2*j}, v{b}, v{a}, s{PLO}'); A(f'v_perm_b32 v{vD+8*t+2*j+1}, v{b}, v{a}, s{PHI}')
    for q in range(8): A(f'ds_write_b128 v2, {V(vD+4*q,4)} offset:{L_WD+1024*q}')
    A('s_waitcnt lgkmcnt(0)')
    A('L_stage_done:')
    A('L_wo:')
    A('s_and_b32 s64, s3, 1'); A('s_bfe_u32 s65, s3, 0x10001')
    A('v_and_b32 v2, 3, v0')
    A('s_lshl_b32 s60, s64, 13'); A('v_lshl_add_u32 v7, v0, 4, s60')
    def woread():
        for q in range(8): A(f'ds_read_b128 {V(vW+4*q,4)}, v7 offset:{L_X + 1024*q}')
    mO = {(t, e): vW + 8*t + e for t in range(4) for e in range(8)}
    vY = vAc
    zero(vY, 8)
    A('v_lshlrev_b32 v1, 5, v2'); A('v_lshl_add_u32 v1, v13, 4, v1'); A('v_lshl_add_u32 v1, v12, 3, v1')
    A('s_lshl_b32 s66, s65, 4'); A(f's_lshl_b32 s61, s{sJ}, 1'); A('s_add_u32 s66, s66, s61'); A('s_add_u32 s66, s66, s64')
    A('s_lshl_b32 s66, s66, 5'); A(f's_add_u32 s66, s66, s{sH}'); A('s_lshl_b32 s66, s66, 7'); A(f's_add_u32 s66, s66, {YB}')
    A('v_lshlrev_b32 v3, 3, v0'); A('v_mul_u32_u24 v4, 640, v2')
    A('s_lshl_b32 s67, s65, 5'); A(f's_add_u32 s67, s67, s{sH}'); A('s_mul_i32 s67, s67, 2560'); A(f's_add_u32 s67, s67, {OP}')
    A(f's_mul_i32 s62, s{sP}, 640'); A(f's_add_u32 s62, s62, {OP}')
    A('v_mov_b32 v15, 0')
    stamp(7)
    A('s_barrier')
    stamp(8)
    if 'E' in p.skip: A('s_branch L_fin')
    A('s_cmp_lg_u32 s3, 4'); A('s_cbranch_scc1 L_notcomb')
    A(f'ds_read_b128 v[24:27], v15 offset:{L_M}'); A(f'ds_read_b128 v[28:31], v15 offset:{L_L}')
    for w in range(4): A(f'ds_read_b64 {V(16+2*w,2)}, v3 offset:{L_O+512*w}')
    A('s_waitcnt lgkmcnt(4)')
    A('v_min3_f32 v8, v24, v25, v26'); A('v_min_f32 v8, v8, v27')
    for w in range(4): A(f'v_sub_f32 v{24+w}, v8, v{24+w}')
    for w in range(4): A(f'v_exp_f32 v{24+w}, v{24+w}')
    A('s_waitcnt lgkmcnt(0)')
    A('v_mul_f32 v16, v24, v16'); A('v_mul_f32 v17, v24, v17'); A('v_mul_f32 v9, v24, v28')
    for w in range(1, 4):
        A(f'v_fmac_f32 v16, v{24+w}, v{16+2*w}'); A(f'v_fmac_f32 v17, v{24+w}, v{17+2*w}'); A(f'v_fmac_f32 v9, v{24+w}, v{28+w}')
    A(f'buffer_store_dwordx2 v[16:17], v3, {S(SWS)}, s62 offen sc1')
    A('s_mov_b64 exec, 1')
    A(f'buffer_store_dwordx2 v[8:9], v15, {S(SWS)}, s62 offen offset:512 sc1')
    A('s_mov_b64 exec, -1')
    stamp(9)
    woread()
    A('s_waitcnt vmcnt(0) lgkmcnt(0)')
    A('s_branch L_bar3b')
    A('L_notcomb:')
    woread()
    A('s_waitcnt lgkmcnt(0)')
    A('s_cmp_eq_u32 s3, 7'); A('s_cbranch_scc1 L_preR')
    vGU, vWD, vC1, vSB, vX2 = 128, 192, 224, 232, 240
    A(f's_cmp_ge_u32 s{sFB}, 224'); A('s_cbranch_scc1 L_bar3b')
    A('s_sub_u32 s63, s3, 5'); A('s_lshl_b32 s60, s63, 13'); A(f's_add_u32 s60, s60, {MODB + 2048}'); A('s_add_u32 s61, s60, 2048')
    A('v_lshlrev_b32 v5, 4, v0')
    for q in range(16): A(f'ds_read_b128 {V(vGU+4*q,4)}, v5 offset:{L_GU+1024*q}')
    A('s_waitcnt lgkmcnt(8)')
    for q in range(8): A(f'ds_read_b128 {V(vWD+4*q,4)}, v5 offset:{L_WD+1024*q}')
    poll([f'buffer_load_dwordx4 {V(vC1+4*i,4)}, v5, {S(SWS)}, s61 offen offset:{1024*i} sc1' for i in range(2)] +
         [f'buffer_load_dwordx4 {V(vSB+4*i,4)}, v5, {S(SWS)}, s60 offen offset:{1024*i} sc1' for i in range(2)],
         range(vC1, vC1+16), 8)
    A('s_waitcnt lgkmcnt(0)')
    A('s_branch L_bar3b')
    A('L_preR:')
    A(f's_cmp_ge_u32 s{sR}, 32'); A('s_cbranch_scc1 L_bar3b')
    srd(A, SW2, 4, 2048)
    A('v_and_b32 v5, 7, v0'); A('v_lshlrev_b32 v5, 2, v5'); A('v_lshl_add_u32 v5, v13, 1, v5'); A('v_add_u32 v5, v5, v12')
    A('v_lshlrev_b32 v6, 1, v5'); A('v_lshlrev_b32 v5, 2, v5')
    A(f's_lshl_b32 s60, s{sR}, 6')
    A(f'buffer_load_ushort v34, v6, {S(SW2)}, s60 offen')
    A(f's_lshr_b32 s60, s{sR}, 4'); A('s_lshl_b32 s60, s60, 13'); A(f's_and_b32 s61, s{sR}, 15'); A('s_lshl_b32 s61, s61, 7')
    A('s_add_u32 s60, s60, s61'); A(f's_add_u32 s60, s60, {MODB}'); A('s_add_u32 s61, s60, 6144')
    poll([f'buffer_load_dword v32, v5, {S(SWS)}, s60 offen sc1', f'buffer_load_dword v33, v5, {S(SWS)}, s61 offen sc1'], (32, 33), 8)
    A('v_lshlrev_b32 v34, 16, v34')
    A('L_bar3b:')
    A('s_barrier')
    poll([f'buffer_load_dwordx2 {V(16+2*i,2)}, v3, {S(SWS)}, s67 offen offset:{640*i} sc1' for i in range(4)] +
         [f'buffer_load_dwordx2 v[24:25], v4, {S(SWS)}, s67 offen offset:512 sc1'], range(16, 26), 8, sleep=p.h0sleep)
    stamp(10)
    dpp('v_min_f32', 26, 24, 24, 'quad_perm:[1,0,3,2]'); dpp('v_min_f32', 26, 26, 26, 'quad_perm:[2,3,0,1]')
    A('v_sub_f32 v24, v26, v24'); A('v_exp_f32 v24, v24'); A('v_mul_f32 v25, v24, v25')
    dpp('v_add_f32', 25, 25, 25, 'quad_perm:[1,0,3,2]'); dpp('v_add_f32', 25, 25, 25, 'quad_perm:[2,3,0,1]')
    A('v_rcp_f32 v25, v25'); A('v_mul_f32 v24, v24, v25')
    dpp('v_mul_f32', 16, 24, 16, 'quad_perm:[0,0,0,0]'); dpp('v_mul_f32', 17, 24, 17, 'quad_perm:[0,0,0,0]')
    for i in range(1, 4):
        dpp('v_fmac_f32', 16, 24, 16+2*i, f'quad_perm:[{i},{i},{i},{i}]'); dpp('v_fmac_f32', 17, 24, 17+2*i, f'quad_perm:[{i},{i},{i},{i}]')
    A('v_cvt_pk_bf16_f32 v16, v16, v17')
    for t in range(4): movdpp(20+t, 16, f'quad_perm:[{t},{t},{t},{t}]')
    for t in range(4):
        for e in range(8): A(f'v_dot2c_f32_bf16 v{vY+e}, v{20+t}, v{mO[(t,e)]}')
    fold(vY, 8, 32); fold(vY, 4, 16); rors(vY, 2, (8, 4))
    setexec(0x000f000f000f000f)
    A(f'buffer_store_dwordx2 {V(vY,2)}, v1, {S(SWS)}, s66 offen sc1')
    stamp(11)
    A('s_mov_b64 exec, -1')
    if 'Y' in p.skip: A('s_branch L_fin')
    A('s_cmp_eq_u32 s3, 7'); A('s_cbranch_scc1 L_taskR')
    A('s_cmp_eq_u32 s3, 4'); A('s_cbranch_scc1 L_toG')
    A(f's_cmp_ge_u32 s{sFB}, 224'); A('s_cbranch_scc1 L_fin')
    zero(vAc, 16); zero(16, 8)
    A('v_lshrrev_b32 v1, 3, v0'); A('v_mul_u32_u24 v1, 28672, v1'); A('v_and_b32 v2, 7, v0'); A('v_lshl_add_u32 v1, v2, 4, v1')
    A(f's_mul_i32 s66, s63, {16*28672}'); A(f's_lshl_b32 s61, s{sFB}, 7'); A('s_add_u32 s66, s66, s61'); A(f's_add_u32 s66, s66, {Y2}')
    A(f's_add_u32 s67, s66, {8*28672}')
    A('s_lshl_b32 s60, s63, 11'); A(f's_add_u32 s60, s60, {X2}')
    poll([f'buffer_load_dwordx4 {V(vX2+4*i,4)}, v5, {S(SWS)}, s60 offen offset:{1024*i} sc1' for i in range(2)],
         range(vX2, vX2+8), 8, sleep=p.xsleep)
    stamp(12)
    A(f'v_readfirstlane_b32 s60, v{vX2}')
    w = 24
    for i in range(0, 8, 2): A(f'v_pk_add_f32 {V(w+i,2)}, {V(vX2+i,2)}, s[60:61] op_sel_hi:[1,0] neg_lo:[0,1] neg_hi:[0,1]')
    pk('mul', 8, w, w); pk('add', 6, w, w+2)
    A(f'v_pk_fma_f32 v[8:9], {V(w+2,2)}, {V(w+2,2)}, v[8:9]'); pk('add', 6, 6, w+4)
    A(f'v_pk_fma_f32 v[8:9], {V(w+4,2)}, {V(w+4,2)}, v[8:9]'); pk('add', 6, 6, w+6)
    A(f'v_pk_fma_f32 v[8:9], {V(w+6,2)}, {V(w+6,2)}, v[8:9]')
    A('v_add_f32 v6, v6, v7'); A('v_add_f32 v7, v8, v9')
    rors(6, 2, (8, 4, 2, 1))
    for r in (6, 7): dpp('v_add_f32', r, r, r, 'row_bcast:15', '0xa')
    for r in (6, 7): dpp('v_add_f32', r, r, r, 'row_bcast:31', '0xc')
    A('v_readlane_b32 s61, v6, 63'); A('v_readlane_b32 s62, v7, 63')
    A(f'v_mov_b32 v8, {f32(1.0/512)}')
    A('v_mul_f32 v6, s61, v8'); A('v_mul_f32 v8, s62, v8')
    A('v_fma_f32 v8, -v6, v6, v8'); A('v_add_f32 v6, s60, v6'); A('v_max_f32 v8, 0, v8'); A('v_sub_f32 v6, 0, v6')
    ln_tail(6, 8)
    for i in range(0, 8, 2): pk('add', vX2+i, vX2+i, 6, True)
    for i in range(8): rbf(vX2+i, vX2+i)
    for i in range(0, 8, 2): pk('mul', vX2+i, vX2+i, 8, True)
    for i in range(8): rbf(vX2+i, vX2+i)
    for i in range(0, 8, 2): pk('mul', vX2+i, vX2+i, vC1+i)
    for i in range(8): rbf(vX2+i, vX2+i)
    for i in range(0, 8, 2): pk('add', vX2+i, vX2+i, vSB+i)
    for i in range(4): A(f'v_cvt_pk_bf16_f32 v{w+i}, v{vX2+2*i}, v{vX2+2*i+1}')
    for t in range(4):
        for c in range(16): A(f'v_dot2c_f32_bf16 v{vAc+c}, v{w+t}, v{vGU+16*t+c}')
    fold(vAc, 16, 32); fold(vAc, 8, 16); rors(vAc, 4, (8, 4, 2, 1))
    for e in range(4): rbf(vAc+e, vAc+e)
    for e in range(4): A(f'v_mov_b32 v{vAc+4+e}, v{vAc+e}')
    for e in range(4): A(f'v_permlane32_swap_b32 v{vAc+e}, v{vAc+4+e}')
    pk('mul', vAc, vAc, vAc+4); pk('mul', vAc+2, vAc+2, vAc+6)
    A(f'v_cvt_pk_bf16_f32 v6, v{vAc}, v{vAc+1}'); A(f'v_cvt_pk_bf16_f32 v7, v{vAc+2}, v{vAc+3}')
    A('v_readlane_b32 s60, v6, 0'); A('v_readlane_b32 s61, v7, 0'); A('v_readlane_b32 s62, v6, 16'); A('v_readlane_b32 s63, v7, 16')
    for t in range(4):
        for c in range(8): A(f'v_dot2c_f32_bf16 v{16+c}, s{60+t}, v{vWD+8*t+c}')
    A(f'buffer_store_dwordx4 v[16:19], v1, {S(SWS)}, s66 offen sc1')
    A(f'buffer_store_dwordx4 v[20:23], v1, {S(SWS)}, s67 offen sc1')
    stamp(13)
    A(f's_cmp_ge_u32 s{sR}, 32'); A('s_cbranch_scc1 L_fin')
    A('s_waitcnt vmcnt(0)')
    A('s_branch L_taskG')
    A('L_taskR:')
    A(f's_cmp_ge_u32 s{sR}, 32'); A('s_cbranch_scc1 L_fin')
    A('v_lshlrev_b32 v1, 4, v0'); A(f's_lshl_b32 s60, s{sR}, 12'); A(f's_add_u32 s60, s60, {YB}')
    A(f's_lshl_b32 s61, s{sR}, 7'); A(f's_add_u32 s61, s61, {X2}')
    poll([f'buffer_load_dwordx4 {V(16+4*i,4)}, v1, {S(SWS)}, s60 offen offset:{1024*i} sc1' for i in range(4)], range(16, 32), 8)
    stamp(12)
    for a, b in ((16, 20), (24, 28), (16, 24)):
        pk('add', a, a, b); pk('add', a+2, a+2, b+2)
    fold(16, 4, 32); fold(16, 2, 16); rors(16, 1, (8,))
    rbf(16, 16); A('v_mul_f32 v16, v32, v16'); rbf(16, 16); A('v_add_f32 v16, v34, v16'); rbf(34, 16)
    setexec(0x00ff00ff00ff00ff)
    A(f'buffer_store_dword v34, v5, {S(SWS)}, s61 offen sc1')
    stamp(13)
    A('s_mov_b64 exec, -1')
    A('L_toG:')
    A(f's_cmp_ge_u32 s{sR}, 32'); A('s_cbranch_scc1 L_fin')
    A('L_taskG:')
    srd(A, SW2, 26, 2048)
    A('v_lshlrev_b32 v1, 4, v0')
    A(f's_mul_i32 s60, s{sR}, 28672'); A('s_sub_u32 s61, s3, 4'); A('s_mul_i32 s62, s61, 7168'); A('s_add_u32 s60, s60, s62')
    A(f's_add_u32 s60, s60, {Y2}'); A('s_add_u32 s62, s60, 4096')
    A('v_and_b32 v2, 7, v0'); A('v_lshlrev_b32 v2, 2, v2'); A('v_lshl_add_u32 v2, v13, 1, v2'); A('v_add_lshl_u32 v2, v2, v12, 2')
    A('s_lshl_b32 s61, s61, 7'); A('v_add_u32 v3, s61, v2')
    A('s_barrier')
    poll([f'buffer_load_dwordx4 {V(vX+4*i,4)}, v1, {S(SWS)}, s{60 if i < 4 else 62} offen offset:{1024*(i&3)} sc1' for i in range(7)],
         range(vX, vX+28), 8)
    if p.stamps: A('s_memrealtime s[74:75]')
    for a, b in ((0, 4), (8, 12), (16, 20), (0, 8), (16, 24), (0, 16)):
        pk('add', vX+a, vX+a, vX+b); pk('add', vX+a+2, vX+a+2, vX+b+2)
    fold(vX, 4, 32); fold(vX, 2, 16); rors(vX, 1, (8,))
    A(f'ds_write_b32 v3, v{vX} offset:{L_G}')
    A('s_waitcnt lgkmcnt(0)')
    A('s_barrier')
    A('s_cmp_lg_u32 s3, 7'); A('s_cbranch_scc1 L_fin')
    for w in range(4): A(f'ds_read_b32 v{16+w}, v2 offset:{L_G+128*w}')
    A(f's_lshl_b32 s60, s{sR}, 6')
    A('s_waitcnt lgkmcnt(0)')
    pk('add', 16, 16, 18); A('v_add_f32 v16, v16, v17')
    rbf(16, 16); A('v_mul_f32 v16, v33, v16'); rbf(16, 16); A('v_add_f32 v16, v34, v16')
    A('v_cvt_pk_bf16_f32 v16, v16, v16')
    setexec(0x00ff00ff00ff00ff)
    A(f'buffer_store_short v16, v6, {S(SW2)}, s60 offen sc1')
    stamp(14)
    A('L_fin:')
    if p.hold:
        A('s_cmp_lg_u32 s3, 7'); A('s_cbranch_scc1 L_fin2')
        A('L_hold:'); A('s_memrealtime s[60:61]'); A('s_waitcnt lgkmcnt(0)'); A('s_sub_u32 s60, s60, s100'); A('s_sleep 1')
        A(f's_cmp_lt_u32 s60, {p.hold*100}'); A('s_cbranch_scc1 L_hold')
        A('L_fin2:')
    finish()

    A('.section .rodata,"a"'); A('.p2align 6'); A(f'.amdhsa_kernel {NAME}_kernel')
    for l in ['.amdhsa_next_free_vgpr 256', '.amdhsa_next_free_sgpr 102', '.amdhsa_accum_offset 256',
              '.amdhsa_group_segment_fixed_size 0', '.amdhsa_kernarg_size 112', '.amdhsa_user_sgpr_count 2',
              '.amdhsa_user_sgpr_kernarg_segment_ptr 1', '.amdhsa_system_sgpr_workgroup_id_x 1']: A(l)
    A('.end_amdhsa_kernel')
    return '\n'.join(head) + '\n' + A.text()

if __name__ == '__main__':
    p = P()
    out = sys.argv[1]
    for a in sys.argv[2:]:
        k, v = a.split('=')
        cur = getattr(p, k)
        setattr(p, k, (v == '1') if isinstance(cur, bool) else type(cur)(v))
    open(out, 'w').write(gen(p))
```

```python
import sys, struct
from asmlib import Asm

NAME = 'adaLN_cond__mha_block_cached__glu_gated_bilinear__decode'

def f32(x): return '0x%08x' % struct.unpack('<I', struct.pack('<f', x))[0]
LOG2E = 1.4426950408889634
SCALE = 128 ** -0.5

MODP = 0x00000
CLRF = 0x08000
QP   = 0x10000
LATE = 0x50000
OP   = 0x50000
YB   = 0x78000
Y2   = 0x98000
X2   = 0x178000
MODB = 0x179000
TICK = 0x17e000
LT   = 0x188000
PS   = 0x17f000
STMP = 0x200000
WS_BYTES = 0x300000
L_Q = 0; L_O = 256; L_M = 2304; L_L = 2320; L_G = 2560; L_PR = 3072; L_LV = 3088; L_FL = 3104; L_GU = 4096; L_WD = 4096 + 16384; L_X = 4096 + 24576

class P:
    N = 5
    Nf = 5
    E = 24
    EL = 16
    G = 8
    fph = True
    lv = '22222345,44444555,66555555,77666665,77777765'
    ctl = True
    t0 = 7
    Pd = 8
    tl = 111
    lead = 4
    dly = 28
    gam = 14
    wthr = 6
    endq = 24
    Tb = 0
    lb = 4
    Nf2 = 6
    nsw = 44
    big0 = False
    gutick = False
    chot = False
    h0early = False
    ackb = True
    warm = 0
    warmall = False
    warm0 = True
    qfirst = True
    qcflag = 'sc1'
    gopipe = True
    cwhen = 1
    fresh = 0
    pipe = True
    trace = False
    tsleep = 1
    psleep = 4
    gw = 1
    stamps = False
    hold = 0
    wflag = 'nt'
    cflag = 'sc1 nt'
    limit = 1 << 17
    gosleep = 4
    h0sleep = 2
    xsleep = 2
    skip = ''

def srd(A, d, ptr, nbytes, add=None):
    if add is None:
        A(f's_mov_b32 s{d}, s{ptr}'); A(f's_mov_b32 s{d+1}, s{ptr+1}')
    else:
        A(f's_add_u32 s{d}, s{ptr}, {add}'); A(f's_addc_u32 s{d+1}, s{ptr+1}, 0')
    A(f's_mov_b32 s{d+2}, {nbytes}'); A(f's_mov_b32 s{d+3}, 0x20000')

def S(d): return f's[{d}:{d+3}]'
def V(a, n): return f'v[{a}:{a+n-1}]'

SK, SV = 44, 48
SWS, SDBG, SW, SW2 = 44, 48, 52, 56
PLO, PHI = 69, 70
sX, sIdx, sH, sB, sJ, sP, sFB, sR = 32, 33, 34, 35, 36, 37, 38, 39

def gen(p):
    A = Asm()
    def stamp(k):
        if p.stamps: A(f's_memrealtime s[{72+2*k}:{73+2*k}]')
    def finish(n=15):
        if p.stamps:
            A('s_branch L_flush')
        else:
            A('s_endpgm')

    hdr = open('cdna_kernels/' + NAME + '.s.ref').read().split('\n')
    head = []
    for l in hdr:
        if l.startswith('; @launch'):
            head.append(f'; @launch grid=(256,1,1) block=(512,1,1) lds={L_X + 8192*p.EL + 4096}')
            break
        head.append(l)
    A('.amdgcn_target "amdgcn-amd-amdhsa--gfx950"')
    A('.text'); A(f'.globl {NAME}_kernel'); A('.p2align 8'); A(f'.type {NAME}_kernel,@function')
    A(f'{NAME}_kernel:')
    A('s_cmp_ge_u32 s2, 256'); A('s_cbranch_scc1 L_exit')
    A('s_load_dwordx16 s[4:19], s[0:1], 0')
    A('s_load_dwordx8 s[20:27], s[0:1], 64')
    A('s_load_dwordx4 s[28:31], s[0:1], 96')
    if p.stamps:
        for k in range(1, 15): A(f's_mov_b32 s{72+2*k}, 0')
    stamp(0)
    if p.hold: A('s_memrealtime s[100:101]')
    A('v_lshrrev_b32 v1, 6, v0'); A('v_and_b32 v0, 63, v0'); A('v_readfirstlane_b32 s3, v1')
    A(f's_and_b32 s{sX}, s2, 7'); A(f's_lshr_b32 s{sIdx}, s2, 3')
    A(f's_lshr_b32 s61, s{sIdx}, 3'); A(f's_lshl_b32 s60, s{sX}, 2'); A(f's_add_u32 s{sH}, s61, s60')
    A(f's_and_b32 s{sJ}, s{sIdx}, 7'); A(f's_lshr_b32 s{sB}, s{sJ}, 2')
    A(f's_and_b32 s60, s{sJ}, 3'); A(f's_lshl_b32 s{sP}, s{sH}, 2'); A(f's_add_u32 s{sP}, s{sP}, s60')
    A(f's_lshl_b32 s60, s{sB}, 7'); A(f's_add_u32 s{sP}, s{sP}, s60')
    A('s_cmp_ge_u32 s3, 4'); A('s_cbranch_scc1 L_helper')

    vOff, vSa, vP, vLo, vHi, vM, vNM, vL, vT, vU, vG = 1, 2, 3, 4, 5, 6, 7, 8, 9, 10, 11
    vA = vG
    vQ, vAcc, vRing, vExt = 12, 16, 24, 56
    N, E, EL, Nf, G = p.N, p.E, p.EL, p.Nf, p.G
    levels = p.lv.split(','); mid = len(levels)//2
    XP = E + EL; TRIPS = (512 - XP)//4
    vST = vExt + 8*E
    assert vST + 8 <= 256 and XP % 8 == 0 and N <= 6 and G <= 16
    G0 = (TRIPS//2) % G or G
    if p.big0 and G0 + G <= 16: G0 += G
    L_S = L_X + 8192*EL
    SC = 52
    sIB, sIP, sIG, sCB, sCG, sPr = 62, 63, 64, 65, 66, 67
    A(f's_lshl_b32 s60, s{sP}, 21')
    A('s_lshl_b32 s61, s3, 10'); A('v_lshlrev_b32 v1, 4, v0'); A('v_add_u32 v1, s61, v1')
    A(f's_mul_i32 s62, s3, {2048*EL}'); A(f's_add_u32 s62, s62, {L_X}'); A('s_mov_b32 m0, s62')
    A('s_waitcnt lgkmcnt(0)')
    srd(A, SK, 6, 1 << 21, 's60'); srd(A, SV, 8, 1 << 21, 's60')
    if p.fph:
        seq = [('l', 0, i) for i in range(EL)] + [('l', 1, i) for i in range(EL)] + [('r', 0, i) for i in range(E)] + [('r', 1, i) for i in range(E)]
    else:
        seq = [('l', i & 1, i >> 1) for i in range(2*EL)] + [('r', i & 1, i >> 1) for i in range(2*E)]
    seq += [('g', 0, i) for i in range(N)]
    cur = 0; m0 = 0
    for n, (kind, t, i) in enumerate(seq):
        want = i + (EL if kind == 'r' else XP if kind == 'g' else 0)
        if want != cur: A(f'v_add_u32 v{vOff}, {hex(((want - cur) << 12) & 0xffffffff)}, v{vOff}'); cur = want
        if kind == 'l' and 2048*i + 1024*t != m0:
            A(f's_add_u32 m0, s62, {2048*i + 1024*t}'); m0 = 2048*i + 1024*t
            if n < Nf: A('s_nop 0')
        if n >= Nf: A(f's_waitcnt vmcnt({(p.Nf2 if p.Nf2 and n >= p.nsw else Nf) - 1})')
        if n == 0: stamp(6)
        if n == Nf: stamp(7)
        if n == 12: stamp(8)
        if n == 36: stamp(9)
        if n == 56: stamp(10)
        if kind == 'l': A(f'buffer_load_dwordx4 v{vOff}, {S(SV if t else SK)}, 0 offen nt lds')
        else: A(f'buffer_load_dwordx4 {V(vExt + 8*i + 4*t if kind == "r" else vRing + 4*i, 4)}, v{vOff}, {S(SV if t else SK)}, 0 offen nt')
        if n == Nf - 1:
            A(f'v_mov_b32 v{vM}, {f32(-1e38)}'); A(f'v_mov_b32 v{vG}, {f32(-1e38)}'); A(f'v_mov_b32 v{vNM}, {f32(1e38*LOG2E)}'); A(f'v_mov_b32 v{vL}, 0')
            for e in range(8): A(f'v_mov_b32 v{vAcc+e}, 0')
            A(f'v_and_b32 v{vT}, 15, v0'); A(f'v_lshlrev_b32 v{vT}, 4, v{vT}')
            A(f'v_lshrrev_b32 v{vSa}, 4, v0'); A(f'v_lshlrev_b32 v{vSa}, 4, v{vSa}'); A('s_lshl_b32 s61, s3, 10'); A(f's_add_u32 s61, s61, {L_S}'); A(f'v_add_u32 v{vSa}, s61, v{vSa}')
            A(f'v_lshl_add_u32 v0, v0, 4, s62')
    A(f'v_add_u32 v{vOff}, 0x1000, v{vOff}')
    srd(A, SC, SK, 1 << 21)
    A(f's_mov_b32 s{sPr}, {(XP + 2) << 12}')
    A(f's_lshl_b32 s61, s3, 2'); A(f'v_mov_b32 v{vU}, s61'); A(f'v_mov_b32 v{vP}, {mid}'); A(f'v_mov_b32 v{vLo}, s{sPr}')
    A(f'ds_write_b32 v{vU}, v{vLo} offset:{L_PR}'); A(f'ds_write_b32 v{vU}, v{vP} offset:{L_LV}')
    A(f'ds_write_b32 v{vU}, v{vL} offset:{L_FL}')
    A(f's_mov_b32 s{sIB}, {G0-1}'); A(f's_mov_b32 s{sIP}, 0'); A(f's_mov_b32 s{sIG}, {G0}'); A(f's_mov_b32 s{sCB}, {G0-1}'); A(f's_mov_b32 s{sCG}, {G0}')
    A('s_mov_b32 s60, 0')
    A('s_waitcnt lgkmcnt(0)')
    stamp(1)
    A('s_barrier')
    A(f'ds_read_b128 {V(vQ,4)}, v{vT} offset:{L_Q}')
    stamp(2)
    A(f's_waitcnt vmcnt({N}) lgkmcnt(0)')
    A(f's_branch L_k{mid}')
    stubs = []
    def score(r, d, last=True):
        A(f'v_dot2_f32_bf16 v{d}, v{r}, v{vQ}, 0')
        for i in (1, 2, 3): A(f'v_dot2_f32_bf16 v{d}, v{r+i}, v{vQ+i}, v{d}')
        for k in (8, 4, 2, 1): A(f'v_add_f32_dpp v{d}, v{d}, v{d} row_ror:{k} row_mask:0xf bank_mask:0xf')
        A(f'v_cvt_pk_bf16_f32 v{d}, 0, v{d}')
        A(f'v_mul_f32 v{d}, {f32(SCALE)}, v{d}')
        if last: A(f'v_cvt_pk_bf16_f32 v{d}, 0, v{d}')
    def prob(s_, half=None):
        if half is not None:
            A(f'v_and_b32 v{vP}, 0xffff0000, v{s_}' if half else f'v_lshlrev_b32 v{vP}, 16, v{s_}'); s_ = vP
        A(f'v_fmamk_f32 v{vP}, v{s_}, {f32(LOG2E)}, v{vNM}')
        A(f'v_exp_f32 v{vP}, v{vP}')
        A(f'v_cvt_pk_bf16_f32 v{vLo}, v{vP}, 0')
        A(f'v_cvt_pk_bf16_f32 v{vHi}, 0, v{vP}')
        A(f'v_add_f32 v{vL}, v{vL}, v{vP}')
    def vwork(r):
        for i in range(4):
            A(f'v_dot2c_f32_bf16 v{vAcc+2*i}, v{r+i}, v{vLo}')
            A(f'v_dot2c_f32_bf16 v{vAcc+2*i+1}, v{r+i}, v{vHi}')
    def call(target, link):
        st = A.label('c'); stubs.append((st, target, link)); A(f'{st}_b:'); return st
    def chain(pre, k):
        if not p.ctl:
            A(f's_branch L_{pre}{k}'); return
        order = [k] + sorted((x for x in range(len(levels)) if x != k), key=lambda x: abs(x - mid))
        for x in order[:-1]:
            A(f's_cmp_eq_u32 s61, {x}'); A(f's_cbranch_scc1 L_{pre}{x}')
        A(f's_branch L_{pre}{order[-1]}')
    def block(kind, k, pat):
        issued = N
        A('.p2align 4')
        A(f'L_{kind}{k}:')
        if kind == 'v':
            A(f'ds_read_b128 {V(vST,4)}, v{vSa}')
            A(f'v_add_u32 v{vSa}, 64, v{vSa}')
        for j in range(8):
            if kind == 'v' and j: prob(vST + j//2, j & 1)
            A(f's_waitcnt vmcnt({issued - j - 1})')
            while issued < j + 1 + int(pat[j]):
                if issued == 8:
                    A(f's_sub_u32 s{sIB}, s{sIB}, 1')
                    st = A.label('c'); stubs.append((st, 'L_swap', 42)); A(f's_cbranch_scc1 {st}'); A(f'{st}_b:')
                A(f'buffer_load_dwordx4 {V(vRing + 4*(issued % 8), 4)}, v{vOff}, {S(SC)}, 0 offen nt')
                A(f'v_add_u32 v{vOff}, 0x1000, v{vOff}')
                issued += 1
            assert issued <= 14
            if kind == 'v' and j == 0:
                A('s_waitcnt lgkmcnt(0)'); prob(vST, 0)
            if j & 1 and p.ctl or j == 7:
                A(f's_add_u32 s{sPr}, s{sPr}, {0x1000 if p.ctl else 0x4000}'); A(f'v_mov_b32 v{vP}, s{sPr}')
                A(f'ds_write_b32 v{vU}, v{vP} offset:{L_PR}')
            if j == 7:
                if p.ctl: A(f'ds_read_b32 v{vT}, v{vU} offset:{L_LV}')
                A(f's_sub_u32 s61, s60, {E}'); A(f's_cmp_lt_u32 s61, {EL}'); A(f's_cbranch_scc0 L_{kind}{k}_nl')
                A(f'ds_read_b128 {V(vRing+24,4)}, v0')
                A(f'L_{kind}{k}_nl:')
            if kind == 'v': vwork(vRing + 4*j)
            else:
                score(vRing + 4*j, vST + 4 + (j & 1), False)
                if j & 1:
                    A(f'v_max3_f32 v{vG}, v{vG}, v{vST+4}, v{vST+5}')
                    A(f'v_cvt_pk_bf16_f32 v{vST+j//2}, v{vST+4}, v{vST+5}')
        assert issued == 8 + N
        if kind == 'k':
            A('s_mov_b32 exec_lo, 0x10001'); A('s_mov_b32 exec_hi, 0x10001')
            A(f'ds_write_b128 v{vSa}, {V(vST,4)}')
            A('s_mov_b64 exec, -1')
            A(f'v_add_u32 v{vSa}, 64, v{vSa}')
            A('s_waitcnt lgkmcnt(1)')
        else:
            A('s_waitcnt lgkmcnt(0)')
        if p.ctl: A(f'v_readfirstlane_b32 s61, v{vT}')
        A(f's_cmp_lt_u32 s60, {XP}')
        st = A.label('c'); stubs.append((st, 'L_extra', 42)); A(f's_cbranch_scc1 {st}'); A(f'{st}_b:')
        A('s_add_u32 s60, s60, 1')
        A(f's_sub_u32 s{sCB}, s{sCB}, 1'); A(f's_cbranch_scc1 L_{kind}{k}_sw')
        chain(kind, k)
        A(f'L_{kind}{k}_sw:')
        A(f's_lshl_b32 s68, s{sCG}, 6'); A(f'v_subrev_u32 v{vSa}, s68, v{vSa}')
        if kind == 'k':
            A(f's_sub_u32 s{sCB}, s{sCG}, 1')
            A(f'v_cvt_pk_bf16_f32 v{vP}, 0, v{vG}'); A(f'v_cmp_gt_f32 vcc, v{vP}, v{vM}')
            st = A.label('c'); stubs.append((st, 'L_rescale', 40)); A(f's_cbranch_vccnz {st}'); A(f'{st}_b:')
            chain('v', k)
        else:
            A(f's_mov_b32 s{sCG}, {G}'); A(f's_mov_b32 s{sCB}, {G-1}')
            A(f's_cmp_eq_u32 s60, {TRIPS}'); A('s_cbranch_scc1 L_sdone')
            chain('k', k)
    for k, pat in enumerate(levels):
        if p.ctl or k == mid:
            block('k', k, pat); block('v', k, pat)
    A('L_sdone:')
    A('v_mbcnt_lo_u32_b32 v0, -1, 0'); A('v_mbcnt_hi_u32_b32 v0, -1, v0')
    stamp(4)
    A(f'v_mov_b32 v{vT}, v{vL}')
    A(f'v_and_b32 v{vU}, 15, v0'); A(f'v_lshlrev_b32 v{vU}, 5, v{vU}')
    A(f'v_permlane32_swap_b32 v{vT}, v{vL}')
    A(f'v_lshrrev_b32 v{vA}, 4, v0')
    for e in range(4): A(f'v_permlane32_swap_b32 v{vAcc+e}, v{vAcc+e+4}')
    A(f'v_add_f32 v{vL}, v{vL}, v{vT}')
    for e in range(4): A(f'v_add_f32 v{vAcc+e}, v{vAcc+e}, v{vAcc+e+4}')
    A(f'v_mov_b32 v{vT}, v{vL}')
    A(f'v_lshl_add_u32 v{vU}, v{vA}, 3, v{vU}')
    for e in range(2): A(f'v_permlane16_swap_b32 v{vAcc+e}, v{vAcc+e+2}')
    A(f'v_permlane16_swap_b32 v{vT}, v{vL}')
    A(f's_lshl_b32 s61, s3, 9'); A(f'v_add_u32 v{vU}, s61, v{vU}')
    for e in range(2): A(f'v_add_f32 v{vAcc+e}, v{vAcc+e}, v{vAcc+e+2}')
    A(f'v_add_f32 v{vL}, v{vL}, v{vT}')
    A(f'ds_write_b64 v{vU}, {V(vAcc,2)} offset:{L_O}')
    A('s_lshl_b32 s61, s3, 2'); A(f'v_mov_b32 v{vA}, s61')
    A('s_mov_b64 exec, 1')
    A(f'ds_write_b32 v{vA}, v{vNM} offset:{L_M}'); A(f'ds_write_b32 v{vA}, v{vL} offset:{L_L}')
    A('s_waitcnt lgkmcnt(0)')
    A('s_barrier')
    stamp(5)
    if p.stamps:
        A('L_flush:')
        A('s_mov_b64 exec, 1')
        A('s_waitcnt lgkmcnt(0)')
        srd(A, SW2, 30, WS_BYTES)
        A('s_lshl_b32 s60, s2, 10'); A('s_lshl_b32 s61, s3, 7'); A('s_add_u32 s60, s60, s61'); A(f's_add_u32 s60, s60, {STMP}')
        A('v_mov_b32 v1, s60')
        for k in range(15):
            A(f'v_mov_b32 v2, s{72+2*k}')
            A(f'buffer_store_dword v2, v1, {S(SW2)}, 0 offen offset:{4*k} sc1')
        A('s_waitcnt vmcnt(0)')
    A('L_exit:')
    A('s_endpgm')
    for st, target, link in stubs:
        A(f'{st}:'); A(f's_call_b64 s[{link}:{link+1}], {target}'); A(f's_branch {st}_b')
    A('L_swap:')
    A(f's_cmp_lg_u32 s{sIP}, 0'); A('s_cbranch_scc1 L_swap_k')
    A(f's_mov_b32 s{SC}, s{SV}'); A(f's_mov_b32 s{SC+1}, s{SV+1}'); A(f's_mov_b32 s{sIP}, 1'); A(f's_sub_u32 s{sIB}, s{sIG}, 1')
    A(f's_lshl_b32 s68, s{sIG}, 15'); A(f'v_subrev_u32 v{vOff}, s68, v{vOff}')
    A('s_setpc_b64 s[42:43]')
    A('L_swap_k:')
    A(f's_mov_b32 s{SC}, s{SK}'); A(f's_mov_b32 s{SC+1}, s{SK+1}'); A(f's_mov_b32 s{sIP}, 0'); A(f's_mov_b32 s{sIG}, {G}'); A(f's_mov_b32 s{sIB}, {G-1}')
    A('s_setpc_b64 s[42:43]')
    A('L_extra:')
    if 'X' in p.skip: A('s_branch L_extra_s')
    A(f's_cmp_ge_u32 s60, {E}'); A('s_cbranch_scc1 L_extra_l')
    A('s_lshl_b32 s68, s60, 3')
    A('s_set_gpr_idx_on s68, gpr_idx(SRC0)')
    for i in range(8): A(f'v_mov_b32 v{vRing+24+i}, v{vExt+i}')
    A('s_set_gpr_idx_off')
    A('s_branch L_extra_go')
    A('L_extra_l:')
    A(f'ds_read_b128 {V(vRing+28,4)}, v0 offset:1024')
    A('v_add_u32 v0, 0x800, v0')
    A('L_extra_go:')
    score(vRing+24, vP)
    A(f'v_cmp_gt_f32 vcc, v{vP}, v{vM}'); A('s_cbranch_vccz L_extra_p')
    A('s_call_b64 s[40:41], L_rescale')
    A('L_extra_p:')
    prob(vP); A('s_waitcnt lgkmcnt(0)'); vwork(vRing+28)
    A('L_extra_s:')
    if p.stamps:
        A(f's_cmp_lg_u32 s60, {XP-1}'); A('s_cbranch_scc1 L_extra_r'); stamp(3); A('L_extra_r:')
    A('s_setpc_b64 s[42:43]')
    A('L_rescale:')
    A(f'v_mov_b32 v{vLo}, v{vP}'); A(f'v_mov_b32 v{vHi}, v{vP}')
    A(f'v_permlane32_swap_b32 v{vLo}, v{vHi}')
    A(f'v_max_f32 v{vLo}, v{vLo}, v{vHi}'); A(f'v_mov_b32 v{vHi}, v{vLo}')
    A(f'v_permlane16_swap_b32 v{vLo}, v{vHi}')
    A(f'v_max3_f32 v{vM}, v{vLo}, v{vHi}, v{vM}')
    A(f'v_mul_f32 v{vLo}, {f32(-LOG2E)}, v{vM}')
    A(f'v_sub_f32 v{vT}, v{vLo}, v{vNM}')
    A(f'v_exp_f32 v{vT}, v{vT}')
    A(f'v_mov_b32 v{vNM}, v{vLo}')
    A(f'v_mul_f32 v{vL}, v{vL}, v{vT}')
    for e in range(8): A(f'v_mul_f32 v{vAcc+e}, v{vAcc+e}, v{vT}')
    A('s_setpc_b64 s[40:41]')

    vOwn, vA0, vA1, vW, vSp, vAc, vX = 16, 24, 32, 40, 104, 106, 128
    wf = p.wflag
    def dpp(op, d, a, b, ctl, rm='0xf'): A(f'{op}_dpp v{d}, v{a}, v{b} {ctl} row_mask:{rm} bank_mask:0xf')
    def movdpp(d, a, ctl): A(f'v_mov_b32_dpp v{d}, v{a} {ctl} row_mask:0xf bank_mask:0xf')
    def rbf(d, s): A(f'v_cvt_pk_bf16_f32 v{d}, 0, v{s}')
    def pk(op, d, a, b, bc=False): A(f'v_pk_{op}_f32 {V(d,2)}, {V(a,2)}, {V(b,2)}' + (' op_sel_hi:[1,0]' if bc else ''))
    def bail(back):
        A('s_add_u32 s68, s68, 1'); A(f's_cmp_lt_u32 s68, {p.limit}'); A(f's_cbranch_scc1 {back}')
    def maxall(d, regs):
        regs = list(regs)
        if len(regs) == 1: return regs[0]
        if len(regs) == 2: A(f'v_max_u32 v{d}, v{regs[0]}, v{regs[1]}'); return d
        A(f'v_max3_u32 v{d}, v{regs[0]}, v{regs[1]}, v{regs[2]}'); regs = regs[3:]
        while len(regs) >= 2:
            A(f'v_max3_u32 v{d}, v{d}, v{regs[0]}, v{regs[1]}'); regs = regs[2:]
        if regs: A(f'v_max_u32 v{d}, v{d}, v{regs[0]}')
        return d
    def poll(loads, regs, tmp, sleep=0):
        L = A.label('poll'); D = L + '_d'
        A('s_mov_b32 s68, 0')
        A(f'{L}:')
        for l in loads: A(l)
        A('s_waitcnt vmcnt(0)')
        t = maxall(tmp, regs)
        A(f'v_cmpx_eq_u32 vcc, -1, v{t}')
        A(f's_cbranch_execz {D}')
        if sleep: A(f's_sleep {sleep}')
        bail(L)
        A(f'{D}:')
        A('s_mov_b64 exec, -1')
    def readprog(op):
        A(f'ds_read_b32 v14, v10 offset:{L_PR}'); A('s_waitcnt lgkmcnt(0)')
        A('v_lshrrev_b32 v14, 12, v14')
        dpp(f'v_{op}_u32', 14, 14, 14, 'quad_perm:[1,0,3,2]'); dpp(f'v_{op}_u32', 14, 14, 14, 'quad_perm:[2,3,0,1]')
        A('v_readfirstlane_b32 s64, v14')
    def waitprog(lim, op):
        L = A.label('prog'); D = L + '_d'
        A('s_mov_b32 s68, 0')
        A(f'{L}:')
        readprog(op)
        A(f's_cmp_ge_u32 s64, {lim}'); A(f's_cbranch_scc1 {D}')
        A(f's_sleep {p.psleep}')
        bail(L)
        A(f'{D}:')
    def setflag(k):
        A('v_mov_b32 v14, 1'); A('v_mov_b32 v15, 0'); A(f'ds_write_b32 v15, v14 offset:{L_FL + 4*k}')
    def waitflags():
        L = A.label('fl'); D = L + '_d'
        A('s_mov_b32 s68, 0'); A('v_mov_b32 v15, 0')
        A(f'{L}:')
        A(f'ds_read_b96 v[72:74], v15 offset:{L_FL}'); A('s_waitcnt lgkmcnt(0)')
        A('v_min3_u32 v14, v72, v73, v74'); A('v_cmp_eq_u32 vcc, 0, v14'); A(f's_cbranch_vccz {D}')
        A('s_sleep 20')
        bail(L)
        A(f'{D}:')
    def waitmarks():
        A('v_lshlrev_b32 v9, 4, v0'); A(f's_mov_b32 s60, {CLRF}')
        poll([f'buffer_load_dwordx4 v[4:7], v9, {S(SWS)}, s60 offen sc1'], range(4, 8), 8, sleep=16)
    def waitflag(off, sleep):
        L = A.label('flag'); D = L + '_d'
        A('s_mov_b32 s68, 0'); A('s_mov_b64 exec, 1'); A('v_mov_b32 v15, 0')
        if p.gopipe: A(f'buffer_load_dword v9, v15, {S(SDBG)}, 0 offen offset:{off} sc1'); A(f's_sleep {sleep}')
        A(f'{L}:')
        for r in ((14, 9) if p.gopipe else (14,)):
            A(f'buffer_load_dword v{r}, v15, {S(SDBG)}, 0 offen offset:{off} sc1')
            A(f's_waitcnt vmcnt({int(p.gopipe)})')
            A(f'v_cmp_eq_u32 vcc, 0, v{23-r if p.gopipe else r}'); A(f's_cbranch_vccz {D}')
            A(f's_sleep {sleep}')
        bail(L)
        A(f'{D}:')
        A('s_mov_b64 exec, -1')
    def arrive(off, last, flagoff):
        D = A.label('arr')
        A('s_mov_b64 exec, 1'); A('v_mov_b32 v15, 0'); A('v_mov_b32 v14, 1')
        A(f'buffer_atomic_add v14, v15, {S(SDBG)}, 0 offen offset:{off} sc0 sc1')
        A('s_waitcnt vmcnt(0)')
        A(f'v_cmp_ne_u32 vcc, {last}, v14'); A(f's_cbranch_vccnz {D}')
        A(f'buffer_store_dword v14, v15, {S(SDBG)}, 0 offen offset:{flagoff} sc1')
        A(f'{D}:')
        A('s_mov_b64 exec, -1')
    def pair_perm(base, npairs, spare, w=4):
        m = {}; free = spare
        for t in range(npairs):
            for j in range(w):
                a, b = base + 2*w*t + j, base + 2*w*t + w + j
                A(f'v_perm_b32 v{free}, v{b}, v{a}, s{PLO}'); m[(t, 2*j)] = free
                A(f'v_perm_b32 v{b}, v{b}, v{a}, s{PHI}'); m[(t, 2*j+1)] = b
                free = a
        return m
    def zero(r, n):
        for e in range(n): A(f'v_mov_b32 v{r+e}, 0')
    def mv_dots(m):
        for t in range(8):
            for e in range(8):
                A(f'v_dot2c_f32_bf16 v{vAc+e}, v{vA0+t}, v{m[(t,e)]}')
                A(f'v_dot2c_f32_bf16 v{vAc+8+e}, v{vA1+t}, v{m[(t,e)]}')
    def fold(r, n, which):
        h = n // 2
        for e in range(h): A(f'v_permlane{which}_swap_b32 v{r+e}, v{r+h+e}')
        for e in range(h): A(f'v_add_f32 v{r+e}, v{r+e}, v{r+h+e}')
    def rors(r, n, ks):
        for k in ks:
            for e in range(n): dpp('v_add_f32', r+e, r+e, r+e, f'row_ror:{k}')
    def allsum_parity(r, t):
        rors(r, 1, (2, 4, 8))
        A(f'v_mov_b32 v{t}, v{r}'); A(f'v_permlane16_swap_b32 v{t}, v{r}'); A(f'v_add_f32 v{r}, v{r}, v{t}')
        A(f'v_mov_b32 v{t}, v{r}'); A(f'v_permlane32_swap_b32 v{t}, v{r}'); A(f'v_add_f32 v{r}, v{r}, v{t}')
    def unpack(dst, src, n):
        for i in range(n):
            A(f'v_lshlrev_b32 v{dst+2*i}, 16, v{src+i}'); A(f'v_and_b32 v{dst+2*i+1}, 0xffff0000, v{src+i}')
    def setexec(mask):
        lo, hi = mask & 0xffffffff, mask >> 32
        A(f's_mov_b32 exec_lo, 0x{lo:x}'); A(f's_mov_b32 exec_hi, 0x{hi:x}')
    def ln_tail(nmean, var):
        rbf(var, var); rbf(nmean, nmean)
        A(f'v_add_f32 v{var}, {f32(1e-5)}, v{var}'); rbf(var, var)
        A(f'v_sqrt_f32 v{var}, v{var}'); rbf(var, var); A(f'v_rcp_f32 v{var}, v{var}')

    def modcalc(x, st=True):
        A(f's_waitcnt vmcnt({16+x})')
        unpack(vX, vOwn, 8)
        for i in range(16): A(f'v_mul_f32 v{vX+16+i}, {f32(-LOG2E)}, v{vX+i}')
        for i in range(16): A(f'v_exp_f32 v{vX+16+i}, v{vX+16+i}')
        for i in range(16): A(f'v_add_f32 v{vX+16+i}, 1.0, v{vX+16+i}')
        for i in range(16): A(f'v_rcp_f32 v{vX+16+i}, v{vX+16+i}')
        for i in range(0, 16, 2): pk('mul', vX+i, vX+i, vX+16+i)
        for i in range(8): A(f'v_cvt_pk_bf16_f32 v{vOwn+i}, v{vX+2*i}, v{vX+2*i+1}')
        for t in range(8):
            movdpp(vA0+t, vOwn+t, 'quad_perm:[0,0,2,2]'); movdpp(vA1+t, vOwn+t, 'quad_perm:[1,1,3,3]')
        if st: stamp(1)
        free = vSp
        for t in range(8):
            A(f's_waitcnt vmcnt({14-2*t+x})')
            m = {}
            for j in range(4):
                a, b = vW + 8*t + j, vW + 8*t + 4 + j
                A(f'v_perm_b32 v{free}, v{b}, v{a}, s{PLO}'); m[2*j] = free
                A(f'v_perm_b32 v{b}, v{b}, v{a}, s{PHI}'); m[2*j+1] = b
                free = a
            for e in range(8):
                A(f'v_dot2c_f32_bf16 v{vAc+e}, v{vA0+t}, v{m[e]}')
                A(f'v_dot2c_f32_bf16 v{vAc+8+e}, v{vA1+t}, v{m[e]}')
        if st: stamp(2)

    def guloads():
        srd(A, SW, 16, 512*1792*2); srd(A, SW2, 18, 512*1792*2)
        A(f's_mov_b32 s60, {4*3584}'); A('v_mul_lo_u32 v1, s60, v0'); A(f's_lshl_b32 s61, s{sFB}, 4'); A('v_add_u32 v1, s61, v1')
        for i in range(8 if 'g' not in p.skip else 0):
            A(f's_mov_b32 s60, {(256*(i>>2) + (i&3))*3584}')
            A(f'buffer_load_dwordx4 {V(vX+8*i,4)}, v1, {S(SW)}, s60 offen {wf}')
            A(f's_waitcnt vmcnt({p.gw})')
            A(f'buffer_load_dwordx4 {V(vX+8*i+4,4)}, v1, {S(SW2)}, s60 offen {wf}')
            A(f's_waitcnt vmcnt({p.gw})')

    def lateclear():
        for i in range(4): A(f'v_mov_b32 v{vX+16+i}, -1')
        A('s_mul_i32 s61, s2, 5120'); A('v_lshl_add_u32 v3, v0, 4, s61'); A(f's_mov_b32 s60, {LATE}'); A(f's_mov_b32 s61, {LATE+4096}')
        L = A.label('clr')
        if p.chot:
            A(f's_sub_u32 s62, s2, {(Y2 - LATE + 5119)//5120}'); A(f's_cmp_lt_u32 s62, {(X2 - LATE)//5120 - (Y2 - LATE + 5119)//5120}'); A(f's_cbranch_scc1 {L}')
            for i in range(5): A(f'buffer_store_dwordx4 {V(vX+16,4)}, v3, {S(SWS)}, s{60+(i>>2)} offen offset:{1024*(i&3)} sc1')
            A(f's_branch {L}_d')
            A(f'{L}:')
        for i in range(5 if 'c' not in p.skip else 0):
            A(f'buffer_store_dwordx4 {V(vX+16,4)}, v3, {S(SWS)}, s{60+(i>>2)} offen offset:{1024*(i&3)} {p.cflag}')
        A(f'{L}_d:')
    def marked():
        A('s_mov_b64 exec, 1'); A(f's_lshl_b32 s61, s{sX}, 5'); A(f's_add_u32 s61, s61, s{sIdx}')
        A('s_lshl_b32 s61, s61, 2'); A(f's_add_u32 s61, s61, {CLRF}')
        A(f'buffer_store_dword v15, v15, {S(SWS)}, s61 offen sc1')
        A('s_mov_b64 exec, -1')

    A('L_helper:')
    A(f's_mov_b32 s{PLO}, 0x05040100'); A(f's_mov_b32 s{PHI}, 0x07060302')
    A('v_and_b32 v11, 1, v0'); A('v_bfe_u32 v12, v0, 4, 1'); A('v_lshrrev_b32 v13, 5, v0')
    A('v_mov_b32 v5, 0'); A('v_mov_b32 v6, 0')
    A(f's_lshr_b32 s60, s{sIdx}, 3'); A('s_lshl_b32 s60, s60, 3'); A(f's_add_u32 s60, s60, s{sX}')
    A(f's_lshl_b32 s{sFB}, s60, 3'); A(f's_add_u32 s{sFB}, s{sFB}, s{sJ}')
    A(f's_sub_u32 s60, s{sIdx}, 8'); A(f's_lshl_b32 s61, s{sX}, 2'); A(f's_add_u32 s{sR}, s60, s61')
    A('s_cmp_lt_u32 s60, 4'); A(f's_cselect_b32 s{sR}, s{sR}, 64')
    A('s_waitcnt lgkmcnt(0)')
    srd(A, SWS, 30, WS_BYTES); srd(A, SDBG, 28, 256)
    A('s_cmp_eq_u32 s3, 5'); A('s_cbranch_scc1 L_taskB')
    if p.warm0:
        A('s_cmp_lg_u32 s3, 7'); A('s_cbranch_scc1 L_not7')
        A(f's_cmp_lg_u32 s{sIdx}, 9'); A('s_cbranch_scc1 L_bar2')
        A('s_getpc_b64 s[60:61]'); A('L_pc0:')
        A(f's_sub_u32 s60, s60, L_pc0 - {NAME}_kernel'); A('s_subb_u32 s61, s61, 0')
        A('v_lshlrev_b32 v2, 7, v0'); A('v_mov_b32 v3, s61'); A('v_add_co_u32 v2, vcc, s60, v2'); A('v_addc_co_u32 v3, vcc, 0, v3, vcc')
        A('v_mov_b32 v8, v0')
        A('L_w0:')
        A(f'v_cmp_gt_u32 vcc, (L_fin - {NAME}_kernel + 127)/128, v8'); A('s_and_b64 exec, exec, vcc'); A('s_cbranch_execz L_w0d')
        A('global_load_dword v4, v[2:3], off')
        A('v_add_co_u32 v2, vcc, 0x2000, v2'); A('v_addc_co_u32 v3, vcc, 0, v3, vcc'); A('v_add_u32 v8, 64, v8')
        A('s_branch L_w0')
        A('L_w0d:')
        A('s_mov_b64 exec, -1'); A('s_waitcnt vmcnt(0)'); A('s_branch L_bar2')
        A('L_not7:')
    if p.cwhen == 1:
        A('s_cmp_lg_u32 s3, 6'); A('s_cbranch_scc1 L_not6')
        lateclear(); A('s_branch L_bar2'); A('L_not6:')
    A('s_cmp_lg_u32 s3, 4'); A('s_cbranch_scc1 L_bar2')
    A('s_cmp_ge_u32 s2, 64'); A('s_cbranch_scc1 L_bar2')
    A('s_and_b32 s62, s2, 15'); A('s_lshr_b32 s63, s2, 4')
    if not p.qfirst: A('s_call_b64 s[42:43], L_modload')
    for i in range(4): A(f'v_mov_b32 v{4+i}, -1')
    A(f's_lshl_b32 s61, s{sX}, 3'); A(f's_add_u32 s64, s61, s{sIdx}')
    A('s_lshl_b32 s61, s64, 12'); A('v_lshl_add_u32 v3, v0, 4, s61'); A(f's_mov_b32 s60, {QP}')
    for i in range(4): A(f'buffer_store_dwordx4 v[4:7], v3, {S(SWS)}, s60 offen offset:{1024*i} {p.qcflag}')
    A('s_lshl_b32 s61, s64, 4'); A(f's_add_u32 s61, s61, {CLRF}'); A('v_mov_b32 v3, 0'); A('s_mov_b64 exec, 1')
    A(f'buffer_store_dwordx4 v[4:7], v3, {S(SWS)}, s61 offen sc1')
    A('s_mov_b64 exec, -1')
    if p.qfirst: A('s_call_b64 s[42:43], L_modload')
    zero(vAc, 16)
    modcalc(0 if p.qfirst else 5)
    fold(vAc, 16, 32); fold(vAc, 8, 16); rors(vAc, 4, (8,))
    A('v_and_b32 v1, 7, v0'); A('v_lshlrev_b32 v1, 5, v1'); A('v_lshl_add_u32 v1, v12, 4, v1'); A('v_lshl_add_u32 v1, v13, 8, v1')
    A('s_lshl_b32 s60, s62, 2'); A('s_add_u32 s60, s60, s63'); A('s_lshl_b32 s60, s60, 9')
    setexec(0x00ff00ff00ff00ff)
    A(f'buffer_store_dwordx4 {V(vAc,4)}, v1, {S(SWS)}, s60 offen sc1')
    stamp(3)
    A('s_waitcnt vmcnt(0)')
    stamp(4)
    arrive(0, 63, 128)
    stamp(5)
    A('s_branch L_bar2')
    A('L_modload:')
    srd(A, SW2, 22, 2048); srd(A, SW, 24, 512*3072*2)
    A('v_lshrrev_b32 v10, 3, v0')
    A('v_lshlrev_b32 v1, 5, v10'); A('v_lshl_add_u32 v1, v11, 10, v1'); A('s_lshl_b32 s60, s63, 8')
    A(f'buffer_load_dwordx4 {V(vOwn,4)}, v1, {S(SW2)}, s60 offen')
    A(f'buffer_load_dwordx4 {V(vOwn+4,4)}, v1, {S(SW2)}, s60 offen offset:16')
    A(f's_mov_b32 s60, {16*6144}'); A('v_mul_lo_u32 v1, s60, v10'); A('v_and_b32 v2, 7, v0'); A('v_lshl_add_u32 v1, v2, 4, v1')
    A(f's_mul_i32 s60, s63, {128*6144}'); A('s_lshl_b32 s61, s62, 7'); A('s_add_u32 s60, s60, s61')
    for i in range(16):
        A(f'buffer_load_dwordx4 {V(vW+4*i,4)}, v1, {S(SW)}, s60 offen {wf}')
        if i < 15: A('s_add_u32 s60, s60, 6144')
    A('s_setpc_b64 s[42:43]')
    A('L_taskB:')
    srd(A, SW2, 4, 2048); srd(A, SW, 10, 512*4096*2)
    A('v_lshrrev_b32 v10, 1, v0'); A('v_lshlrev_b32 v1, 5, v10'); A('v_lshl_add_u32 v1, v11, 10, v1')
    A(f'buffer_load_dwordx4 {V(vOwn,4)}, v1, {S(SW2)}, 0 offen')
    A(f'buffer_load_dwordx4 {V(vOwn+4,4)}, v1, {S(SW2)}, 0 offen offset:16')
    A('v_lshrrev_b32 v9, 4, v0'); A('v_and_b32 v8, 14, v0'); A('v_lshl_add_u32 v8, v9, 4, v8')
    A('v_lshlrev_b32 v1, 1, v8'); A('v_lshl_add_u32 v1, v11, 10, v1'); A(f's_lshl_b32 s60, s{sJ}, 7')
    A(f'buffer_load_dword v7, v1, {S(SW2)}, s60 offen')
    A('v_lshlrev_b32 v1, 17, v9'); A('v_and_b32 v10, 15, v0'); A('v_lshl_add_u32 v1, v10, 4, v1')
    A(f's_lshl_b32 s60, s{sJ}, 19'); A(f's_lshl_b32 s61, s{sH}, 8'); A('s_add_u32 s60, s60, s61')
    def wqloads():
        for i in range(16):
            A(f'buffer_load_dwordx4 {V(vW+4*i,4)}, v1, {S(SW)}, s60 offen {wf}')
            if i < 15: A('s_add_u32 s60, s60, 8192')
    A('s_waitcnt vmcnt(0)')
    unpack(vX, vOwn, 8)
    w = vX + 16
    pk('add', w, vX, vX+2)
    for i in range(4, 16, 2): pk('add', w, w, vX+i)
    A(f'v_add_f32 v2, v{w}, v{w+1}')
    allsum_parity(2, 3)
    A(f'v_mul_f32 v2, {f32(-1.0/512)}, v2')
    for i in range(0, 16, 2): pk('add', w+i, vX+i, 2, True)
    pk('mul', 4, w, w)
    for i in range(2, 16, 2): A(f'v_pk_fma_f32 v[4:5], {V(w+i,2)}, {V(w+i,2)}, v[4:5]')
    A('v_add_f32 v4, v4, v5')
    allsum_parity(4, 5)
    A(f'v_mul_f32 v4, {f32(1.0/512)}, v4')
    wqloads()
    if p.cwhen == 0: lateclear()
    ln_tail(2, 4)
    unpack(vX, 7, 1)
    pk('add', vX, vX, 2, True); rbf(vX, vX); rbf(vX+1, vX+1)
    pk('mul', vX, vX, 4, True); rbf(vX, vX); rbf(vX+1, vX+1)
    zero(vAc, 16)
    A('v_lshlrev_b32 v6, 2, v8'); A('v_lshl_add_u32 v6, v11, 8, v6')
    A('v_lshlrev_b32 v1, 5, v10'); A('v_lshl_add_u32 v1, v12, 4, v1'); A('v_lshl_add_u32 v1, v13, 12, v1')
    A(f's_lshl_b32 s62, s{sJ}, 11'); A('s_add_u32 s63, s62, 16384')
    stamp(1)
    A('s_waitcnt vmcnt(0)')
    stamp(2)
    m = pair_perm(vW, 8, vSp)
    waitflag(128, p.gosleep)
    stamp(3)
    for i in range(4 if 'M' not in p.skip else 0):
        A(f'buffer_load_dwordx2 {V(vX+2+2*i,2)}, v6, {S(SWS)}, s63 offen offset:{512*i} sc1')
    for i in range(4 if 'M' not in p.skip else 0):
        A(f'buffer_load_dwordx2 {V(vX+10+2*i,2)}, v6, {S(SWS)}, s62 offen offset:{512*i} sc1')
    if p.cwhen == 0: marked()
    A(f's_lshl_b32 s60, s{sH}, 13'); A(f's_lshl_b32 s61, s{sJ}, 9'); A('s_add_u32 s61, s61, s60'); A(f's_add_u32 s61, s61, {QP}')
    A(f's_lshl_b32 s62, s{sB}, 12'); A('s_add_u32 s60, s60, s62'); A(f's_add_u32 s60, s60, {QP}')
    A(f's_waitcnt vmcnt({5 if p.cwhen == 0 else 4})')
    c1, sa = vX+2, vX+10
    pk('add', c1, c1, c1+2); pk('add', c1+4, c1+4, c1+6); pk('add', c1, c1, c1+4)
    rbf(c1, c1); rbf(c1+1, c1+1)
    A(f'v_add_f32 v{c1}, 1.0, v{c1}'); A(f'v_add_f32 v{c1+1}, 1.0, v{c1+1}')
    rbf(c1, c1); rbf(c1+1, c1+1)
    pk('mul', vX, vX, c1); rbf(vX, vX); rbf(vX+1, vX+1)
    A(f's_waitcnt vmcnt({1 if p.cwhen == 0 else 0})')
    stamp(4)
    pk('add', sa, sa, sa+2); pk('add', sa+4, sa+4, sa+6); pk('add', sa, sa, sa+4)
    rbf(sa, sa); rbf(sa+1, sa+1)
    pk('add', vX, vX, sa)
    A(f'v_cvt_pk_bf16_f32 v{vOwn}, v{vX}, v{vX+1}')
    for t in range(8):
        movdpp(vA0+t, vOwn, f'row_newbcast:{2*t}'); movdpp(vA1+t, vOwn, f'row_newbcast:{2*t+1}')
    mv_dots(m)
    fold(vAc, 16, 32); fold(vAc, 8, 16)
    if 'W' not in p.skip: A(f'buffer_store_dwordx4 {V(vAc,4)}, v1, {S(SWS)}, s61 offen sc1')
    stamp(5)
    A('v_lshlrev_b32 v1, 4, v0')
    A('v_and_b32 v2, 31, v0'); A('v_lshlrev_b32 v2, 3, v2'); A('v_lshl_add_u32 v2, v13, 2, v2')
    A('s_waitcnt vmcnt(0)')
    if 'P' not in p.skip: poll([f'buffer_load_dwordx4 {V(vX+4*i,4)}, v1, {S(SWS)}, s60 offen offset:{1024*i} sc1' for i in range(4)],
         range(vX, vX+16), 8, sleep=1)
    for a, b in ((0, 4), (8, 12), (0, 8)):
        pk('add', vX+a, vX+a, vX+b); pk('add', vX+a+2, vX+a+2, vX+b+2)
    fold(vX, 4, 32)
    A(f'v_cvt_pk_bf16_f32 v3, v{vX}, v{vX+1}')
    A(f'ds_write_b32 v2, v3 offset:{L_Q}')
    A('s_waitcnt lgkmcnt(0)')
    stamp(6)
    A('L_bar2:')
    A('s_barrier')
    A('v_and_b32 v10, 3, v0'); A('v_lshlrev_b32 v10, 2, v10')
    A('s_cmp_eq_u32 s3, 5'); A('s_cbranch_scc1 L_bgA')
    A('s_cmp_eq_u32 s3, 4'); A('s_cbranch_scc1 L_ctl')
    A('s_cmp_eq_u32 s3, 7'); A('s_cbranch_scc1 L_stage')
    if p.cwhen == 2: lateclear()
    if p.cwhen:
        A('v_mov_b32 v15, 0'); A('s_waitcnt vmcnt(0)'); marked()
    waitprog(XP + 4*XP + 8, 'min')
    srd(A, SW, 12, 4096*512*2)
    A('v_lshrrev_b32 v3, 3, v0'); A('v_lshlrev_b32 v1, 13, v3'); A('v_and_b32 v2, 7, v0'); A('v_lshl_add_u32 v1, v2, 4, v1')
    A(f's_lshl_b32 s60, s{sH}, 17'); A(f's_lshl_b32 s61, s{sJ}, 7'); A('s_add_u32 s60, s60, s61')
    for n in range(16 if 'o' not in p.skip else 0):
        A(f's_add_u32 s61, s60, {(n>>3)*65536 + (n&4)*1024}')
        A(f'buffer_load_dwordx4 {V(vX+4*n,4)}, v1, {S(SW)}, s61 offen offset:{(n&3)*1024} {wf}')
        A('s_waitcnt vmcnt(2)')
    A('v_lshlrev_b32 v3, 6, v3'); A('v_and_b32 v4, 3, v0'); A('v_lshl_add_u32 v3, v4, 4, v3'); A('v_bfe_u32 v4, v0, 2, 1'); A('v_lshl_add_u32 v3, v4, 13, v3')
    A('s_waitcnt vmcnt(0)')
    for hf in range(2):
        for t in range(4):
            for j in range(4):
                a_, b_ = vX + 32*hf + 8*t + j, vX + 32*hf + 8*t + 4 + j
                d = 192 + 32*hf + 8*t + 2*j
                A(f'v_perm_b32 v{d}, v{b_}, v{a_}, s{PLO}'); A(f'v_perm_b32 v{d+1}, v{b_}, v{a_}, s{PHI}')
        for q in range(8): A(f'ds_write_b128 v3, {V(192+32*hf+4*q,4)} offset:{L_X + 1024*q + 512*hf}')
    setflag(0)
    A('s_branch L_wo')
    A('L_bgA:')
    A(f's_cmp_lt_u32 s{sFB}, 224'); A('s_cbranch_scc1 L_wo')
    A(f's_sub_u32 s62, s{sFB}, {224 - 16}'); A('s_mov_b32 s63, 0')
    zero(vAc, 16)
    A('L_bgA_loop:')
    if 'b' not in p.skip:
        A('s_call_b64 s[42:43], L_modload')
        modcalc(0, False)
    A('s_add_u32 s63, s63, 1'); A('s_cmp_lt_u32 s63, 4'); A('s_cbranch_scc1 L_bgA_loop')
    fold(vAc, 16, 32); fold(vAc, 8, 16); rors(vAc, 4, (8,))
    A('s_lshr_b32 s61, s62, 3'); A('s_cmp_eq_u32 s61, 4'); A('s_cselect_b32 s63, 1.0, 0')
    for e in range(4): rbf(vAc+e, vAc+e)
    for e in range(4): A(f'v_add_f32 v{vAc+e}, s63, v{vAc+e}')
    for e in range(4): rbf(vAc+e, vAc+e)
    waitmarks()
    A('v_and_b32 v1, 7, v0'); A('v_lshlrev_b32 v1, 5, v1'); A('v_lshl_add_u32 v1, v12, 4, v1'); A('v_lshl_add_u32 v1, v13, 13, v1')
    A('s_lshl_b32 s60, s62, 8'); A(f's_add_u32 s60, s60, {MODB - 4096}')
    setexec(0x00ff00ff00ff00ff)
    A(f'buffer_store_dwordx4 {V(vAc,4)}, v1, {S(SWS)}, s60 offen sc1')
    A('s_mov_b64 exec, -1')
    A('s_waitcnt vmcnt(0)')
    A('s_branch L_wo')
    A('L_ctl:')
    if p.cwhen: waitprog(4*(XP + 2) + 16*(p.t0 - 2), 'add')
    waitmarks()
    setflag(2)
    if p.ctl:
        K = (p.tl - p.t0)//p.Pd + 1
        assert K <= 18
        w = [sum(map(int, x))/8 for x in levels]
        cu = [max(1, round(256*(0.8 if x > w[mid] else 0.7)*abs(x - w[mid])/x)) for x in w]
        gain = [p.gam*64//c for c in cu]
        P0 = 4*(XP + 2); C0 = P0 + 16*p.t0; END = P0 + 16*TRIPS - p.endq; NMAX = p.Pd - p.lead - (p.dly + 15)//16; NOLD = p.Pd - p.lead
        sTk, sPs, sP_, sBase, sThr, sC, sLt, sPrev, sU, sN = range(90, 100) if not p.stamps else range(4, 14)
        def waitp(lim):
            L = A.label('prog'); D = L + '_d'
            A('s_mov_b32 s68, 0')
            A(f'{L}:')
            A('s_call_b64 s[42:43], L_serve')
            A(f's_cmp_ge_u32 s64, {lim}'); A(f's_cbranch_scc1 {D}')
            A(f's_sleep {p.psleep}')
            bail(L)
            A(f'{D}:')
        def tickpoll(name, reg, seen):
            A('s_mov_b32 s68, 0')
            if p.pipe: A(f'buffer_load_dword v8, v15, {S(SWS)}, s{reg} offen sc1')
            A(f'{name}:')
            for r in ((9, 8) if p.pipe else (9,)):
                A(f'buffer_load_dword v{r}, v15, {S(SWS)}, s{reg} offen sc1')
                A(f's_waitcnt vmcnt({int(p.pipe)})')
                A(f'v_cmp_eq_u32 vcc, -1, v{17-r if p.pipe else r}'); A(f's_cbranch_vccz {seen}')
                A('s_call_b64 s[42:43], L_serve')
                if p.tsleep: A(f's_sleep {p.tsleep}')
            A(f's_cmp_ge_u32 s64, {END}'); A('s_cbranch_scc1 L_ctl_done')
            bail(name)
        A('v_lshlrev_b32 v2, 7, v0'); A('v_lshlrev_b32 v3, 4, v0'); A('v_mov_b32 v15, 0')
        A(f's_mov_b32 s{sTk}, {TICK}'); A(f's_mov_b32 s{sPs}, {PS}'); A(f's_mov_b32 s{sBase}, {mid}')
        A(f's_mov_b32 s{sC}, {C0}'); A(f's_mov_b32 s{sThr}, {P0}'); A(f's_mov_b32 s{sPrev}, 0'); A(f's_mov_b32 s{sU}, 0')
        A('s_getreg_b32 s60, hwreg(HW_REG_XCC_ID, 0, 3)'); A('s_lshl_b32 s60, s60, 12'); A(f's_add_u32 s{sLt}, s60, {LT}')
        A('L_tick:')
        A('s_cmp_eq_u32 s2, 0'); A(f's_cselect_b32 s{sThr}, s{sC}, s{sThr}')
        waitp(f's{sThr}')
        for i in range(4): A(f'v_mov_b32 v{4+i}, 0')
        A('s_cmp_lg_u32 s2, 0'); A('s_cbranch_scc1 L_tk_poll')
        A('s_mov_b64 exec, 0xff')
        A(f'buffer_store_dwordx4 v[4:7], v3, {S(SWS)}, s{sTk} offen sc1')
        A('s_mov_b64 exec, -1')
        A('L_tk_poll:')
        A(f's_cmp_lg_u32 s{sIdx}, 1'); A('s_cbranch_scc1 L_tk_local')
        tickpoll('L_tk_far', sTk, 'L_tk_pass')
        A('L_tk_pass:')
        A('s_mov_b64 exec, 0xff')
        A(f'buffer_store_dwordx4 v[4:7], v3, {S(SWS)}, s{sLt} offen')
        A('s_mov_b64 exec, -1')
        A('s_waitcnt vmcnt(0)')
        A('L_tk_local:')
        tickpoll('L_tk_again', sLt, 'L_tk_seen')
        A('L_tk_seen:')
        if p.gutick: setflag(3)
        A('s_call_b64 s[42:43], L_serve')
        A(f's_mov_b32 s{sP_}, s64')
        A(f's_and_b32 s60, s{sIdx}, 15'); A('s_cmp_lg_u32 s60, 8'); A('s_cbranch_scc1 L_tk_nopub')
        A(f's_lshr_b32 s60, s{sIdx}, 4'); A('s_lshl_b32 s60, s60, 3'); A(f's_add_u32 s60, s60, s{sX}'); A('s_lshl_b32 s60, s60, 7'); A(f's_add_u32 s60, s60, s{sPs}')
        for i in range(4): A(f'v_mov_b32 v{4+i}, s64')
        A('s_mov_b64 exec, 0xff')
        A(f'buffer_store_dwordx4 v[4:7], v3, {S(SWS)}, s60 offen sc1')
        A('s_mov_b64 exec, -1')
        A('L_tk_nopub:')
        if p.fresh != 1:
            if p.fresh == 2: A(f's_cmp_eq_u32 s{sTk}, {TICK + 128*(K-1)}'); A('s_cbranch_scc1 L_tk_fresh')
            A('s_waitcnt vmcnt(0)')
            A(f'v_mov_b32 v8, s{sPrev}'); A(f'v_mov_b32 v9, s{sPrev}'); A(f's_mov_b32 s{sN}, {NOLD}')
            A('s_mov_b64 exec, 0xffff')
            A(f's_cmp_eq_u32 s{sPrev}, 0'); A('s_cbranch_scc1 L_tk_calc')
            A(f's_sub_u32 s60, s{sPs}, 2048')
            A(f'buffer_load_dword v9, v2, {S(SWS)}, s60 offen sc1')
            A('s_branch L_tk_calc')
        A('L_tk_fresh:')
        if p.fresh:
            A(f's_add_u32 s67, s{sP_}, {p.dly}'); A(f's_min_u32 s67, s67, {END}')
            waitp('s67')
            A('s_waitcnt vmcnt(0)')
            A('s_mov_b64 exec, 0xffff')
            A(f'buffer_load_dword v9, v2, {S(SWS)}, s{sPs} offen sc1')
            A(f'v_mov_b32 v8, s{sP_}'); A(f's_mov_b32 s{sU}, 0'); A(f's_mov_b32 s{sN}, {NMAX}')
        A('L_tk_calc:')
        A(f's_mov_b32 s{sPrev}, s{sP_}')
        A(f's_add_u32 s{sThr}, s{sP_}, {16*(p.Pd - p.lead)}'); A(f's_min_u32 s{sThr}, s{sThr}, {END}')
        A(f's_add_u32 s{sTk}, s{sTk}, 128'); A(f's_add_u32 s{sLt}, s{sLt}, 128'); A(f's_add_u32 s{sPs}, s{sPs}, 2048'); A(f's_add_u32 s{sC}, s{sC}, {16*p.Pd}')
        A('s_waitcnt vmcnt(0)')
        A('v_cmp_eq_u32 vcc, -1, v9'); A('v_cndmask_b32 v9, v9, v8, vcc'); A('v_sub_u32 v9, v9, v8')
        for r in (8, 4, 2, 1): dpp('v_add_u32', 9, 9, 9, f'row_ror:{r}')
        A('v_readfirstlane_b32 s60, v9')
        A('s_mov_b64 exec, -1')
        if p.trace:
            A(f's_sub_u32 s61, s{sTk}, {TICK}'); A('s_lshr_b32 s61, s61, 4'); A('s_lshl_b32 s62, s2, 8'); A('s_add_u32 s61, s61, s62'); A(f's_add_u32 s61, s61, {STMP + 0x80000}')
            A('v_mov_b32 v4, s60'); A(f'v_mov_b32 v5, 0'); A('s_mov_b64 exec, 1')
            A(f'buffer_store_dwordx2 v[4:5], v15, {S(SWS)}, s61 offen sc1'); A('s_mov_b64 exec, -1')
        A(f's_sub_u32 s60, s60, s{sU}')
        A('s_abs_i32 s61, s60')
        A('s_cmp_gt_i32 s60, 0')
        A(f's_cselect_b32 s66, {cu[mid+1]}, {-cu[mid-1]}')
        A(f's_cselect_b32 s63, {gain[mid+1]}, {gain[mid-1]}'); A(f's_cselect_b32 s65, {mid+1}, {mid-1}')
        A('s_mul_i32 s62, s61, s63'); A('s_add_u32 s62, s62, 512'); A('s_lshr_b32 s62, s62, 10')
        if len(levels) == 5:
            A(f's_cmp_le_u32 s62, s{sN}'); A('s_cbranch_scc1 L_tk_weak')
            A('s_cmp_gt_i32 s60, 0')
            A(f's_cselect_b32 s63, {gain[4]}, {gain[0]}'); A('s_cselect_b32 s65, 4, 0'); A(f's_cselect_b32 s66, {cu[4]}, {-cu[0]}')
            A('s_mul_i32 s62, s61, s63'); A('s_add_u32 s62, s62, 512'); A('s_lshr_b32 s62, s62, 10')
            A('L_tk_weak:')
        A(f's_min_u32 s62, s62, s{sN}'); A(f's_mul_i32 s{sU}, s62, s66'); A('s_lshl_b32 s62, s62, 4'); A('s_cbranch_scc0 L_tk_next')
        A('s_add_u32 s67, s62, s64'); A(f's_min_u32 s67, s67, {END}')
        A(f's_mov_b32 s{sBase}, s65')
        waitp('s67')
        A(f's_mov_b32 s{sBase}, {mid}')
        A('L_tk_next:')
        A(f's_cmp_lt_u32 s{sTk}, {TICK + 128*K}'); A('s_cbranch_scc1 L_tick')
        if p.Tb:
            waitp(P0 + 16*(TRIPS - p.Tb) - 8); A(f's_mov_b32 s{sBase}, {p.lb}')
        waitp(END)
        A('L_ctl_done:')
        if p.gutick: setflag(3)
        A('s_waitcnt vmcnt(0)')
        A('s_branch L_wo')
        A('L_serve:')
        A(f'ds_read_b32 v16, v10 offset:{L_PR}'); A(f'v_mov_b32 v17, s{sBase}'); A('s_waitcnt lgkmcnt(0)')
        A('v_lshrrev_b32 v16, 12, v16')
        dpp('v_add_u32', 14, 16, 16, 'quad_perm:[1,0,3,2]'); dpp('v_add_u32', 14, 14, 14, 'quad_perm:[2,3,0,1]')
        if p.wthr:
            A('v_lshlrev_b32 v16, 2, v16'); A('v_sub_u32 v16, v16, v14')
            A(f'v_cmp_ge_i32 vcc, {-p.wthr}, v16'); A('v_addc_co_u32 v17, vcc, 0, v17, vcc')
            A(f'v_cmp_le_i32 vcc, {p.wthr}, v16'); A('v_subb_co_u32 v17, vcc, v17, v15, vcc')
            A(f'v_med3_i32 v17, v17, 0, {len(levels) - 1}')
        A('v_readfirstlane_b32 s64, v14')
        A(f'ds_write_b32 v10, v17 offset:{L_LV}')
        A('s_setpc_b64 s[42:43]')
    A('s_branch L_wo')
    A('L_stage:')
    A(f's_cmp_ge_u32 s{sFB}, 224'); A('s_cbranch_scc1 L_stage_done')
    if p.gutick and p.ctl:
        A('s_mov_b32 s68, 0'); A('v_mov_b32 v15, 0')
        A('L_gu_wait:')
        A(f'ds_read_b32 v14, v15 offset:{L_FL + 12}'); A('s_waitcnt lgkmcnt(0)')
        A('v_cmp_eq_u32 vcc, 0, v14'); A('s_cbranch_vccz L_gu_go')
        A('s_sleep 2')
        bail('L_gu_wait')
        A('L_gu_go:')
    guloads()
    A('s_waitcnt vmcnt(0)')
    vD = 192
    for t in range(4):
        for j in range(8):
            a, b = vX + 16*t + j, vX + 16*t + 8 + j
            A(f'v_perm_b32 v{vD+16*t+2*j}, v{b}, v{a}, s{PLO}'); A(f'v_perm_b32 v{vD+16*t+2*j+1}, v{b}, v{a}, s{PHI}')
    srd(A, SW, 20, 1792*512*2)
    A(f's_lshl_b32 s60, s{sFB}, 13'); A('s_add_u32 s61, s60, 4096'); A('v_lshlrev_b32 v1, 3, v0')
    for r in range(8 if 'd' not in p.skip else 0):
        for u in range(2):
            A(f'buffer_load_dwordx2 {V(vX+4*r+2*u,2)}, v1, {S(SW)}, s{60+(r>>2)} offen offset:{(r&3)*1024+u*512} {wf}')
    A('v_lshlrev_b32 v2, 4, v0')
    for q in range(16): A(f'ds_write_b128 v2, {V(vD+4*q,4)} offset:{L_GU+1024*q}')
    A('s_waitcnt vmcnt(0) lgkmcnt(0)')
    for t in range(4):
        for j in range(4):
            a, b = vX + 8*t + j, vX + 8*t + 4 + j
            A(f'v_perm_b32 v{vD+8*t+2*j}, v{b}, v{a}, s{PLO}'); A(f'v_perm_b32 v{vD+8*t+2*j+1}, v{b}, v{a}, s{PHI}')
    for q in range(8): A(f'ds_write_b128 v2, {V(vD+4*q,4)} offset:{L_WD+1024*q}')
    A('s_waitcnt lgkmcnt(0)')
    A('L_stage_done:')
    setflag(1)
    A('L_wo:')
    A('s_and_b32 s64, s3, 1'); A('s_bfe_u32 s65, s3, 0x10001')
    A('v_and_b32 v2, 3, v0')
    A('s_lshl_b32 s60, s64, 13'); A('v_lshl_add_u32 v7, v0, 4, s60')
    def woread():
        for q in range(8): A(f'ds_read_b128 {V(vW+4*q,4)}, v7 offset:{L_X + 1024*q}')
    mO = {(t, e): vW + 8*t + e for t in range(4) for e in range(8)}
    vY = vAc
    zero(vY, 8)
    A('v_lshlrev_b32 v1, 5, v2'); A('v_lshl_add_u32 v1, v13, 4, v1'); A('v_lshl_add_u32 v1, v12, 3, v1')
    A('s_lshl_b32 s66, s65, 4'); A(f's_lshl_b32 s61, s{sJ}, 1'); A('s_add_u32 s66, s66, s61'); A('s_add_u32 s66, s66, s64')
    A('s_lshl_b32 s66, s66, 5'); A(f's_add_u32 s66, s66, s{sH}'); A('s_lshl_b32 s66, s66, 7'); A(f's_add_u32 s66, s66, {YB}')
    A('v_lshlrev_b32 v3, 3, v0'); A(f'v_add_u32 v4, s{sJ}, v2'); A('v_and_b32 v4, 3, v4'); A('v_mul_u32_u24 v4, 640, v4')
    A('s_lshl_b32 s67, s65, 5'); A(f's_add_u32 s67, s67, s{sH}'); A('s_mul_i32 s67, s67, 2560'); A(f's_add_u32 s67, s67, {OP}')
    sO = 84 if not p.stamps else 14
    for r in range(4):
        A(f's_add_u32 s60, s{sJ}, {r}'); A('s_and_b32 s60, s60, 3'); A('s_mul_i32 s60, s60, 640'); A(f's_add_u32 s{sO+r}, s60, s67')
    A(f's_cmp_eq_u32 s65, s{sB}'); A(f's_cselect_b32 s{sO+4}, 0x11111111, 0'); A(f's_mov_b32 s{sO+5}, s{sO+4}')
    waitflags()
    woread()
    vGU, vWD, vC1, vSB, vX2 = 128, 192, 224, 232, 240
    A('s_cmp_eq_u32 s3, 4'); A('s_cbranch_scc1 L_bar3')
    A('s_cmp_eq_u32 s3, 7'); A('s_cbranch_scc1 L_preR')
    A(f's_cmp_ge_u32 s{sFB}, 224'); A('s_cbranch_scc1 L_bar3')
    A('s_sub_u32 s63, s3, 5'); A('s_lshl_b32 s60, s63, 13'); A(f's_add_u32 s60, s60, {MODB + 2048}'); A('s_add_u32 s61, s60, 2048')
    A('v_lshlrev_b32 v5, 4, v0')
    A('s_waitcnt lgkmcnt(0)')
    for q in range(12): A(f'ds_read_b128 {V(vGU+4*q,4)}, v5 offset:{L_GU+1024*q}')
    A('s_waitcnt lgkmcnt(0)')
    for q in range(12, 24): A(f'ds_read_b128 {V(vGU+4*q,4)}, v5 offset:{L_GU+1024*q}')
    poll([f'buffer_load_dwordx4 {V(vC1+4*i,4)}, v5, {S(SWS)}, s61 offen offset:{1024*i} sc1' for i in range(2)] +
         [f'buffer_load_dwordx4 {V(vSB+4*i,4)}, v5, {S(SWS)}, s60 offen offset:{1024*i} sc1' for i in range(2)],
         range(vC1, vC1+16), 8, sleep=20)
    A('s_branch L_bar3')
    A('L_preR:')
    A(f's_cmp_ge_u32 s{sR}, 32'); A('s_cbranch_scc1 L_bar3')
    srd(A, SW2, 4, 2048)
    A('v_and_b32 v5, 7, v0'); A('v_lshlrev_b32 v5, 2, v5'); A('v_lshl_add_u32 v5, v13, 1, v5'); A('v_add_u32 v5, v5, v12')
    A('v_lshlrev_b32 v6, 1, v5'); A('v_lshlrev_b32 v5, 2, v5')
    A(f's_lshl_b32 s60, s{sR}, 6')
    A(f'buffer_load_ushort v34, v6, {S(SW2)}, s60 offen')
    A(f's_lshr_b32 s60, s{sR}, 4'); A('s_lshl_b32 s60, s60, 13'); A(f's_and_b32 s61, s{sR}, 15'); A('s_lshl_b32 s61, s61, 7')
    A('s_add_u32 s60, s60, s61'); A(f's_add_u32 s60, s60, {MODB}'); A('s_add_u32 s61, s60, 6144')
    poll([f'buffer_load_dword v32, v5, {S(SWS)}, s60 offen sc1', f'buffer_load_dword v33, v5, {S(SWS)}, s61 offen sc1'], (32, 33), 8, sleep=20)
    A('v_lshlrev_b32 v34, 16, v34')
    A('L_bar3:')
    A('v_mov_b32 v15, 0'); A('s_mov_b32 s68, 0')
    A('s_waitcnt lgkmcnt(0)')
    stamp(7)
    A('s_barrier')
    stamp(8)
    if 'E' in p.skip: A('s_branch L_fin')
    def gather(tag):
        A(f's_cmp_lg_u32 s{sO+4}, 0'); A(f's_cbranch_scc1 L_g0{tag}')
        A(f'buffer_load_dwordx2 v[16:17], v3, {S(SWS)}, s{sO} offen sc1')
        A(f'L_g0{tag}:')
        for r in range(1, 4): A(f'buffer_load_dwordx2 {V(16+2*r,2)}, v3, {S(SWS)}, s{sO+r} offen sc1')
        A('s_mov_b64 s[60:61], exec'); A(f's_andn2_b64 exec, exec, s[{sO+4}:{sO+5}]'); A(f's_cbranch_execz L_g1{tag}')
        A(f'buffer_load_dwordx2 v[24:25], v4, {S(SWS)}, s67 offen offset:512 sc1')
        A(f'L_g1{tag}:')
        A('s_mov_b64 exec, s[60:61]')
    A(f's_cmp_eq_u32 s{sO+4}, 0'); A('s_cbranch_scc1 L_h0_first')
    A(f'ds_read_b128 v[72:75], v15 offset:{L_M}'); A(f'ds_read_b128 v[76:79], v15 offset:{L_L}')
    for w in range(4): A(f'ds_read_b64 {V(80+2*w,2)}, v3 offset:{L_O+512*w}')
    if p.h0early: gather('a')
    A('s_waitcnt lgkmcnt(4)')
    A('v_min3_f32 v8, v72, v73, v74'); A('v_min_f32 v8, v8, v75')
    for w in range(4): A(f'v_sub_f32 v{72+w}, v8, v{72+w}')
    for w in range(4): A(f'v_exp_f32 v{72+w}, v{72+w}')
    A('s_waitcnt lgkmcnt(0)')
    A('v_mul_f32 v16, v72, v80'); A('v_mul_f32 v17, v72, v81'); A('v_mul_f32 v9, v72, v76')
    for w in range(1, 4):
        A(f'v_fmac_f32 v16, v{72+w}, v{80+2*w}'); A(f'v_fmac_f32 v17, v{72+w}, v{81+2*w}'); A(f'v_fmac_f32 v9, v{72+w}, v{76+w}')
    A('s_cmp_lg_u32 s64, 0'); A('s_cbranch_scc1 L_h0_nopub')
    A(f'buffer_store_dwordx2 v[16:17], v3, {S(SWS)}, s{sO} offen sc1')
    A('s_mov_b64 exec, 1')
    A(f'buffer_store_dwordx2 v[8:9], v15, {S(SWS)}, s{sO} offen offset:512 sc1')
    stamp(9)
    A('s_mov_b64 exec, -1')
    if p.h0early: A('s_waitcnt vmcnt(2)'); A('s_branch L_h0_own')
    A('L_h0_nopub:')
    if p.h0early: A('s_waitcnt vmcnt(0)')
    A('L_h0_own:')
    A(f's_mov_b64 exec, s[{sO+4}:{sO+5}]'); A('v_mov_b32 v24, v8'); A('v_mov_b32 v25, v9'); A('s_mov_b64 exec, -1')
    if p.h0early: A('s_branch L_h0_check')
    if p.ackb: A('s_waitcnt vmcnt(0)')
    A('L_h0_first:')
    if p.ackb: A('s_barrier')
    A('L_h0_again:')
    gather('b')
    A('s_waitcnt vmcnt(0)')
    A('L_h0_check:')
    maxall(26, range(16, 26))
    A('v_cmpx_eq_u32 vcc, -1, v26'); A('s_cbranch_execz L_h0_done')
    if p.h0sleep: A(f's_sleep {p.h0sleep}')
    bail('L_h0_again')
    A('L_h0_done:')
    A('s_mov_b64 exec, -1')
    stamp(10)
    dpp('v_min_f32', 26, 24, 24, 'quad_perm:[1,0,3,2]'); dpp('v_min_f32', 26, 26, 26, 'quad_perm:[2,3,0,1]')
    A('v_sub_f32 v24, v26, v24'); A('v_exp_f32 v24, v24'); A('v_mul_f32 v25, v24, v25')
    dpp('v_add_f32', 25, 25, 25, 'quad_perm:[1,0,3,2]'); dpp('v_add_f32', 25, 25, 25, 'quad_perm:[2,3,0,1]')
    A('v_rcp_f32 v25, v25'); A('v_mul_f32 v24, v24, v25')
    dpp('v_mul_f32', 16, 24, 16, 'quad_perm:[0,0,0,0]'); dpp('v_mul_f32', 17, 24, 17, 'quad_perm:[0,0,0,0]')
    for i in range(1, 4):
        dpp('v_fmac_f32', 16, 24, 16+2*i, f'quad_perm:[{i},{i},{i},{i}]'); dpp('v_fmac_f32', 17, 24, 17+2*i, f'quad_perm:[{i},{i},{i},{i}]')
    A('v_cvt_pk_bf16_f32 v16, v16, v17')
    for t in range(4): movdpp(20+t, 16, f'quad_perm:[{t},{t},{t},{t}]')
    for t in range(4):
        for e in range(8): A(f'v_dot2c_f32_bf16 v{vY+e}, v{20+t}, v{mO[(t,e)]}')
    fold(vY, 8, 32); fold(vY, 4, 16); rors(vY, 2, (8, 4))
    setexec(0x000f000f000f000f)
    A(f'buffer_store_dwordx2 {V(vY,2)}, v1, {S(SWS)}, s66 offen sc1')
    stamp(11)
    A('s_mov_b64 exec, -1')
    if 'Y' in p.skip: A('s_branch L_fin')
    A('s_cmp_eq_u32 s3, 7'); A('s_cbranch_scc1 L_taskR')
    A('s_cmp_eq_u32 s3, 4'); A('s_cbranch_scc1 L_toG')
    A(f's_cmp_ge_u32 s{sFB}, 224'); A('s_cbranch_scc1 L_fin')
    zero(vAc, 16); zero(16, 8)
    A('v_lshrrev_b32 v1, 3, v0'); A('v_mul_u32_u24 v1, 28672, v1'); A('v_and_b32 v2, 7, v0'); A('v_lshl_add_u32 v1, v2, 4, v1')
    A(f's_mul_i32 s66, s63, {16*28672}'); A(f's_lshl_b32 s61, s{sFB}, 7'); A('s_add_u32 s66, s66, s61'); A(f's_add_u32 s66, s66, {Y2}')
    A(f's_add_u32 s67, s66, {8*28672}')
    A('s_lshl_b32 s60, s63, 11'); A(f's_add_u32 s60, s60, {X2}')
    poll([f'buffer_load_dwordx4 {V(vX2+4*i,4)}, v5, {S(SWS)}, s60 offen offset:{1024*i} sc1' for i in range(2)],
         range(vX2, vX2+8), 8, sleep=p.xsleep)
    stamp(12)
    A(f'v_readfirstlane_b32 s60, v{vX2}')
    w = 24
    for i in range(0, 8, 2): A(f'v_pk_add_f32 {V(w+i,2)}, {V(vX2+i,2)}, s[60:61] op_sel_hi:[1,0] neg_lo:[0,1] neg_hi:[0,1]')
    pk('mul', 8, w, w); pk('add', 6, w, w+2)
    A(f'v_pk_fma_f32 v[8:9], {V(w+2,2)}, {V(w+2,2)}, v[8:9]'); pk('add', 6, 6, w+4)
    A(f'v_pk_fma_f32 v[8:9], {V(w+4,2)}, {V(w+4,2)}, v[8:9]'); pk('add', 6, 6, w+6)
    A(f'v_pk_fma_f32 v[8:9], {V(w+6,2)}, {V(w+6,2)}, v[8:9]')
    A('v_add_f32 v6, v6, v7'); A('v_add_f32 v7, v8, v9')
    rors(6, 2, (8, 4, 2, 1))
    for r in (6, 7): dpp('v_add_f32', r, r, r, 'row_bcast:15', '0xa')
    for r in (6, 7): dpp('v_add_f32', r, r, r, 'row_bcast:31', '0xc')
    A('v_readlane_b32 s61, v6, 63'); A('v_readlane_b32 s62, v7, 63')
    A(f'v_mov_b32 v8, {f32(1.0/512)}')
    A('v_mul_f32 v6, s61, v8'); A('v_mul_f32 v8, s62, v8')
    A('v_fma_f32 v8, -v6, v6, v8'); A('v_add_f32 v6, s60, v6'); A('v_max_f32 v8, 0, v8'); A('v_sub_f32 v6, 0, v6')
    ln_tail(6, 8)
    for i in range(0, 8, 2): pk('add', vX2+i, vX2+i, 6, True)
    for i in range(8): rbf(vX2+i, vX2+i)
    for i in range(0, 8, 2): pk('mul', vX2+i, vX2+i, 8, True)
    for i in range(8): rbf(vX2+i, vX2+i)
    for i in range(0, 8, 2): pk('mul', vX2+i, vX2+i, vC1+i)
    for i in range(8): rbf(vX2+i, vX2+i)
    for i in range(0, 8, 2): pk('add', vX2+i, vX2+i, vSB+i)
    for i in range(4): A(f'v_cvt_pk_bf16_f32 v{w+i}, v{vX2+2*i}, v{vX2+2*i+1}')
    for t in range(4):
        for c in range(16): A(f'v_dot2c_f32_bf16 v{vAc+c}, v{w+t}, v{vGU+16*t+c}')
    fold(vAc, 16, 32); fold(vAc, 8, 16); rors(vAc, 4, (8, 4, 2, 1))
    for e in range(4): rbf(vAc+e, vAc+e)
    for e in range(4): A(f'v_mov_b32 v{vAc+4+e}, v{vAc+e}')
    for e in range(4): A(f'v_permlane32_swap_b32 v{vAc+e}, v{vAc+4+e}')
    pk('mul', vAc, vAc, vAc+4); pk('mul', vAc+2, vAc+2, vAc+6)
    A(f'v_cvt_pk_bf16_f32 v6, v{vAc}, v{vAc+1}'); A(f'v_cvt_pk_bf16_f32 v7, v{vAc+2}, v{vAc+3}')
    A('v_readlane_b32 s60, v6, 0'); A('v_readlane_b32 s61, v7, 0'); A('v_readlane_b32 s62, v6, 16'); A('v_readlane_b32 s63, v7, 16')
    for t in range(4):
        for c in range(8): A(f'v_dot2c_f32_bf16 v{16+c}, s{60+t}, v{vWD+8*t+c}')
    A(f'buffer_store_dwordx4 v[16:19], v1, {S(SWS)}, s66 offen sc1')
    A(f'buffer_store_dwordx4 v[20:23], v1, {S(SWS)}, s67 offen sc1')
    stamp(13)
    A(f's_cmp_ge_u32 s{sR}, 32'); A('s_cbranch_scc1 L_fin')
    A('s_waitcnt vmcnt(0)')
    A('s_branch L_taskG')
    A('L_taskR:')
    A(f's_cmp_ge_u32 s{sR}, 32'); A('s_cbranch_scc1 L_fin')
    A('v_lshlrev_b32 v1, 4, v0'); A(f's_lshl_b32 s60, s{sR}, 12'); A(f's_add_u32 s60, s60, {YB}')
    A(f's_lshl_b32 s61, s{sR}, 7'); A(f's_add_u32 s61, s61, {X2}')
    poll([f'buffer_load_dwordx4 {V(16+4*i,4)}, v1, {S(SWS)}, s60 offen offset:{1024*i} sc1' for i in range(4)], range(16, 32), 8)
    stamp(12)
    for a, b in ((16, 20), (24, 28), (16, 24)):
        pk('add', a, a, b); pk('add', a+2, a+2, b+2)
    fold(16, 4, 32); fold(16, 2, 16); rors(16, 1, (8,))
    rbf(16, 16); A('v_mul_f32 v16, v32, v16'); rbf(16, 16); A('v_add_f32 v16, v34, v16'); rbf(34, 16)
    setexec(0x00ff00ff00ff00ff)
    A(f'buffer_store_dword v34, v5, {S(SWS)}, s61 offen sc1')
    stamp(13)
    A('s_mov_b64 exec, -1')
    A('L_toG:')
    A(f's_cmp_ge_u32 s{sR}, 32'); A('s_cbranch_scc1 L_fin')
    A('L_taskG:')
    srd(A, SW2, 26, 2048)
    A('v_lshlrev_b32 v1, 4, v0')
    A(f's_mul_i32 s60, s{sR}, 28672'); A('s_sub_u32 s61, s3, 4'); A('s_mul_i32 s62, s61, 7168'); A('s_add_u32 s60, s60, s62')
    A(f's_add_u32 s60, s60, {Y2}'); A('s_add_u32 s62, s60, 4096')
    A('v_and_b32 v2, 7, v0'); A('v_lshlrev_b32 v2, 2, v2'); A('v_lshl_add_u32 v2, v13, 1, v2'); A('v_add_lshl_u32 v2, v2, v12, 2')
    A('s_lshl_b32 s61, s61, 7'); A('v_add_u32 v3, s61, v2')
    A('s_barrier')
    poll([f'buffer_load_dwordx4 {V(vX+4*i,4)}, v1, {S(SWS)}, s{60 if i < 4 else 62} offen offset:{1024*(i&3)} sc1' for i in range(7)],
         range(vX, vX+28), 8)
    if p.stamps: A('s_memrealtime s[74:75]')
    for a, b in ((0, 4), (8, 12), (16, 20), (0, 8), (16, 24), (0, 16)):
        pk('add', vX+a, vX+a, vX+b); pk('add', vX+a+2, vX+a+2, vX+b+2)
    fold(vX, 4, 32); fold(vX, 2, 16); rors(vX, 1, (8,))
    A(f'ds_write_b32 v3, v{vX} offset:{L_G}')
    A('s_waitcnt lgkmcnt(0)')
    A('s_barrier')
    A('s_cmp_lg_u32 s3, 7'); A('s_cbranch_scc1 L_fin')
    for w in range(4): A(f'ds_read_b32 v{16+w}, v2 offset:{L_G+128*w}')
    A(f's_lshl_b32 s60, s{sR}, 6')
    A('s_waitcnt lgkmcnt(0)')
    pk('add', 16, 16, 18); A('v_add_f32 v16, v16, v17')
    rbf(16, 16); A('v_mul_f32 v16, v33, v16'); rbf(16, 16); A('v_add_f32 v16, v34, v16')
    A('v_cvt_pk_bf16_f32 v16, v16, v16')
    setexec(0x00ff00ff00ff00ff)
    A(f'buffer_store_short v16, v6, {S(SW2)}, s60 offen sc1')
    stamp(14)
    A('L_fin:')
    if p.hold:
        A('s_cmp_lg_u32 s3, 7'); A('s_cbranch_scc1 L_fin2')
        A('L_hold:'); A('s_memrealtime s[60:61]'); A('s_waitcnt lgkmcnt(0)'); A('s_sub_u32 s60, s60, s100'); A('s_sleep 1')
        A(f's_cmp_lt_u32 s60, {p.hold*100}'); A('s_cbranch_scc1 L_hold')
        A('L_fin2:')
    finish()

    A('.section .rodata,"a"'); A('.p2align 6'); A(f'.amdhsa_kernel {NAME}_kernel')
    for l in ['.amdhsa_next_free_vgpr 256', '.amdhsa_next_free_sgpr 102', '.amdhsa_accum_offset 256',
              '.amdhsa_group_segment_fixed_size 0', '.amdhsa_kernarg_size 112', '.amdhsa_user_sgpr_count 2',
              '.amdhsa_user_sgpr_kernarg_segment_ptr 1', '.amdhsa_system_sgpr_workgroup_id_x 1']: A(l)
    A('.end_amdhsa_kernel')
    return '\n'.join(head) + '\n' + A.text()

if __name__ == '__main__':
    p = P()
    out = sys.argv[1]
    for a in sys.argv[2:]:
        k, v = a.split('=')
        cur = getattr(p, k)
        setattr(p, k, (v == '1') if isinstance(cur, bool) else type(cur)(v))
    open(out, 'w').write(gen(p))
```

```python
import sys, struct
from asmlib import Asm

NAME = 'adaLN_cond__mha_block_cached__glu_gated_bilinear__decode'

def f32(x): return '0x%08x' % struct.unpack('<I', struct.pack('<f', x))[0]
LOG2E = 1.4426950408889634
SCALE = 128 ** -0.5

MODP = 0x00000
CLRF = 0x08000
QP   = 0x10000
LATE = 0x50000
OP   = 0x50000
YB   = 0x78000
Y2   = 0x98000
X2   = 0x178000
MODB = 0x179000
TICK = 0x17e000
PS   = 0x17f000
LT   = 0x188000
STMP = 0x200000
WS_BYTES = 0x190000
L_Q = 0; L_O = 256; L_M = 2304; L_L = 2320; L_G = 2560; L_PR = 3072; L_LV = 3088; L_FL = 3104; L_QF = 3120
L_S = 4096
L_X = 20480
L_WO = L_X; L_GU = L_X + 16384

class P:
    N = 6
    Nf = 5
    Nf2 = 6
    nsw = 38
    E = 24
    EL = 16
    lv = '22233456,34444456,45555556,66666666,77777776'
    Wt = 9
    t0 = 7
    Pd = 7
    tl = 112
    lead = 3
    gam = 11
    beta = 3
    wthr = 5
    endq = 24
    tsleep = 1
    psleep = 4
    gosleep = 8
    h0sleep = 2
    xsleep = 2
    gw = 1
    limit = 1 << 17
    stamps = False
    trace = False
    fbase = -1

def srd(A, d, ptr, nbytes, add=None):
    if add is None:
        A(f's_mov_b32 s{d}, s{ptr}'); A(f's_mov_b32 s{d+1}, s{ptr+1}')
    else:
        A(f's_add_u32 s{d}, s{ptr}, {add}'); A(f's_addc_u32 s{d+1}, s{ptr+1}, 0')
    A(f's_mov_b32 s{d+2}, {nbytes}'); A(f's_mov_b32 s{d+3}, 0x20000')

def S(d): return f's[{d}:{d+3}]'
def V(a, n): return f'v[{a}:{a+n-1}]'

SWS, SDBG, SW, SW2 = 44, 48, 52, 56
PLO, PHI = 69, 70
sX, sIdx, sH, sB, sJ, sP, sFB, sR = 32, 33, 34, 35, 36, 37, 38, 39

INTRO = '''
One launch, 256 workgroups of 8 waves, one per CU.  Workgroup = 8192 keys of one (batch, head).
  waves 0-3 stream K, then V, straight into registers (non-temporal loads, a few KiB in flight per wave);
  waves 4-7 do everything else: modulation, LayerNorm, q, the output projection, the gated MLP.
Scores of all 2048 keys of a wave are kept in LDS, so the softmax subtracts the true maximum of the wave;
partial (max, sum, o) are merged exactly across waves and across the four workgroups of a head.
Hand-offs between workgroups go through d_ws with write-through (sc1) stores and sc1 loads.  Every slot is
first marked "not written" (all ones) in this launch; that marking is ordered before any use by a counter
and a flag in d_debug.  Nothing found in d_ws or d_out on entry is used.
q depends on two small matrix products; K is prefetched into registers and LDS while they are computed.
The number of loads in flight is the only thing the progress exchange (wave 4) changes: it keeps the 256
streams level so that they end together.  It has no influence on any value computed.
'''

def gen(p):
    A = Asm()
    def C(text):
        for l in text.strip('\n').split('\n'): A('; ' + l.strip())
    def stamp(k):
        if p.stamps: A(f's_memrealtime s[{72+2*k}:{73+2*k}]')
    wsb = WS_BYTES if not (p.stamps or p.trace) else 0x300000

    hdr = open('cdna_kernels/' + NAME + '.s.ref').read().split('\n')
    head = []
    for l in hdr:
        if l.startswith('; @launch'):
            head.append(f'; @launch grid=(256,1,1) block=(512,1,1) lds={L_X + 8192*p.EL}')
            break
        head.append(l)
    A('.amdgcn_target "amdgcn-amd-amdhsa--gfx950"')
    A('.text'); A(f'.globl {NAME}_kernel'); A('.p2align 8'); A(f'.type {NAME}_kernel,@function')
    C(INTRO)
    A(f'{NAME}_kernel:')
    A('s_cmp_ge_u32 s2, 256'); A('s_cbranch_scc1 L_exit')
    A('s_load_dwordx16 s[4:19], s[0:1], 0')
    A('s_load_dwordx8 s[20:27], s[0:1], 64')
    A('s_load_dwordx4 s[28:31], s[0:1], 96')
    if p.stamps:
        for k in range(1, 15): A(f's_mov_b32 s{72+2*k}, 0')
    stamp(0)
    C('s3 = wave, s32 = id & 7, s33 = id >> 3, s34 = head, s36 = position in the head (batch s35, split), s37 = key slice')
    A('v_lshrrev_b32 v1, 6, v0'); A('v_and_b32 v0, 63, v0'); A('v_readfirstlane_b32 s3, v1')
    A(f's_and_b32 s{sX}, s2, 7'); A(f's_lshr_b32 s{sIdx}, s2, 3')
    A(f's_lshr_b32 s61, s{sIdx}, 3'); A(f's_lshl_b32 s60, s{sX}, 2'); A(f's_add_u32 s{sH}, s61, s60')
    A(f's_and_b32 s{sJ}, s{sIdx}, 7'); A(f's_lshr_b32 s{sB}, s{sJ}, 2')
    A(f's_and_b32 s60, s{sJ}, 3'); A(f's_lshl_b32 s{sP}, s{sH}, 2'); A(f's_add_u32 s{sP}, s{sP}, s60')
    A(f's_lshl_b32 s60, s{sB}, 7'); A(f's_add_u32 s{sP}, s{sP}, s60')
    A('s_cmp_ge_u32 s3, 4'); A('s_cbranch_scc1 L_helper')

    C('''
    ================================ streaming waves ================================
    one load = 4 keys x 128 dims; lane = (key row = lane >> 4, dims 8*(lane & 15) ..)''')
    vOff, vSa, vP, vLo, vHi, vNM, vL, vT, vU, vG = 1, 2, 3, 4, 5, 7, 8, 9, 10, 11
    vQ, vAcc, vRing, vExt = 12, 16, 24, 56
    N, E, EL, Nf = p.N, p.E, p.EL, p.Nf
    levels = p.lv.split(','); mid = len(levels)//2; TOP = len(levels)
    XP = E + EL; XB = XP//4; KB = 64 - XB; TRIPS = KB + 64
    vST = vExt + 8*E
    assert vST + 6 <= 256 and XP % 4 == 0 and N <= 6 and len(levels) == 5 and XP <= KB
    assert 8 < p.Wt <= 14 and XP % 2 == 0 and TRIPS % 2 == 0
    SC, sVb, sIB, sPr = 44, 48, 62, 67
    A(f's_lshl_b32 s60, s{sP}, 21')
    A('s_lshl_b32 s61, s3, 10'); A('v_lshlrev_b32 v1, 4, v0'); A('v_add_u32 v1, s61, v1')
    A(f's_mul_i32 s63, s3, {2048*EL}'); A(f's_add_u32 s63, s63, {L_X}'); A('s_mov_b32 m0, s63')
    A('s_waitcnt lgkmcnt(0)')
    srd(A, SC, 6, 1 << 21, 's60')
    A(f's_add_u32 s{sVb}, s8, s60'); A(f's_addc_u32 s{sVb+1}, s9, 0')
    C(f'prefetch: {2*EL} K loads into LDS, {2*E} into registers, then the first loads of the ring')
    for n in range(2*XP + N):
        if n >= Nf: A(f's_waitcnt vmcnt({(p.Nf2 if n >= p.nsw else Nf) - 1})')
        if n == 0: stamp(6)
        if n == Nf: stamp(7)
        if n == 12: stamp(8)
        if n == 36: stamp(9)
        if n == 56: stamp(10)
        if n < 2*EL:
            A(f'buffer_load_dwordx4 v{vOff}, {S(SC)}, 0 offen nt lds')
            if n < 2*EL - 1: A('s_add_u32 m0, m0, 0x400')
        else:
            A(f'buffer_load_dwordx4 {V(vExt + 4*(n - 2*EL) if n < 2*XP else vRing + 4*(n - 2*XP), 4)}, v{vOff}, {S(SC)}, 0 offen nt')
        A(f'v_add_u32 v{vOff}, 0x1000, v{vOff}')
        if n == Nf - 1:
            A(f'v_mov_b32 v{vG}, {f32(-1e38)}'); A(f'v_mov_b32 v{vL}, 0')
            for e in range(8): A(f'v_mov_b32 v{vAcc+e}, 0')
            A(f'v_and_b32 v{vT}, 15, v0'); A(f'v_lshlrev_b32 v{vT}, 4, v{vT}')
            A(f'v_and_b32 v{vSa}, 48, v0'); A('s_lshl_b32 s61, s3, 12'); A(f's_add_u32 s61, s61, {L_S + 64*XB}'); A(f'v_add_u32 v{vSa}, s61, v{vSa}')
            A(f'v_lshl_add_u32 v0, v0, 4, s63')
            A(f's_lshl_b32 s61, s3, 2'); A(f'v_mov_b32 v{vU}, s61'); A(f'v_mov_b32 v{vP}, {mid}'); A(f'v_mov_b32 v{vLo}, {(XP + 2) << 12}')
            A(f'ds_write_b32 v{vU}, v{vLo} offset:{L_PR}'); A(f'ds_write_b32 v{vU}, v{vP} offset:{L_LV}')
            A(f'ds_write_b32 v{vU}, v{vL} offset:{L_FL}'); A(f'ds_write_b32 v{vL}, v{vL} offset:{L_QF}')
            A('s_waitcnt lgkmcnt(0)')
            C('barrier 1: the LDS words have their start values')
            A('s_barrier')
    A(f's_mov_b32 s{sPr}, {(XP + 2) << 12}'); A(f's_mov_b32 s{sIB}, {KB-1}'); A('s_mov_b32 s60, 0')
    stamp(1)
    C('wait for q (wave 5)')
    A('s_mov_b32 s68, 0')
    A('L_s_q:')
    A(f'ds_read_b32 v{vP}, v{vL} offset:{L_QF}'); A(f'ds_read_b128 {V(vQ,4)}, v{vT} offset:{L_Q}')
    A('s_waitcnt lgkmcnt(0)')
    A(f'v_cmp_eq_u32 vcc, 0, v{vP}'); A('s_cbranch_vccz L_s_go')
    A('s_add_u32 s68, s68, 1'); A(f's_cmp_lt_u32 s68, {8*p.limit}'); A('s_cbranch_scc1 L_s_q')
    A('L_s_go:')
    stamp(2)
    A(f's_waitcnt vmcnt({N})')
    A(f's_branch L_k{mid}')
    stubs = []
    def dots(r, d):
        A(f'v_dot2_f32_bf16 v{d}, v{r}, v{vQ}, 0')
        for i in (1, 2, 3): A(f'v_dot2_f32_bf16 v{d}, v{r+i}, v{vQ+i}, v{d}')
    def rowsum(ds):
        for k in (8, 4, 2, 1):
            for d in ds: A(f'v_add_f32_dpp v{d}, v{d}, v{d} row_ror:{k} row_mask:0xf bank_mask:0xf')
        for d in ds: A(f'v_cvt_pk_bf16_f32 v{d}, 0, v{d}')
        for d in ds: A(f'v_mul_f32 v{d}, {f32(SCALE)}, v{d}')
    def prob(s_, half):
        A(f'v_and_b32 v{vP}, 0xffff0000, v{s_}' if half else f'v_lshlrev_b32 v{vP}, 16, v{s_}')
        A(f'v_fmamk_f32 v{vP}, v{vP}, {f32(LOG2E)}, v{vNM}')
        A(f'v_exp_f32 v{vP}, v{vP}')
        A(f'v_cvt_pk_bf16_f32 v{vLo}, v{vP}, 0')
        A(f'v_cvt_pk_bf16_f32 v{vHi}, 0, v{vP}')
        A(f'v_add_f32 v{vL}, v{vL}, v{vP}')
    def vwork(r):
        for i in range(4):
            A(f'v_dot2c_f32_bf16 v{vAcc+2*i}, v{r+i}, v{vLo}')
            A(f'v_dot2c_f32_bf16 v{vAcc+2*i+1}, v{r+i}, v{vHi}')
    def callif(target):
        st = A.label('c'); stubs.append((st, target)); A(f's_cbranch_scc1 {st}'); A(f'{st}_b:')
    def chain(pre, k):
        if k in ('E', 'A'):
            A(f's_cmp_eq_u32 s61, {TOP}'); A(f's_cbranch_scc1 L_{pre}B'); A(f's_branch L_{pre}X'); return
        if k == 'B':
            A(f's_branch L_{pre}A'); return
        if k == 'X': k = TOP - 1
        for x in [k] + sorted((x for x in range(TOP) if x != k), key=lambda x: abs(x - mid)):
            A(f's_cmp_eq_u32 s61, {x}'); A(f's_cbranch_scc1 L_{pre}{x}')
        A(f's_branch L_{pre}T')
    def block(kind, k, pat):
        deep = k in ('E', 'A', 'B', 'X')
        issued = p.Wt if k in ('A', 'B', 'X') else N
        halves = (vRing, vRing) if not deep else (vRing, vExt) if k in ('E', 'A') else (vExt, vRing)
        slot = lambda n: halves[(n >> 3) & 1] + 4*(n & 7)
        A('.p2align 4')
        A(f'L_{kind}{k}:')
        if kind == 'v':
            A(f'ds_read_b128 {V(vST,4)}, v{vSa}')
            A(f'v_add_u32 v{vSa}, 64, v{vSa}')
        for j in range(8):
            if kind == 'v' and j: prob(vST + j//2, j & 1)
            A(f's_waitcnt vmcnt({issued - j - 1})')
            while issued < j + 1 + int(pat[j]):
                if issued % 8 == 0 and kind == 'k':
                    A(f's_sub_u32 s{sIB}, s{sIB}, 1'); callif('L_swap')
                A(f'buffer_load_dwordx4 {V(slot(issued), 4)}, v{vOff}, {S(SC)}, 0 offen nt')
                A(f'v_add_u32 v{vOff}, 0x1000, v{vOff}')
                issued += 1
            assert issued <= (14 if not deep else j + 16)
            if kind == 'v' and j == 0:
                A('s_waitcnt lgkmcnt(0)'); prob(vST, 0)
            if j & 1:
                A(f's_add_u32 s{sPr}, s{sPr}, 0x1000'); A(f'v_mov_b32 v{vP}, s{sPr}')
                A(f'ds_write_b32 v{vU}, v{vP} offset:{L_PR}')
            if j == 7:
                A(f'ds_read_b32 v{vT}, v{vU} offset:{L_LV}')
                if kind == 'k' and not deep:
                    A(f's_sub_u32 s61, s60, {E}'); A(f's_cmp_lt_u32 s61, {EL}'); A(f's_cbranch_scc0 L_{kind}{k}_nl')
                    A(f'ds_read_b128 {V(vRing+24,4)}, v0')
                    A(f'L_{kind}{k}_nl:')
            if kind == 'v': vwork(slot(j))
            else:
                dots(slot(j), vST + 4 + (j & 1)); rowsum([vST + 4 + (j & 1)])
                if j & 1:
                    A(f'v_max3_f32 v{vG}, v{vG}, v{vST+4}, v{vST+5}')
                    A(f'v_cvt_pk_bf16_f32 v{vST+j//2}, v{vST+4}, v{vST+5}')
        assert issued == 8 + (p.Wt if k in ('E', 'A', 'B') else N)
        if kind == 'k':
            A('s_mov_b32 exec_lo, 0x10001'); A('s_mov_b32 exec_hi, 0x10001')
            A(f'ds_write_b128 v{vSa}, {V(vST,4)}')
            A('s_mov_b64 exec, -1')
            A(f'v_add_u32 v{vSa}, 64, v{vSa}')
            A('s_waitcnt lgkmcnt(1)')
            A(f'v_readfirstlane_b32 s61, v{vT}')
            if not deep:
                A(f's_cmp_lt_u32 s60, {XP}'); callif('L_extra')
            A('s_add_u32 s60, s60, 1')
            A(f's_cmp_eq_u32 s60, {KB}'); A(f's_cbranch_scc1 L_k{k}_sw')
            chain('k', k)
            A(f'L_k{k}_sw:')
            A('s_call_b64 s[42:43], L_max')
            chain('v', k)
        else:
            A('s_waitcnt lgkmcnt(0)')
            A(f'v_readfirstlane_b32 s61, v{vT}')
            A('s_add_u32 s60, s60, 1')
            A(f's_cmp_eq_u32 s60, {TRIPS}'); A('s_cbranch_scc1 L_sdone')
            chain('v', k)
    C(f'''
    A block consumes 8 loads of the ring and issues the following ones.  {KB} blocks of K (scores, rounded like the
    reference rounds them, go to LDS; the first {XP} blocks also score two prefetched loads each), then 64 blocks of V.
    The variants of a block differ only in how many loads they keep in flight; s61 picks the next one.''')
    for kind in 'kv':
        for k, pat in enumerate(levels): block(kind, k, pat)
        C('the deep window starts at an even block once the prefetch registers are free')
        A(f'L_{kind}T:')
        if kind == 'k': A(f's_cmp_lt_u32 s60, {XP}'); A(f's_cbranch_scc1 L_{kind}{TOP-1}')
        A('s_bitcmp1_b32 s60, 0'); A(f's_cbranch_scc1 L_{kind}{TOP-1}')
        block(kind, 'E', [min(p.Wt, N + 1 + j) for j in range(8)])
        block(kind, 'A', [p.Wt]*8); block(kind, 'B', [p.Wt]*8)
        block(kind, 'X', [min(p.Wt, 7 + N - j) for j in range(8)])
    A('L_sdone:')
    A('v_mbcnt_lo_u32_b32 v0, -1, 0'); A('v_mbcnt_hi_u32_b32 v0, -1, v0')
    stamp(4)
    C('add up the four key rows of the wave; o, -max*log2e and the sum go to LDS')
    A(f'v_mov_b32 v{vT}, v{vL}')
    A(f'v_and_b32 v{vU}, 15, v0'); A(f'v_lshlrev_b32 v{vU}, 5, v{vU}')
    A(f'v_permlane32_swap_b32 v{vT}, v{vL}')
    A(f'v_lshrrev_b32 v{vG}, 4, v0')
    for e in range(4): A(f'v_permlane32_swap_b32 v{vAcc+e}, v{vAcc+e+4}')
    A(f'v_add_f32 v{vL}, v{vL}, v{vT}')
    for e in range(4): A(f'v_add_f32 v{vAcc+e}, v{vAcc+e}, v{vAcc+e+4}')
    A(f'v_mov_b32 v{vT}, v{vL}')
    A(f'v_lshl_add_u32 v{vU}, v{vG}, 3, v{vU}')
    for e in range(2): A(f'v_permlane16_swap_b32 v{vAcc+e}, v{vAcc+e+2}')
    A(f'v_permlane16_swap_b32 v{vT}, v{vL}')
    A(f's_lshl_b32 s61, s3, 9'); A(f'v_add_u32 v{vU}, s61, v{vU}')
    for e in range(2): A(f'v_add_f32 v{vAcc+e}, v{vAcc+e}, v{vAcc+e+2}')
    A(f'v_add_f32 v{vL}, v{vL}, v{vT}')
    A(f'ds_write_b64 v{vU}, {V(vAcc,2)} offset:{L_O}')
    A('s_lshl_b32 s61, s3, 2'); A(f'v_mov_b32 v{vG}, s61')
    A('s_mov_b64 exec, 1')
    A(f'ds_write_b32 v{vG}, v{vNM} offset:{L_M}'); A(f'ds_write_b32 v{vG}, v{vL} offset:{L_L}')
    A('s_waitcnt lgkmcnt(0)')
    C('barrier 2: the four partial results are in LDS')
    A('s_barrier')
    stamp(5)
    if p.stamps:
        A('L_flush:')
        A('s_mov_b64 exec, 1')
        A('s_waitcnt lgkmcnt(0)')
        srd(A, SW2, 30, wsb)
        A('s_lshl_b32 s60, s2, 10'); A('s_lshl_b32 s61, s3, 7'); A('s_add_u32 s60, s60, s61'); A(f's_add_u32 s60, s60, {STMP}')
        A('v_mov_b32 v1, s60')
        for k in range(15):
            A(f'v_mov_b32 v2, s{72+2*k}')
            A(f'buffer_store_dword v2, v1, {S(SW2)}, 0 offen offset:{4*k} sc1')
        A('s_waitcnt vmcnt(0)')
    A('L_exit:')
    A('s_endpgm')
    for st, target in stubs:
        A(f'{st}:'); A(f's_call_b64 s[42:43], {target}'); A(f's_branch {st}_b')
    C('the ring loads change over from K to V (loads past the end of V are out of range and fetch nothing)')
    A('L_swap:')
    A(f's_mov_b32 s{SC}, s{sVb}'); A(f's_mov_b32 s{SC+1}, s{sVb+1}'); A(f's_movk_i32 s{sIB}, 0x7fff')
    A(f'v_subrev_u32 v{vOff}, 0x200000, v{vOff}')
    A('s_setpc_b64 s[42:43]')
    C('two prefetched K loads (ring slots 6 and 7 are free between blocks)')
    A('L_extra:')
    A(f's_cmp_ge_u32 s60, {E}'); A('s_cbranch_scc1 L_extra_l')
    A('s_lshl_b32 s68, s60, 3')
    A('s_set_gpr_idx_on s68, gpr_idx(SRC0)')
    for i in range(8): A(f'v_mov_b32 v{vRing+24+i}, v{vExt+i}')
    A('s_set_gpr_idx_off')
    A(f's_add_u32 s68, s60, {EL}')
    A('s_branch L_extra_go')
    A('L_extra_l:')
    A(f'ds_read_b128 {V(vRing+28,4)}, v0 offset:1024')
    A('v_add_u32 v0, 0x800, v0')
    A(f's_sub_u32 s68, s60, {E}')
    A('L_extra_go:')
    dots(vRing+24, vLo)
    A('s_and_b32 s64, s68, 3'); A('s_lshr_b32 s68, s68, 2'); A('s_sub_u32 s68, s68, s60'); A('s_lshl_b32 s68, s68, 4')
    A('s_add_u32 s68, s68, s64'); A(f's_sub_u32 s68, s68, {16*(XB + 1)}'); A('s_lshl_b32 s68, s68, 2')
    A('s_waitcnt lgkmcnt(0)')
    dots(vRing+28, vHi)
    A(f'v_add_u32 v{vT}, s68, v{vSa}')
    rowsum([vLo, vHi])
    A(f'v_max3_f32 v{vG}, v{vG}, v{vLo}, v{vHi}')
    A(f'v_cvt_pk_bf16_f32 v{vP}, v{vLo}, v{vHi}')
    A('s_mov_b32 exec_lo, 0x10001'); A('s_mov_b32 exec_hi, 0x10001')
    A(f'ds_write_b32 v{vT}, v{vP}')
    A('s_mov_b64 exec, -1')
    if p.stamps:
        A(f's_cmp_lg_u32 s60, {XP-1}'); A('s_cbranch_scc1 L_extra_r'); stamp(3); A('L_extra_r:')
    A('s_setpc_b64 s[42:43]')
    C('all scores of the wave are known: maximum over its 2048 keys')
    A('L_max:')
    A(f'v_cvt_pk_bf16_f32 v{vLo}, 0, v{vG}'); A(f'v_cvt_pk_bf16_f32 v{vHi}, 0, v{vG}')
    A(f'v_subrev_u32 v{vSa}, 0x1000, v{vSa}')
    A(f'v_permlane32_swap_b32 v{vLo}, v{vHi}')
    A(f'v_max_f32 v{vLo}, v{vLo}, v{vHi}'); A(f'v_mov_b32 v{vHi}, v{vLo}')
    A(f'v_permlane16_swap_b32 v{vLo}, v{vHi}')
    A(f'v_max_f32 v{vLo}, v{vLo}, v{vHi}')
    A(f'v_mul_f32 v{vNM}, {f32(-LOG2E)}, v{vLo}')
    A('s_setpc_b64 s[42:43]')

    vOwn, vA0, vA1, vW, vSp, vAc, vX = 16, 24, 32, 40, 104, 106, 128
    def dpp(op, d, a, b, ctl, rm='0xf'): A(f'{op}_dpp v{d}, v{a}, v{b} {ctl} row_mask:{rm} bank_mask:0xf')
    def movdpp(d, a, ctl): A(f'v_mov_b32_dpp v{d}, v{a} {ctl} row_mask:0xf bank_mask:0xf')
    def rbf(d, s): A(f'v_cvt_pk_bf16_f32 v{d}, 0, v{s}')
    def pk(op, d, a, b, bc=False): A(f'v_pk_{op}_f32 {V(d,2)}, {V(a,2)}, {V(b,2)}' + (' op_sel_hi:[1,0]' if bc else ''))
    def perm2(d0, d1, a, b):
        A(f'v_perm_b32 v{d0}, v{b}, v{a}, s{PLO}'); A(f'v_perm_b32 v{d1}, v{b}, v{a}, s{PHI}')
    def bail(back):
        A('s_add_u32 s68, s68, 1'); A(f's_cmp_lt_u32 s68, {p.limit}'); A(f's_cbranch_scc1 {back}')
    def maxall(d, regs):
        regs = list(regs)
        if len(regs) == 2: A(f'v_max_u32 v{d}, v{regs[0]}, v{regs[1]}'); return d
        A(f'v_max3_u32 v{d}, v{regs[0]}, v{regs[1]}, v{regs[2]}'); regs = regs[3:]
        while len(regs) >= 2:
            A(f'v_max3_u32 v{d}, v{d}, v{regs[0]}, v{regs[1]}'); regs = regs[2:]
        if regs: A(f'v_max_u32 v{d}, v{d}, v{regs[0]}')
        return d
    def poll(loads, regs, tmp, sleep=0):
        L = A.label('poll'); D = L + '_d'
        A('s_mov_b32 s68, 0')
        A(f'{L}:')
        for l in loads: A(l)
        A('s_waitcnt vmcnt(0)')
        t = maxall(tmp, regs)
        A(f'v_cmpx_eq_u32 vcc, -1, v{t}')
        A(f's_cbranch_execz {D}')
        if sleep: A(f's_sleep {sleep}')
        bail(L)
        A(f'{D}:')
        A('s_mov_b64 exec, -1')
    def waitprog(lim, op):
        L = A.label('prog'); D = L + '_d'
        A('s_mov_b32 s68, 0')
        A(f'{L}:')
        A(f'ds_read_b32 v14, v10 offset:{L_PR}'); A('s_waitcnt lgkmcnt(0)')
        A('v_lshrrev_b32 v14, 12, v14')
        dpp(f'v_{op}_u32', 14, 14, 14, 'quad_perm:[1,0,3,2]'); dpp(f'v_{op}_u32', 14, 14, 14, 'quad_perm:[2,3,0,1]')
        A('v_readfirstlane_b32 s64, v14')
        A(f's_cmp_ge_u32 s64, {lim}'); A(f's_cbranch_scc1 {D}')
        A(f's_sleep {p.psleep}')
        bail(L)
        A(f'{D}:')
    def setflag(off):
        A('v_mov_b32 v14, 1'); A('v_mov_b32 v15, 0'); A(f'ds_write_b32 v15, v14 offset:{off}')
    def waitmarks():
        A('v_lshlrev_b32 v9, 4, v0'); A(f's_mov_b32 s60, {CLRF}')
        poll([f'buffer_load_dwordx4 v[4:7], v9, {S(SWS)}, s60 offen sc1'], range(4, 8), 8, sleep=16)
    def zero(r, n):
        for e in range(n): A(f'v_mov_b32 v{r+e}, 0')
    def fold(r, n, which):
        h = n // 2
        for e in range(h): A(f'v_permlane{which}_swap_b32 v{r+e}, v{r+h+e}')
        for e in range(h): A(f'v_add_f32 v{r+e}, v{r+e}, v{r+h+e}')
    def rors(r, n, ks):
        for k in ks:
            for e in range(n): dpp('v_add_f32', r+e, r+e, r+e, f'row_ror:{k}')
    def allsum_parity(r, t):
        rors(r, 1, (2, 4, 8))
        A(f'v_mov_b32 v{t}, v{r}'); A(f'v_permlane16_swap_b32 v{t}, v{r}'); A(f'v_add_f32 v{r}, v{r}, v{t}')
        A(f'v_mov_b32 v{t}, v{r}'); A(f'v_permlane32_swap_b32 v{t}, v{r}'); A(f'v_add_f32 v{r}, v{r}, v{t}')
    def unpack(dst, src, n):
        for i in range(n):
            A(f'v_lshlrev_b32 v{dst+2*i}, 16, v{src+i}'); A(f'v_and_b32 v{dst+2*i+1}, 0xffff0000, v{src+i}')
    def csel(d, a, b):
        if -16 <= a <= 64 or -16 <= b <= 64 or a == b: A(f's_cselect_b32 s{d}, {a}, {b}')
        else: A(f's_mov_b32 s{d}, {b}'); A(f's_cselect_b32 s{d}, {a}, s{d}')
    def setexec(mask):
        A(f's_mov_b32 exec_lo, 0x{mask & 0xffffffff:x}'); A(f's_mov_b32 exec_hi, 0x{mask >> 32:x}')
    def ln_tail(nmean, var):
        rbf(var, var); rbf(nmean, nmean)
        A(f'v_add_f32 v{var}, {f32(1e-5)}, v{var}'); rbf(var, var)
        A(f'v_sqrt_f32 v{var}, v{var}'); rbf(var, var); A(f'v_rcp_f32 v{var}, v{var}')
    def modcalc(st):
        A('s_waitcnt vmcnt(16)')
        unpack(vX, vOwn, 8)
        for i in range(16): A(f'v_mul_f32 v{vX+16+i}, {f32(-LOG2E)}, v{vX+i}')
        for i in range(16): A(f'v_exp_f32 v{vX+16+i}, v{vX+16+i}')
        for i in range(16): A(f'v_add_f32 v{vX+16+i}, 1.0, v{vX+16+i}')
        for i in range(16): A(f'v_rcp_f32 v{vX+16+i}, v{vX+16+i}')
        for i in range(0, 16, 2): pk('mul', vX+i, vX+i, vX+16+i)
        for i in range(8): A(f'v_cvt_pk_bf16_f32 v{vOwn+i}, v{vX+2*i}, v{vX+2*i+1}')
        for t in range(8):
            movdpp(vA0+t, vOwn+t, 'quad_perm:[0,0,2,2]'); movdpp(vA1+t, vOwn+t, 'quad_perm:[1,1,3,3]')
        if st: stamp(1)
        free = vSp
        for t in range(8):
            A(f's_waitcnt vmcnt({14-2*t})')
            m = {}
            for j in range(4):
                a, b = vW + 8*t + j, vW + 8*t + 4 + j
                perm2(free, b, a, b); m[2*j] = free; m[2*j+1] = b; free = a
            for e in range(8):
                A(f'v_dot2c_f32_bf16 v{vAc+e}, v{vA0+t}, v{m[e]}')
                A(f'v_dot2c_f32_bf16 v{vAc+8+e}, v{vA1+t}, v{m[e]}')
        if st: stamp(2)

    C('''
    ================================ helper waves ================================
    v11 = lane & 1, v12 = lane bit 4, v13 = lane >> 5; s38 = block of 8 gate/up columns (< 224), s39 = reducer (< 32)''')
    A('L_helper:')
    A(f's_mov_b32 s{PLO}, 0x05040100'); A(f's_mov_b32 s{PHI}, 0x07060302')
    A('v_and_b32 v11, 1, v0'); A('v_bfe_u32 v12, v0, 4, 1'); A('v_lshrrev_b32 v13, 5, v0')
    A('v_mov_b32 v5, 0'); A('v_mov_b32 v6, 0')
    A(f's_lshr_b32 s60, s{sIdx}, 3'); A('s_lshl_b32 s60, s60, 3'); A(f's_add_u32 s60, s60, s{sX}')
    A(f's_lshl_b32 s{sFB}, s60, 3'); A(f's_add_u32 s{sFB}, s{sFB}, s{sJ}')
    A(f's_sub_u32 s60, s{sIdx}, 8'); A(f's_lshl_b32 s61, s{sX}, 2'); A(f's_add_u32 s{sR}, s60, s61')
    A('s_cmp_lt_u32 s60, 4'); A(f's_cselect_b32 s{sR}, s{sR}, 64')
    A('s_waitcnt lgkmcnt(0)')
    srd(A, SWS, 30, wsb); srd(A, SDBG, 28, 256)
    A('s_cmp_eq_u32 s3, 5'); A('s_cbranch_scc1 L_taskB')
    A('s_cmp_eq_u32 s3, 4'); A('s_cbranch_scc1 L_taskA')
    A('s_cmp_eq_u32 s3, 6'); A('s_cbranch_scc1 L_mark')
    C('wave 7 of eight workgroups reads the code once, so that instruction fetches find it in L2')
    A(f's_cmp_lg_u32 s{sIdx}, 9'); A('s_cbranch_scc1 L_bar1')
    A('s_getpc_b64 s[60:61]'); A('L_pc0:')
    A(f's_sub_u32 s60, s60, L_pc0 - {NAME}_kernel'); A('s_subb_u32 s61, s61, 0')
    A('v_lshlrev_b32 v2, 7, v0'); A('v_mov_b32 v3, s61'); A('v_add_co_u32 v2, vcc, s60, v2'); A('v_addc_co_u32 v3, vcc, 0, v3, vcc')
    A('v_mov_b32 v8, v0')
    A('L_w0:')
    A(f'v_cmp_gt_u32 vcc, (L_fin - {NAME}_kernel)/128, v8'); A('s_and_b64 exec, exec, vcc'); A('s_cbranch_execz L_w0d')
    A('global_load_dword v4, v[2:3], off')
    A('v_add_co_u32 v2, vcc, 0x2000, v2'); A('v_addc_co_u32 v3, vcc, 0, v3, vcc'); A('v_add_u32 v8, 64, v8')
    A('s_branch L_w0')
    A('L_w0d:')
    A('s_mov_b64 exec, -1'); A('s_branch L_bar1')
    C('wave 6: this workgroup\'s share of the late hand-off slots is marked "not written"')
    A('L_mark:')
    for i in range(4): A(f'v_mov_b32 v{16+i}, -1')
    A('s_mul_i32 s61, s2, 5120'); A('v_lshl_add_u32 v3, v0, 4, s61'); A(f's_mov_b32 s60, {LATE}'); A(f's_mov_b32 s61, {LATE+4096}')
    c0 = (Y2 - LATE + 5119)//5120
    A(f's_sub_u32 s62, s2, {c0}'); A(f's_cmp_lt_u32 s62, {(X2 - LATE)//5120 - c0}'); A('s_cbranch_scc1 L_mark_nt')
    for i in range(5): A(f'buffer_store_dwordx4 v[16:19], v3, {S(SWS)}, s{60+(i>>2)} offen offset:{1024*(i&3)} sc1')
    A('s_branch L_bar1')
    A('L_mark_nt:')
    for i in range(5): A(f'buffer_store_dwordx4 v[16:19], v3, {S(SWS)}, s{60+(i>>2)} offen offset:{1024*(i&3)} sc1 nt')
    A('s_branch L_bar1')
    C('''
    wave 4 of workgroups 0..63: marks the q slots, then 128 rows x 64 columns of silu(c) @ w_mod for sa | ca;
    the last of the 64 to arrive raises the flag''')
    A('L_taskA:')
    A('s_cmp_ge_u32 s2, 64'); A('s_cbranch_scc1 L_bar1')
    A('s_and_b32 s62, s2, 15'); A('s_lshr_b32 s63, s2, 4')
    for i in range(4): A(f'v_mov_b32 v{4+i}, -1')
    A(f's_lshl_b32 s61, s{sX}, 3'); A(f's_add_u32 s64, s61, s{sIdx}')
    A('s_lshl_b32 s61, s64, 12'); A('v_lshl_add_u32 v3, v0, 4, s61'); A(f's_mov_b32 s60, {QP}')
    for i in range(4): A(f'buffer_store_dwordx4 v[4:7], v3, {S(SWS)}, s60 offen offset:{1024*i} sc1')
    A('s_lshl_b32 s61, s64, 4'); A(f's_add_u32 s61, s61, {CLRF}'); A('v_mov_b32 v3, 0'); A('s_mov_b64 exec, 1')
    A(f'buffer_store_dwordx4 v[4:7], v3, {S(SWS)}, s61 offen sc1')
    A('s_mov_b64 exec, -1')
    A('s_call_b64 s[42:43], L_modload')
    A('s_barrier')
    zero(vAc, 16)
    modcalc(True)
    fold(vAc, 16, 32); fold(vAc, 8, 16); rors(vAc, 4, (8,))
    A('v_and_b32 v1, 7, v0'); A('v_lshlrev_b32 v1, 5, v1'); A('v_lshl_add_u32 v1, v12, 4, v1'); A('v_lshl_add_u32 v1, v13, 8, v1')
    A('s_lshl_b32 s60, s62, 2'); A('s_add_u32 s60, s60, s63'); A('s_lshl_b32 s60, s60, 9')
    setexec(0x00ff00ff00ff00ff)
    A(f'buffer_store_dwordx4 {V(vAc,4)}, v1, {S(SWS)}, s60 offen sc1')
    stamp(3)
    A('s_mov_b64 exec, 1'); A('v_mov_b32 v15, 0'); A('v_mov_b32 v14, 1')
    A('s_waitcnt vmcnt(0)')
    stamp(4)
    A(f'buffer_atomic_add v14, v15, {S(SDBG)}, 0 offen sc0 sc1')
    A('s_waitcnt vmcnt(0)')
    A('v_cmp_ne_u32 vcc, 63, v14'); A('s_cbranch_vccnz L_arrived')
    A(f'buffer_store_dword v14, v15, {S(SDBG)}, 0 offen offset:128 sc1')
    A('L_arrived:')
    A('s_mov_b64 exec, -1')
    stamp(5)
    A('s_branch L_waitq')
    C('loads for 128 rows (s63) x 64 columns (s62) of w_mod; lane = (16 rows, 8 columns), batch by lane parity for c')
    A('L_modload:')
    srd(A, SW2, 22, 2048); srd(A, SW, 24, 512*3072*2)
    A('v_lshrrev_b32 v10, 3, v0')
    A('v_lshlrev_b32 v1, 5, v10'); A('v_lshl_add_u32 v1, v11, 10, v1'); A('s_lshl_b32 s60, s63, 8')
    A(f'buffer_load_dwordx4 {V(vOwn,4)}, v1, {S(SW2)}, s60 offen')
    A(f'buffer_load_dwordx4 {V(vOwn+4,4)}, v1, {S(SW2)}, s60 offen offset:16')
    A(f's_mov_b32 s60, {16*6144}'); A('v_mul_lo_u32 v1, s60, v10'); A('v_and_b32 v2, 7, v0'); A('v_lshl_add_u32 v1, v2, 4, v1')
    A(f's_mul_i32 s60, s63, {128*6144}'); A('s_lshl_b32 s61, s62, 7'); A('s_add_u32 s60, s60, s61')
    for i in range(16):
        A(f'buffer_load_dwordx4 {V(vW+4*i,4)}, v1, {S(SW)}, s60 offen nt')
        if i < 15: A('s_add_u32 s60, s60, 6144')
    A('s_setpc_b64 s[42:43]')
    C('''
    wave 5: h = LN(x)*(1+ca)+sa for 64 of the 512 rows (both batches), times 64 x 128 of wq; the eight partial sums of
    a head are exchanged and each workgroup puts the q of its batch into LDS''')
    A('L_taskB:')
    srd(A, SW2, 4, 2048); srd(A, SW, 10, 512*4096*2)
    A('v_lshrrev_b32 v10, 1, v0'); A('v_lshlrev_b32 v1, 5, v10'); A('v_lshl_add_u32 v1, v11, 10, v1')
    A(f'buffer_load_dwordx4 {V(vOwn,4)}, v1, {S(SW2)}, 0 offen')
    A(f'buffer_load_dwordx4 {V(vOwn+4,4)}, v1, {S(SW2)}, 0 offen offset:16')
    A('v_lshrrev_b32 v9, 4, v0'); A('v_and_b32 v8, 14, v0'); A('v_lshl_add_u32 v8, v9, 4, v8')
    A('v_lshlrev_b32 v1, 1, v8'); A('v_lshl_add_u32 v1, v11, 10, v1'); A(f's_lshl_b32 s60, s{sJ}, 7')
    A(f'buffer_load_dword v7, v1, {S(SW2)}, s60 offen')
    A('s_barrier')
    A('v_lshlrev_b32 v1, 17, v9'); A('v_and_b32 v10, 15, v0'); A('v_lshl_add_u32 v1, v10, 4, v1')
    A(f's_lshl_b32 s60, s{sJ}, 19'); A(f's_lshl_b32 s61, s{sH}, 8'); A('s_add_u32 s60, s60, s61')
    A('s_waitcnt vmcnt(0)')
    unpack(vX, vOwn, 8)
    w = vX + 16
    pk('add', w, vX, vX+2)
    for i in range(4, 16, 2): pk('add', w, w, vX+i)
    A(f'v_add_f32 v2, v{w}, v{w+1}')
    allsum_parity(2, 3)
    A(f'v_mul_f32 v2, {f32(-1.0/512)}, v2')
    for i in range(0, 16, 2): pk('add', w+i, vX+i, 2, True)
    pk('mul', 4, w, w)
    for i in range(2, 16, 2): A(f'v_pk_fma_f32 v[4:5], {V(w+i,2)}, {V(w+i,2)}, v[4:5]')
    A('v_add_f32 v4, v4, v5')
    allsum_parity(4, 5)
    A(f'v_mul_f32 v4, {f32(1.0/512)}, v4')
    for i in range(16):
        A(f'buffer_load_dwordx4 {V(vW+4*i,4)}, v1, {S(SW)}, s60 offen nt')
        if i < 15: A('s_add_u32 s60, s60, 8192')
    ln_tail(2, 4)
    unpack(vX, 7, 1)
    pk('add', vX, vX, 2, True); rbf(vX, vX); rbf(vX+1, vX+1)
    pk('mul', vX, vX, 4, True); rbf(vX, vX); rbf(vX+1, vX+1)
    zero(vAc, 16)
    A('v_lshlrev_b32 v6, 2, v8'); A('v_lshl_add_u32 v6, v11, 8, v6')
    A('v_lshlrev_b32 v1, 5, v10'); A('v_lshl_add_u32 v1, v12, 4, v1'); A('v_lshl_add_u32 v1, v13, 12, v1')
    A(f's_lshl_b32 s62, s{sJ}, 11'); A('s_add_u32 s63, s62, 16384')
    stamp(1)
    A('s_waitcnt vmcnt(0)')
    stamp(2)
    m = {}; free = vSp
    for t in range(8):
        for j in range(4):
            a, b = vW + 8*t + j, vW + 8*t + 4 + j
            perm2(free, b, a, b); m[(t, 2*j)] = free; m[(t, 2*j+1)] = b; free = a
    A('s_mov_b32 s68, 0'); A('v_mov_b32 v15, 0'); A('s_mov_b64 exec, 1')
    A('L_go:')
    A(f'buffer_load_dword v14, v15, {S(SDBG)}, 0 offen offset:128 sc1')
    A('s_waitcnt vmcnt(0)')
    A('v_cmp_eq_u32 vcc, 0, v14'); A('s_cbranch_vccz L_go_d')
    A(f's_sleep {p.gosleep}')
    bail('L_go')
    A('L_go_d:')
    A('s_mov_b64 exec, -1')
    stamp(3)
    c1, sa = vX+2, vX+10
    for i in range(4): A(f'buffer_load_dwordx2 {V(c1+2*i,2)}, v6, {S(SWS)}, s63 offen offset:{512*i} sc1')
    for i in range(4): A(f'buffer_load_dwordx2 {V(sa+2*i,2)}, v6, {S(SWS)}, s62 offen offset:{512*i} sc1')
    A(f's_lshl_b32 s60, s{sH}, 13'); A(f's_lshl_b32 s61, s{sJ}, 9'); A('s_add_u32 s61, s61, s60'); A(f's_add_u32 s61, s61, {QP}')
    A(f's_lshl_b32 s62, s{sB}, 12'); A('s_add_u32 s60, s60, s62'); A(f's_add_u32 s60, s60, {QP}')
    A('s_waitcnt vmcnt(4)')
    pk('add', c1, c1, c1+2); pk('add', c1+4, c1+4, c1+6); pk('add', c1, c1, c1+4)
    rbf(c1, c1); rbf(c1+1, c1+1)
    A(f'v_add_f32 v{c1}, 1.0, v{c1}'); A(f'v_add_f32 v{c1+1}, 1.0, v{c1+1}')
    rbf(c1, c1); rbf(c1+1, c1+1)
    pk('mul', vX, vX, c1); rbf(vX, vX); rbf(vX+1, vX+1)
    A('s_waitcnt vmcnt(0)')
    stamp(4)
    pk('add', sa, sa, sa+2); pk('add', sa+4, sa+4, sa+6); pk('add', sa, sa, sa+4)
    rbf(sa, sa); rbf(sa+1, sa+1)
    pk('add', vX, vX, sa)
    A(f'v_cvt_pk_bf16_f32 v{vOwn}, v{vX}, v{vX+1}')
    for t in range(8):
        movdpp(vA0+t, vOwn, f'row_newbcast:{2*t}'); movdpp(vA1+t, vOwn, f'row_newbcast:{2*t+1}')
    for t in range(8):
        for e in range(8):
            A(f'v_dot2c_f32_bf16 v{vAc+e}, v{vA0+t}, v{m[(t,e)]}')
            A(f'v_dot2c_f32_bf16 v{vAc+8+e}, v{vA1+t}, v{m[(t,e)]}')
    fold(vAc, 16, 32); fold(vAc, 8, 16)
    A(f'buffer_store_dwordx4 {V(vAc,4)}, v1, {S(SWS)}, s61 offen sc1')
    stamp(5)
    A('v_lshlrev_b32 v1, 4, v0')
    A('v_and_b32 v2, 31, v0'); A('v_lshlrev_b32 v2, 3, v2'); A('v_lshl_add_u32 v2, v13, 2, v2')
    A('s_waitcnt vmcnt(0)')
    poll([f'buffer_load_dwordx4 {V(vX+4*i,4)}, v1, {S(SWS)}, s60 offen offset:{1024*i} sc1' for i in range(4)], range(vX, vX+16), 8, sleep=1)
    for a, b in ((0, 4), (8, 12), (0, 8)):
        pk('add', vX+a, vX+a, vX+b); pk('add', vX+a+2, vX+a+2, vX+b+2)
    fold(vX, 4, 32)
    A(f'v_cvt_pk_bf16_f32 v3, v{vX}, v{vX+1}')
    A(f'ds_write_b32 v2, v3 offset:{L_Q}')
    setflag(L_QF)
    stamp(6)
    C('wave 5 of the 32 workgroups without gate/up columns: 64 columns of ga | sb | 1+cb | gb')
    A(f's_cmp_lt_u32 s{sFB}, 224'); A('s_cbranch_scc1 L_tail')
    A(f's_sub_u32 s62, s{sFB}, {224 - 16}'); A('s_mov_b32 s63, 0')
    zero(vAc, 16)
    A('L_bgA_loop:')
    A('s_call_b64 s[42:43], L_modload')
    modcalc(False)
    A('s_add_u32 s63, s63, 1'); A('s_cmp_lt_u32 s63, 4'); A('s_cbranch_scc1 L_bgA_loop')
    fold(vAc, 16, 32); fold(vAc, 8, 16); rors(vAc, 4, (8,))
    A('s_lshr_b32 s61, s62, 3'); A('s_cmp_eq_u32 s61, 4'); A('s_cselect_b32 s63, 1.0, 0')
    for e in range(4): rbf(vAc+e, vAc+e)
    for e in range(4): A(f'v_add_f32 v{vAc+e}, s63, v{vAc+e}')
    for e in range(4): rbf(vAc+e, vAc+e)
    waitmarks()
    A('v_and_b32 v1, 7, v0'); A('v_lshlrev_b32 v1, 5, v1'); A('v_lshl_add_u32 v1, v12, 4, v1'); A('v_lshl_add_u32 v1, v13, 13, v1')
    A('s_lshl_b32 s60, s62, 8'); A(f's_add_u32 s60, s60, {MODB - 4096}')
    setexec(0x00ff00ff00ff00ff)
    A(f'buffer_store_dwordx4 {V(vAc,4)}, v1, {S(SWS)}, s60 offen sc1')
    A('s_mov_b64 exec, -1')
    A('s_waitcnt vmcnt(0)')
    A('s_branch L_tail')
    C('waves 4, 6, 7 go on once q is there (so the flag in d_debug has been seen)')
    A('L_bar1:')
    A('s_barrier')
    A('L_waitq:')
    A('s_mov_b32 s68, 0'); A('v_mov_b32 v15, 0')
    A('L_h_q:')
    A(f'ds_read_b32 v14, v15 offset:{L_QF}'); A('s_waitcnt lgkmcnt(0)')
    A('v_cmp_eq_u32 vcc, 0, v14'); A('s_cbranch_vccz L_route')
    A('s_sleep 8')
    bail('L_h_q')
    A('L_route:')
    A('v_and_b32 v10, 3, v0'); A('v_lshlrev_b32 v10, 2, v10')
    A('s_cmp_eq_u32 s3, 4'); A('s_cbranch_scc1 L_ctl')
    A('s_cmp_eq_u32 s3, 7'); A('s_cbranch_scc1 L_stage')
    C('''
    wave 6: reports its marks, then stages 128 x 64 of wo (rows paired for the dot products) in the LDS the prefetch has left''')
    A('s_waitcnt vmcnt(0)')
    A('s_mov_b64 exec, 1'); A(f's_lshl_b32 s61, s{sX}, 5'); A(f's_add_u32 s61, s61, s{sIdx}')
    A('s_lshl_b32 s61, s61, 2'); A(f's_add_u32 s61, s61, {CLRF}')
    A(f'buffer_store_dword v15, v15, {S(SWS)}, s61 offen sc1')
    A('s_mov_b64 exec, -1')
    FREE = 5*XP + 8
    waitprog(FREE, 'min')
    srd(A, SW, 12, 4096*512*2)
    A('v_lshrrev_b32 v3, 3, v0'); A('v_lshlrev_b32 v1, 13, v3'); A('v_and_b32 v2, 7, v0'); A('v_lshl_add_u32 v1, v2, 4, v1')
    A(f's_lshl_b32 s60, s{sH}, 17'); A(f's_lshl_b32 s61, s{sJ}, 7'); A('s_add_u32 s60, s60, s61')
    for n in range(16):
        A(f's_add_u32 s61, s60, {(n>>3)*65536 + (n&4)*1024}')
        A(f'buffer_load_dwordx4 {V(vX+4*n,4)}, v1, {S(SW)}, s61 offen offset:{(n&3)*1024} nt')
        A('s_waitcnt vmcnt(2)')
    A('v_lshlrev_b32 v3, 6, v3'); A('v_and_b32 v4, 3, v0'); A('v_lshl_add_u32 v3, v4, 4, v3'); A('v_bfe_u32 v4, v0, 2, 1'); A('v_lshl_add_u32 v3, v4, 13, v3')
    A('s_waitcnt vmcnt(0)')
    for hf in range(2):
        for t in range(4):
            for j in range(4):
                d = 192 + 32*hf + 8*t + 2*j
                perm2(d, d+1, vX + 32*hf + 8*t + j, vX + 32*hf + 8*t + 4 + j)
        for q in range(8): A(f'ds_write_b128 v3, {V(192+32*hf+4*q,4)} offset:{L_WO + 1024*q + 512*hf}')
    setflag(L_FL)
    A('s_branch L_tail')

    C(f'''
    wave 4: keeps this workgroup's stream level with the others.  Workgroup 0 gives a tick every {p.Pd} blocks (passed on
    inside each die by one workgroup); at a tick every workgroup notes how far it is and 16 of them publish it.  One
    tick later each compares itself with their mean and runs some blocks with fewer or more loads in flight.''')
    K = (p.tl - p.t0)//p.Pd + 1
    t0 = p.tl - (K - 1)*p.Pd
    assert K <= 18
    w = [sum(map(int, x))/8 for x in levels] + [p.Wt]
    cu = [max(1, round(256*(0.8 if x > w[mid] else 0.7)*abs(x - w[mid])/x)) for x in w]
    P0 = 4*(XP + 2); END = P0 + 16*TRIPS - p.endq; NACT = p.Pd - p.lead
    sTk, sPs, sBase, sThr, sC, sLt, sPrev, sU, sPd, sD = range(90, 100) if not p.stamps else range(4, 14)
    def waitp(lim):
        L = A.label('prog'); D = L + '_d'
        A('s_mov_b32 s68, 0')
        A(f'{L}:')
        A('s_call_b64 s[42:43], L_serve')
        A(f's_cmp_ge_u32 s64, {lim}'); A(f's_cbranch_scc1 {D}')
        A(f's_sleep {p.psleep}')
        bail(L)
        A(f'{D}:')
    def tickpoll(name, reg, seen):
        A('s_mov_b32 s68, 0')
        A(f'buffer_load_dword v8, v15, {S(SWS)}, s{reg} offen sc1')
        A(f'{name}:')
        for r in (9, 8):
            A(f'buffer_load_dword v{r}, v15, {S(SWS)}, s{reg} offen sc1')
            A('s_waitcnt vmcnt(1)')
            A(f'v_cmp_eq_u32 vcc, -1, v{17-r}'); A(f's_cbranch_vccz {seen}')
            A('s_call_b64 s[42:43], L_serve')
            A(f's_sleep {p.tsleep}')
        A(f's_cmp_ge_u32 s64, {END}'); A('s_cbranch_scc1 L_ctl_done')
        bail(name)
    def blocks(gain):
        A(f's_mul_i32 s62, s61, {gain}'); A('s_add_u32 s62, s62, 512'); A('s_lshr_b32 s62, s62, 10')
    A('L_ctl:')
    waitprog(P0 + 16*(t0 - 2), 'add')
    waitmarks()
    setflag(L_FL + 8)
    A('v_lshlrev_b32 v2, 7, v0'); A('v_lshlrev_b32 v3, 4, v0')
    A(f's_mov_b32 s{sTk}, {TICK}'); A(f's_mov_b32 s{sPs}, {PS - 2048}'); A(f's_mov_b32 s{sBase}, {mid}')
    A(f's_mov_b32 s{sC}, {P0 + 16*t0}'); A(f's_mov_b32 s{sThr}, {P0}')
    for r in (sPrev, sU, sPd, sD): A(f's_mov_b32 s{r}, 0')
    A('s_getreg_b32 s60, hwreg(HW_REG_XCC_ID, 0, 3)'); A('s_lshl_b32 s60, s60, 12'); A(f's_add_u32 s{sLt}, s60, {LT}')
    A('L_tick:')
    A('s_cmp_eq_u32 s2, 0'); A(f's_cselect_b32 s{sThr}, s{sC}, s{sThr}')
    waitp(f's{sThr}')
    zero(4, 4)
    A('s_cmp_lg_u32 s2, 0'); A('s_cbranch_scc1 L_tk_poll')
    A('s_mov_b64 exec, 0xff')
    A(f'buffer_store_dwordx4 v[4:7], v3, {S(SWS)}, s{sTk} offen sc1')
    A('s_mov_b64 exec, -1')
    A('L_tk_poll:')
    A(f's_cmp_lg_u32 s{sIdx}, 1'); A('s_cbranch_scc1 L_tk_local')
    tickpoll('L_tk_far', sTk, 'L_tk_pass')
    A('L_tk_pass:')
    A('s_mov_b64 exec, 0xff')
    A(f'buffer_store_dwordx4 v[4:7], v3, {S(SWS)}, s{sLt} offen')
    A('s_mov_b64 exec, -1')
    A('s_waitcnt vmcnt(0)')
    A('L_tk_local:')
    tickpoll('L_tk_again', sLt, 'L_tk_seen')
    A('L_tk_seen:')
    A('s_call_b64 s[42:43], L_serve')
    A(f's_and_b32 s60, s{sIdx}, 15'); A('s_cmp_lg_u32 s60, 8'); A('s_cbranch_scc1 L_tk_nopub')
    A(f's_lshr_b32 s60, s{sIdx}, 4'); A('s_lshl_b32 s60, s60, 3'); A(f's_add_u32 s60, s60, s{sX}'); A('s_lshl_b32 s60, s60, 7'); A(f's_add_u32 s60, s60, s{sPs}')
    for i in range(4): A(f'v_mov_b32 v{4+i}, s64')
    A('s_mov_b64 exec, 0xff')
    A(f'buffer_store_dwordx4 v[4:7], v3, {S(SWS)}, s60 offen offset:2048 sc1')
    A('s_mov_b64 exec, -1')
    A('L_tk_nopub:')
    A('s_waitcnt vmcnt(0)')
    A(f'v_mov_b32 v8, s{sPrev}'); A(f'v_mov_b32 v9, s{sPrev}')
    A('s_mov_b64 exec, 0xffff')
    A(f's_cmp_eq_u32 s{sPrev}, 0'); A('s_cbranch_scc1 L_tk_calc')
    A(f'buffer_load_dword v9, v2, {S(SWS)}, s{sPs} offen sc1')
    A('L_tk_calc:')
    A(f's_mov_b32 s{sPrev}, s64'); A(f's_add_u32 s{sThr}, s64, {16*NACT}'); A(f's_min_u32 s{sThr}, s{sThr}, {END}')
    A(f's_add_u32 s{sTk}, s{sTk}, 128'); A(f's_add_u32 s{sLt}, s{sLt}, 128'); A(f's_add_u32 s{sPs}, s{sPs}, 2048'); A(f's_add_u32 s{sC}, s{sC}, {16*p.Pd}')
    A('s_waitcnt vmcnt(0)')
    A('v_cmp_eq_u32 vcc, -1, v9'); A('v_cndmask_b32 v9, v9, v8, vcc'); A('v_sub_u32 v9, v9, v8')
    for r in (8, 4, 2, 1): dpp('v_add_u32', 9, 9, 9, f'row_ror:{r}')
    A('v_readfirstlane_b32 s60, v9')
    A('s_mov_b64 exec, -1')
    if p.trace:
        A(f's_sub_u32 s61, s{sTk}, {TICK}'); A('s_lshr_b32 s61, s61, 4'); A('s_lshl_b32 s62, s2, 8'); A('s_add_u32 s61, s61, s62'); A(f's_add_u32 s61, s61, {STMP + 0x80000}')
        A('v_mov_b32 v4, s60'); A(f'v_mov_b32 v5, s{sD}'); A('s_mov_b64 exec, 1')
        A(f'buffer_store_dwordx2 v[4:5], v15, {S(SWS)}, s61 offen sc1'); A('s_mov_b64 exec, -1')
    C('s60 = lag at the previous tick (256 = one block); drift per period is learnt from what was not expected')
    A(f's_sub_u32 s61, s60, s{sPd}'); A(f's_cmp_gt_u32 s{sTk}, {TICK + 256}'); A(f's_cselect_b32 s62, {p.beta}, 0')
    A('s_mul_i32 s61, s61, s62'); A('s_ashr_i32 s61, s61, 4'); A(f's_add_u32 s{sD}, s{sD}, s61')
    A(f's_sub_u32 s60, s60, s{sU}'); A(f's_add_u32 s{sPd}, s60, s{sD}')
    A(f's_mul_i32 s60, s{sPd}, {p.gam}'); A('s_ashr_i32 s60, s60, 4'); A(f's_add_u32 s60, s60, s{sD}')
    A('s_abs_i32 s61, s60')
    C('the mildest level that makes this up within the period: s65 = level, s62 = blocks, s66 = gain per block')
    A('s_cmp_gt_i32 s60, 0')
    csel(66, cu[3], -cu[1]); csel(63, 1024//cu[3], 1024//cu[1]); A('s_cselect_b32 s65, 3, 1')
    blocks('s63')
    A(f's_cmp_le_u32 s62, {NACT}'); A('s_cbranch_scc1 L_tk_act')
    A('s_cmp_gt_i32 s60, 0')
    csel(66, cu[4], -cu[0]); csel(63, 1024//cu[4], 1024//cu[0]); A('s_cselect_b32 s65, 4, 0')
    blocks('s63')
    A(f's_cmp_le_u32 s62, {NACT}'); A('s_cbranch_scc1 L_tk_act')
    A('s_cmp_lt_i32 s60, 0'); A('s_cbranch_scc1 L_tk_act')
    A(f's_cmp_lt_u32 s64, {P0 + 16*(XP - 1)}'); A('s_cbranch_scc1 L_tk_far_behind')
    A('s_mov_b32 s65, 5'); A(f's_mov_b32 s66, {cu[5]}')
    blocks(1024//cu[5])
    A('L_tk_far_behind:')
    A(f's_mov_b32 s{sBase}, s65'); A(f's_mul_i32 s{sU}, s66, {p.Pd}')
    A(f's_cmp_ge_u32 s62, {p.Pd - 1}'); A('s_cbranch_scc1 L_tk_next')
    A('L_tk_act:')
    A(f's_min_u32 s62, s62, {NACT}'); A(f's_mul_i32 s{sU}, s62, s66'); A('s_lshl_b32 s62, s62, 4'); A('s_cbranch_scc0 L_tk_mid')
    A('s_add_u32 s67, s62, s64'); A(f's_min_u32 s67, s67, {END}')
    A(f's_mov_b32 s{sBase}, s65')
    waitp('s67')
    A('L_tk_mid:')
    A(f's_mov_b32 s{sBase}, {mid}')
    A('L_tk_next:')
    A(f's_cmp_lt_u32 s{sTk}, {TICK + 128*K}'); A('s_cbranch_scc1 L_tick')
    waitp(END)
    A('L_ctl_done:')
    A('s_waitcnt vmcnt(0)')
    A('s_branch L_tail')
    C('s64 = progress of the workgroup; a wave well behind / ahead of its three siblings gets one level more / less')
    A('L_serve:')
    A(f'ds_read_b32 v16, v10 offset:{L_PR}'); A(f'v_mov_b32 v17, s{sBase}'); A('s_waitcnt lgkmcnt(0)')
    A('v_lshrrev_b32 v16, 12, v16')
    dpp('v_add_u32', 14, 16, 16, 'quad_perm:[1,0,3,2]'); dpp('v_add_u32', 14, 14, 14, 'quad_perm:[2,3,0,1]')
    A('v_lshlrev_b32 v16, 2, v16'); A('v_sub_u32 v16, v16, v14')
    A(f'v_cmp_ge_i32 vcc, {-p.wthr}, v16'); A('v_addc_co_u32 v17, vcc, 0, v17, vcc')
    A(f'v_cmp_le_i32 vcc, {p.wthr}, v16'); A('v_subb_co_u32 v17, vcc, v17, v15, vcc')
    A(f'v_med3_i32 v17, v17, 0, {TOP}')
    if p.fbase == 99:
        A('v_lshrrev_b32 v17, 4, v14'); A('v_mul_u32_u24 v17, 37, v17'); A('v_add_u32 v17, v17, v10'); A('v_bfe_u32 v17, v17, 2, 3'); A('v_min_u32 v17, 5, v17')
    elif p.fbase >= 0: A(f'v_mov_b32 v17, {p.fbase}')
    A('v_readfirstlane_b32 s64, v14')
    A(f'ds_write_b32 v10, v17 offset:{L_LV}')
    A('s_setpc_b64 s[42:43]')

    C('''
    wave 7: 512 x 8 of w_gate and w_up and 8 x 512 of w_down, rows paired, staged in LDS once the prefetch has left it''')
    A('L_stage:')
    A(f's_cmp_ge_u32 s{sFB}, 224'); A('s_cbranch_scc1 L_stage_done')
    srd(A, SW, 16, 512*1792*2); srd(A, SW2, 18, 512*1792*2)
    A(f's_mov_b32 s60, {4*3584}'); A('v_mul_lo_u32 v1, s60, v0'); A(f's_lshl_b32 s61, s{sFB}, 4'); A('v_add_u32 v1, s61, v1')
    for i in range(8):
        A(f's_mov_b32 s60, {(256*(i>>2) + (i&3))*3584}')
        A(f'buffer_load_dwordx4 {V(vX+8*i,4)}, v1, {S(SW)}, s60 offen nt')
        A(f's_waitcnt vmcnt({p.gw})')
        A(f'buffer_load_dwordx4 {V(vX+8*i+4,4)}, v1, {S(SW2)}, s60 offen nt')
        A(f's_waitcnt vmcnt({p.gw})')
    srd(A, SW, 20, 1792*512*2)
    A(f's_lshl_b32 s60, s{sFB}, 13'); A('s_add_u32 s61, s60, 4096'); A('v_lshlrev_b32 v1, 3, v0')
    for r in range(8):
        for u in range(2):
            A(f'buffer_load_dwordx2 {V(vW+4*r+2*u,2)}, v1, {S(SW)}, s{60+(r>>2)} offen offset:{(r&3)*1024+u*512} nt')
    A('s_waitcnt vmcnt(16)')
    for t in range(4):
        for j in range(8): perm2(192+16*t+2*j, 192+16*t+2*j+1, vX + 16*t + j, vX + 16*t + 8 + j)
    A('s_waitcnt vmcnt(0)')
    for t in range(4):
        for j in range(4): perm2(vX+8*t+2*j, vX+8*t+2*j+1, vW + 8*t + j, vW + 8*t + 4 + j)
    A('v_lshlrev_b32 v2, 4, v0')
    waitprog(FREE, 'min')
    for q in range(16): A(f'ds_write_b128 v2, {V(192+4*q,4)} offset:{L_GU+1024*q}')
    for q in range(8): A(f'ds_write_b128 v2, {V(vX+4*q,4)} offset:{L_GU+16384+1024*q}')
    A('L_stage_done:')
    setflag(L_FL + 4)

    C('''
    ================================ the tail ================================
    wave w works on batch s65 = (w >> 1) & 1 and columns 64*s36 + 32*s64 .. + 31 of wo, s64 = w & 1''')
    A('L_tail:')
    A('s_and_b32 s64, s3, 1'); A('s_bfe_u32 s65, s3, 0x10001')
    A('v_and_b32 v2, 3, v0')
    A('s_lshl_b32 s60, s64, 13'); A('v_lshl_add_u32 v7, v0, 4, s60')
    vY = vAc
    zero(vY, 8)
    A('v_lshlrev_b32 v1, 5, v2'); A('v_lshl_add_u32 v1, v13, 4, v1'); A('v_lshl_add_u32 v1, v12, 3, v1')
    A('s_lshl_b32 s66, s65, 4'); A(f's_lshl_b32 s61, s{sJ}, 1'); A('s_add_u32 s66, s66, s61'); A('s_add_u32 s66, s66, s64')
    A('s_lshl_b32 s66, s66, 5'); A(f's_add_u32 s66, s66, s{sH}'); A('s_lshl_b32 s66, s66, 7'); A(f's_add_u32 s66, s66, {YB}')
    C('gather slot r holds split (own split + r) & 3; slot 0 comes from LDS in the waves of this workgroup\'s batch')
    A('v_lshlrev_b32 v3, 3, v0'); A(f'v_add_u32 v4, s{sJ}, v2'); A('v_and_b32 v4, 3, v4'); A('v_mul_u32_u24 v4, 640, v4')
    A('s_lshl_b32 s67, s65, 5'); A(f's_add_u32 s67, s67, s{sH}'); A('s_mul_i32 s67, s67, 2560'); A(f's_add_u32 s67, s67, {OP}')
    sO = 84 if not p.stamps else 14
    for r in range(4):
        A(f's_add_u32 s60, s{sJ}, {r}'); A('s_and_b32 s60, s60, 3'); A('s_mul_i32 s60, s60, 640'); A(f's_add_u32 s{sO+r}, s60, s67')
    A(f's_cmp_eq_u32 s65, s{sB}'); A(f's_cselect_b32 s{sO+4}, 0x11111111, 0'); A(f's_mov_b32 s{sO+5}, s{sO+4}')
    C('wait until both weight stagings are done and all marks have been seen')
    A('s_mov_b32 s68, 0'); A('v_mov_b32 v15, 0')
    A('L_fl:')
    A(f'ds_read_b96 v[72:74], v15 offset:{L_FL}'); A('s_waitcnt lgkmcnt(0)')
    A('v_min3_u32 v14, v72, v73, v74'); A('v_cmp_eq_u32 vcc, 0, v14'); A('s_cbranch_vccz L_fl_d')
    A('s_sleep 20')
    bail('L_fl')
    A('L_fl_d:')
    for q in range(8): A(f'ds_read_b128 {V(vW+4*q,4)}, v7 offset:{L_WO + 1024*q}')
    vGU, vWD, vC1, vSB, vX2 = 128, 192, 224, 232, 240
    A('s_cmp_eq_u32 s3, 4'); A('s_cbranch_scc1 L_bar2')
    A('s_cmp_eq_u32 s3, 7'); A('s_cbranch_scc1 L_preR')
    C('waves 5, 6: what the gate/up step of batch s63 needs')
    A(f's_cmp_ge_u32 s{sFB}, 224'); A('s_cbranch_scc1 L_bar2')
    A('s_sub_u32 s63, s3, 5'); A('s_lshl_b32 s60, s63, 13'); A(f's_add_u32 s60, s60, {MODB + 2048}'); A('s_add_u32 s61, s60, 2048')
    A('v_lshlrev_b32 v5, 4, v0')
    A('s_waitcnt lgkmcnt(0)')
    for q in range(12): A(f'ds_read_b128 {V(vGU+4*q,4)}, v5 offset:{L_GU+1024*q}')
    A('s_waitcnt lgkmcnt(0)')
    for q in range(12, 24): A(f'ds_read_b128 {V(vGU+4*q,4)}, v5 offset:{L_GU+1024*q}')
    poll([f'buffer_load_dwordx4 {V(vC1+4*i,4)}, v5, {S(SWS)}, s61 offen offset:{1024*i} sc1' for i in range(2)] +
         [f'buffer_load_dwordx4 {V(vSB+4*i,4)}, v5, {S(SWS)}, s60 offen offset:{1024*i} sc1' for i in range(2)],
         range(vC1, vC1+16), 8, sleep=20)
    A('s_branch L_bar2')
    C('wave 7 of a reducer: x, ga, gb of its 32 columns')
    A('L_preR:')
    A(f's_cmp_ge_u32 s{sR}, 32'); A('s_cbranch_scc1 L_bar2')
    srd(A, SW2, 4, 2048)
    A('v_and_b32 v5, 7, v0'); A('v_lshlrev_b32 v5, 2, v5'); A('v_lshl_add_u32 v5, v13, 1, v5'); A('v_add_u32 v5, v5, v12')
    A('v_lshlrev_b32 v6, 1, v5'); A('v_lshlrev_b32 v5, 2, v5')
    A(f's_lshl_b32 s60, s{sR}, 6')
    A(f'buffer_load_ushort v34, v6, {S(SW2)}, s60 offen')
    A(f's_lshr_b32 s60, s{sR}, 4'); A('s_lshl_b32 s60, s60, 13'); A(f's_and_b32 s61, s{sR}, 15'); A('s_lshl_b32 s61, s61, 7')
    A('s_add_u32 s60, s60, s61'); A(f's_add_u32 s60, s60, {MODB}'); A('s_add_u32 s61, s60, 6144')
    poll([f'buffer_load_dword v32, v5, {S(SWS)}, s60 offen sc1', f'buffer_load_dword v33, v5, {S(SWS)}, s61 offen sc1'], (32, 33), 8, sleep=20)
    A('v_lshlrev_b32 v34, 16, v34')
    A('L_bar2:')
    A('s_mov_b32 s68, 0')
    A('s_waitcnt lgkmcnt(0)')
    stamp(7)
    C('barrier 2')
    A('s_barrier')
    stamp(8)
    C('merge the four waves; one wave publishes o, -max*log2e and the sum of this workgroup')
    A(f's_cmp_eq_u32 s{sO+4}, 0'); A('s_cbranch_scc1 L_h0_first')
    A(f'ds_read_b128 v[72:75], v15 offset:{L_M}'); A(f'ds_read_b128 v[76:79], v15 offset:{L_L}')
    for w in range(4): A(f'ds_read_b64 {V(80+2*w,2)}, v3 offset:{L_O+512*w}')
    A('s_waitcnt lgkmcnt(4)')
    A('v_min3_f32 v8, v72, v73, v74'); A('v_min_f32 v8, v8, v75')
    for w in range(4): A(f'v_sub_f32 v{72+w}, v8, v{72+w}')
    for w in range(4): A(f'v_exp_f32 v{72+w}, v{72+w}')
    A('s_waitcnt lgkmcnt(0)')
    A('v_mul_f32 v16, v72, v80'); A('v_mul_f32 v17, v72, v81'); A('v_mul_f32 v9, v72, v76')
    for w in range(1, 4):
        A(f'v_fmac_f32 v16, v{72+w}, v{80+2*w}'); A(f'v_fmac_f32 v17, v{72+w}, v{81+2*w}'); A(f'v_fmac_f32 v9, v{72+w}, v{76+w}')
    A('s_cmp_lg_u32 s64, 0'); A('s_cbranch_scc1 L_h0_own')
    A(f'buffer_store_dwordx2 v[16:17], v3, {S(SWS)}, s{sO} offen sc1')
    A('s_mov_b64 exec, 1')
    A(f'buffer_store_dwordx2 v[8:9], v15, {S(SWS)}, s{sO} offen offset:512 sc1')
    stamp(9)
    A('L_h0_own:')
    A(f's_mov_b64 exec, s[{sO+4}:{sO+5}]'); A('v_mov_b32 v24, v8'); A('v_mov_b32 v25, v9'); A('s_mov_b64 exec, -1')
    A('s_waitcnt vmcnt(0)')
    A('L_h0_first:')
    C('barrier 3: this workgroup\'s o has been written; gather the four splits of (batch s65, head)')
    A('s_barrier')
    A('L_h0_again:')
    A(f's_cmp_lg_u32 s{sO+4}, 0'); A('s_cbranch_scc1 L_g0')
    A(f'buffer_load_dwordx2 v[16:17], v3, {S(SWS)}, s{sO} offen sc1')
    A('L_g0:')
    for r in range(1, 4): A(f'buffer_load_dwordx2 {V(16+2*r,2)}, v3, {S(SWS)}, s{sO+r} offen sc1')
    A('s_mov_b64 s[60:61], exec'); A(f's_andn2_b64 exec, exec, s[{sO+4}:{sO+5}]'); A('s_cbranch_execz L_g1')
    A(f'buffer_load_dwordx2 v[24:25], v4, {S(SWS)}, s67 offen offset:512 sc1')
    A('L_g1:')
    A('s_mov_b64 exec, s[60:61]')
    A('s_waitcnt vmcnt(0)')
    maxall(26, range(16, 26))
    A('v_cmpx_eq_u32 vcc, -1, v26'); A('s_cbranch_execz L_h0_done')
    if p.h0sleep: A(f's_sleep {p.h0sleep}')
    bail('L_h0_again')
    A('L_h0_done:')
    A('s_mov_b64 exec, -1')
    stamp(10)
    C('softmax weights of the splits, normalised o (bf16), 128 x 32 of wo')
    dpp('v_min_f32', 26, 24, 24, 'quad_perm:[1,0,3,2]'); dpp('v_min_f32', 26, 26, 26, 'quad_perm:[2,3,0,1]')
    A('v_sub_f32 v24, v26, v24'); A('v_exp_f32 v24, v24'); A('v_mul_f32 v25, v24, v25')
    dpp('v_add_f32', 25, 25, 25, 'quad_perm:[1,0,3,2]'); dpp('v_add_f32', 25, 25, 25, 'quad_perm:[2,3,0,1]')
    A('v_rcp_f32 v25, v25'); A('v_mul_f32 v24, v24, v25')
    dpp('v_mul_f32', 16, 24, 16, 'quad_perm:[0,0,0,0]'); dpp('v_mul_f32', 17, 24, 17, 'quad_perm:[0,0,0,0]')
    for i in range(1, 4):
        dpp('v_fmac_f32', 16, 24, 16+2*i, f'quad_perm:[{i},{i},{i},{i}]'); dpp('v_fmac_f32', 17, 24, 17+2*i, f'quad_perm:[{i},{i},{i},{i}]')
    A('v_cvt_pk_bf16_f32 v16, v16, v17')
    for t in range(4): movdpp(20+t, 16, f'quad_perm:[{t},{t},{t},{t}]')
    for t in range(4):
        for e in range(8): A(f'v_dot2c_f32_bf16 v{vY+e}, v{20+t}, v{vW + 8*t + e}')
    fold(vY, 8, 32); fold(vY, 4, 16); rors(vY, 2, (8, 4))
    setexec(0x000f000f000f000f)
    A(f'buffer_store_dwordx2 {V(vY,2)}, v1, {S(SWS)}, s66 offen sc1')
    stamp(11)
    A('s_mov_b64 exec, -1')
    A('s_cmp_eq_u32 s3, 7'); A('s_cbranch_scc1 L_taskR')
    A('s_cmp_eq_u32 s3, 4'); A('s_cbranch_scc1 L_toG')
    C('''
    waves 5, 6: LN(x2)*(1+cb)+sb, 8 columns of gate and up, their product, its share of the down projection (batch s63)''')
    A(f's_cmp_ge_u32 s{sFB}, 224'); A('s_cbranch_scc1 L_fin')
    zero(vAc, 16); zero(16, 8)
    A('v_lshrrev_b32 v1, 3, v0'); A('v_mul_u32_u24 v1, 28672, v1'); A('v_and_b32 v2, 7, v0'); A('v_lshl_add_u32 v1, v2, 4, v1')
    A(f's_mul_i32 s66, s63, {16*28672}'); A(f's_lshl_b32 s61, s{sFB}, 7'); A('s_add_u32 s66, s66, s61'); A(f's_add_u32 s66, s66, {Y2}')
    A(f's_add_u32 s67, s66, {8*28672}')
    A('s_lshl_b32 s60, s63, 11'); A(f's_add_u32 s60, s60, {X2}')
    poll([f'buffer_load_dwordx4 {V(vX2+4*i,4)}, v5, {S(SWS)}, s60 offen offset:{1024*i} sc1' for i in range(2)],
         range(vX2, vX2+8), 8, sleep=p.xsleep)
    stamp(12)
    C('mean and variance about the first element')
    A(f'v_readfirstlane_b32 s60, v{vX2}')
    w = 24
    for i in range(0, 8, 2): A(f'v_pk_add_f32 {V(w+i,2)}, {V(vX2+i,2)}, s[60:61] op_sel_hi:[1,0] neg_lo:[0,1] neg_hi:[0,1]')
    pk('mul', 8, w, w); pk('add', 6, w, w+2)
    A(f'v_pk_fma_f32 v[8:9], {V(w+2,2)}, {V(w+2,2)}, v[8:9]'); pk('add', 6, 6, w+4)
    A(f'v_pk_fma_f32 v[8:9], {V(w+4,2)}, {V(w+4,2)}, v[8:9]'); pk('add', 6, 6, w+6)
    A(f'v_pk_fma_f32 v[8:9], {V(w+6,2)}, {V(w+6,2)}, v[8:9]')
    A('v_add_f32 v6, v6, v7'); A('v_add_f32 v7, v8, v9')
    rors(6, 2, (8, 4, 2, 1))
    for r in (6, 7): dpp('v_add_f32', r, r, r, 'row_bcast:15', '0xa')
    for r in (6, 7): dpp('v_add_f32', r, r, r, 'row_bcast:31', '0xc')
    A('v_readlane_b32 s61, v6, 63'); A('v_readlane_b32 s62, v7, 63')
    A(f'v_mov_b32 v8, {f32(1.0/512)}')
    A('v_mul_f32 v6, s61, v8'); A('v_mul_f32 v8, s62, v8')
    A('v_fma_f32 v8, -v6, v6, v8'); A('v_add_f32 v6, s60, v6'); A('v_max_f32 v8, 0, v8'); A('v_sub_f32 v6, 0, v6')
    ln_tail(6, 8)
    for i in range(0, 8, 2): pk('add', vX2+i, vX2+i, 6, True)
    for i in range(8): rbf(vX2+i, vX2+i)
    for i in range(0, 8, 2): pk('mul', vX2+i, vX2+i, 8, True)
    for i in range(8): rbf(vX2+i, vX2+i)
    for i in range(0, 8, 2): pk('mul', vX2+i, vX2+i, vC1+i)
    for i in range(8): rbf(vX2+i, vX2+i)
    for i in range(0, 8, 2): pk('add', vX2+i, vX2+i, vSB+i)
    for i in range(4): A(f'v_cvt_pk_bf16_f32 v{w+i}, v{vX2+2*i}, v{vX2+2*i+1}')
    for t in range(4):
        for c in range(16): A(f'v_dot2c_f32_bf16 v{vAc+c}, v{w+t}, v{vGU+16*t+c}')
    fold(vAc, 16, 32); fold(vAc, 8, 16); rors(vAc, 4, (8, 4, 2, 1))
    for e in range(4): rbf(vAc+e, vAc+e)
    for e in range(4): A(f'v_mov_b32 v{vAc+4+e}, v{vAc+e}')
    for e in range(4): A(f'v_permlane32_swap_b32 v{vAc+e}, v{vAc+4+e}')
    pk('mul', vAc, vAc, vAc+4); pk('mul', vAc+2, vAc+2, vAc+6)
    A(f'v_cvt_pk_bf16_f32 v6, v{vAc}, v{vAc+1}'); A(f'v_cvt_pk_bf16_f32 v7, v{vAc+2}, v{vAc+3}')
    A('v_readlane_b32 s60, v6, 0'); A('v_readlane_b32 s61, v7, 0'); A('v_readlane_b32 s62, v6, 16'); A('v_readlane_b32 s63, v7, 16')
    for t in range(4):
        for c in range(8): A(f'v_dot2c_f32_bf16 v{16+c}, s{60+t}, v{vWD+8*t+c}')
    A(f'buffer_store_dwordx4 v[16:19], v1, {S(SWS)}, s66 offen sc1')
    A(f'buffer_store_dwordx4 v[20:23], v1, {S(SWS)}, s67 offen sc1')
    stamp(13)
    A(f's_cmp_ge_u32 s{sR}, 32'); A('s_cbranch_scc1 L_fin')
    A('s_waitcnt vmcnt(0)')
    A('s_branch L_taskG')
    C('wave 7 of a reducer: x2 = x + ga * (sum over the 32 heads) for 32 columns')
    A('L_taskR:')
    A(f's_cmp_ge_u32 s{sR}, 32'); A('s_cbranch_scc1 L_fin')
    A('v_lshlrev_b32 v1, 4, v0'); A(f's_lshl_b32 s60, s{sR}, 12'); A(f's_add_u32 s60, s60, {YB}')
    A(f's_lshl_b32 s61, s{sR}, 7'); A(f's_add_u32 s61, s61, {X2}')
    poll([f'buffer_load_dwordx4 {V(16+4*i,4)}, v1, {S(SWS)}, s60 offen offset:{1024*i} sc1' for i in range(4)], range(16, 32), 8)
    stamp(12)
    for a, b in ((16, 20), (24, 28), (16, 24)):
        pk('add', a, a, b); pk('add', a+2, a+2, b+2)
    fold(16, 4, 32); fold(16, 2, 16); rors(16, 1, (8,))
    rbf(16, 16); A('v_mul_f32 v16, v32, v16'); rbf(16, 16); A('v_add_f32 v16, v34, v16'); rbf(34, 16)
    setexec(0x00ff00ff00ff00ff)
    A(f'buffer_store_dword v34, v5, {S(SWS)}, s61 offen sc1')
    stamp(13)
    A('s_mov_b64 exec, -1')
    A('L_toG:')
    A(f's_cmp_ge_u32 s{sR}, 32'); A('s_cbranch_scc1 L_fin')
    C('reducers: out = x2 + gb * (sum of the 224 partial down projections)')
    A('L_taskG:')
    srd(A, SW2, 26, 2048)
    A('v_lshlrev_b32 v1, 4, v0')
    A(f's_mul_i32 s60, s{sR}, 28672'); A('s_sub_u32 s61, s3, 4'); A('s_mul_i32 s62, s61, 7168'); A('s_add_u32 s60, s60, s62')
    A(f's_add_u32 s60, s60, {Y2}'); A('s_add_u32 s62, s60, 4096')
    A('v_and_b32 v2, 7, v0'); A('v_lshlrev_b32 v2, 2, v2'); A('v_lshl_add_u32 v2, v13, 1, v2'); A('v_add_lshl_u32 v2, v2, v12, 2')
    A('s_lshl_b32 s61, s61, 7'); A('v_add_u32 v3, s61, v2')
    C('barrier 4: this workgroup\'s own partial sums have been written')
    A('s_barrier')
    poll([f'buffer_load_dwordx4 {V(vX+4*i,4)}, v1, {S(SWS)}, s{60 if i < 4 else 62} offen offset:{1024*(i&3)} sc1' for i in range(7)],
         range(vX, vX+28), 8)
    stamp(1)
    for a, b in ((0, 4), (8, 12), (16, 20), (0, 8), (16, 24), (0, 16)):
        pk('add', vX+a, vX+a, vX+b); pk('add', vX+a+2, vX+a+2, vX+b+2)
    fold(vX, 4, 32); fold(vX, 2, 16); rors(vX, 1, (8,))
    A(f'ds_write_b32 v3, v{vX} offset:{L_G}')
    A('s_waitcnt lgkmcnt(0)')
    A('s_barrier')
    A('s_cmp_lg_u32 s3, 7'); A('s_cbranch_scc1 L_fin')
    for w in range(4): A(f'ds_read_b32 v{16+w}, v2 offset:{L_G+128*w}')
    A(f's_lshl_b32 s60, s{sR}, 6')
    A('s_waitcnt lgkmcnt(0)')
    pk('add', 16, 16, 18); A('v_add_f32 v16, v16, v17')
    rbf(16, 16); A('v_mul_f32 v16, v33, v16'); rbf(16, 16); A('v_add_f32 v16, v34, v16')
    A('v_cvt_pk_bf16_f32 v16, v16, v16')
    setexec(0x00ff00ff00ff00ff)
    A(f'buffer_store_short v16, v6, {S(SW2)}, s60 offen sc1')
    stamp(14)
    A('L_fin:')
    A('s_branch L_flush' if p.stamps else 's_endpgm')

    A('.section .rodata,"a"'); A('.p2align 6'); A(f'.amdhsa_kernel {NAME}_kernel')
    for l in ['.amdhsa_next_free_vgpr 256', '.amdhsa_next_free_sgpr 102', '.amdhsa_accum_offset 256',
              '.amdhsa_group_segment_fixed_size 0', '.amdhsa_kernarg_size 112', '.amdhsa_user_sgpr_count 2',
              '.amdhsa_user_sgpr_kernarg_segment_ptr 1', '.amdhsa_system_sgpr_workgroup_id_x 1']: A(l)
    A('.end_amdhsa_kernel')
    return '\n'.join(head) + '\n' + A.text()

if __name__ == '__main__':
    p = P()
    out = sys.argv[1]
    for a in sys.argv[2:]:
        k, v = a.split('=')
        cur = getattr(p, k)
        setattr(p, k, (v == '1') if isinstance(cur, bool) else type(cur)(v))
    open(out, 'w').write(gen(p))
```
